```python
import torch

def _softmax(x, axis=-1):
    return torch.softmax(x, dim=axis)
def _gelu(x):
    return torch.nn.functional.gelu(x, approximate="tanh")
def _silu(x):
    return torch.nn.functional.silu(x)
def _sigmoid(x):
    return torch.sigmoid(x)
def _layernorm(x, axis=-1, eps=1e-5):
    m = x.mean(dim=axis, keepdim=True)
    v = x.var(dim=axis, keepdim=True, unbiased=False)
    return (x - m) / torch.sqrt(v + eps)
def _scatter_add(tgt, idx, src, axis=0):
    return tgt.clone().index_add_(axis, idx, src)
def _segment_sum(src, seg, n):
    out = torch.zeros((n,) + src.shape[1:], dtype=src.dtype)
    return out.index_add_(0, seg, src)
def _pad(x, pw):
    flat = tuple(v for pair in reversed(pw) for v in pair)
    return torch.nn.functional.pad(x, flat)

kernel_name = 'gated_mix__softmax_full_mha__mixer_token_mlp__prompt'

def setup_inputs():

    _w = (lambda a: (lambda t: t.to(torch.bfloat16) if t.is_floating_point() else t)(torch.as_tensor(a)))
    def _A_setup():
        B, S, D = 1, 2048, 512
        return {
            "x": _w((lambda *s: torch.randn(*s, dtype=torch.bfloat16) * 0.05)(B, S, D)),
            "wqkv": _w((lambda *s: torch.randn(*s, dtype=torch.bfloat16) * 0.8)(D, 3 * D)),
            "wo": _w((lambda *s: torch.randn(*s, dtype=torch.bfloat16) * 0.05)(D, D)),
        }
    _A_in = _A_setup()

    def _B_setup():
        B, S, D, F = 1, 2048, 512, 1376
        return {
            "x": _w((lambda *s: torch.randn(*s, dtype=torch.bfloat16) * 0.05)(B, S, D)),
            "w1": _w((lambda *s: torch.randn(*s, dtype=torch.bfloat16) * 0.8)(S, F) * (S ** -0.5)),
            "b1": _w((lambda *s: torch.randn(*s, dtype=torch.bfloat16) * 12.8)(F) * 0.02),
            "w2": _w((lambda *s: torch.randn(*s, dtype=torch.bfloat16) * 0.05)(F, S) * (F ** -0.5)),
            "b2": _w((lambda *s: torch.randn(*s, dtype=torch.bfloat16) * 0.8)(S) * 0.02),
        }
    _B_in = _B_setup()

    return {
        "A_x": _A_in["x"],
        "A_wqkv": _A_in["wqkv"],
        "A_wo": _A_in["wo"],
        "B_x": _B_in["x"],
        "B_w1": _B_in["w1"],
        "B_b1": _B_in["b1"],
        "B_w2": _B_in["w2"],
        "B_b2": _B_in["b2"],
        "gate_w": _w((lambda *s: torch.randn(*s, dtype=torch.bfloat16) * 0.05)(512) * 16.0),
    }

def reference(A_x, A_wqkv, A_wo, B_x, B_w1, B_b1, B_w2, B_b2, gate_w):
    def _A_ref(x, wqkv, wo):
        B, S, D = x.shape
        H = 32; Dh = D // H
        qkv = (lambda x, *d: x.permute(*d))((x @ wqkv).reshape(B, S, 3, H, Dh), 2, 0, 3, 1, 4)
        q, k, v = qkv[0], qkv[1], qkv[2]
        scale = Dh ** -0.5
        scores = torch.einsum("bhqd,bhkd->bhqk", q, k) * scale
        p = _softmax(scores, axis=-1)
        o = torch.einsum("bhqk,bhkd->bhqd", p, v)
        return (lambda x, *d: x.permute(*d))(o, 0, 2, 1, 3).reshape(B, S, D) @ wo

    def _B_ref(x, w1, b1, w2, b2):
        B, S, D = x.shape
        h = _layernorm(x, axis=-1)
        u = torch.einsum("bsd,sf->bdf", h, w1) + b1
        u = _gelu(u)
        y = torch.einsum("bdf,fs->bds", u, w2) + b2
        return (lambda x, *d: x.permute(*d))(y, 0, 2, 1)

    x = A_x
    g = _sigmoid((x * gate_w).sum(-1, keepdims=True))
    a = _A_ref(x, A_wqkv, A_wo)
    b = _B_ref(x, B_w1, B_b1, B_w2, B_b2)
    return g * a + (1 - g) * b
```

```python
import re

TRANS = ("v_exp_f32", "v_log_f32", "v_rcp_f32", "v_rsq_f32", "v_sqrt_f32", "v_sin_f32", "v_cos_f32",
         "v_exp_f16", "v_rcp_f16", "v_rcp_iflag_f32")

_reg_re = re.compile(r"(?<![\w.])([vsa])(?:\[(\d+):(\d+)\]|(\d+))(?![\w])")


def regs_of(tok):
    out = set()
    for m in _reg_re.finditer(tok):
        k = m.group(1)
        if m.group(2) is not None:
            for i in range(int(m.group(2)), int(m.group(3)) + 1):
                out.add((k, i))
        else:
            out.add((k, int(m.group(4))))
    t = tok.strip()
    if re.search(r"\bvcc\b", t):
        out.add(("vcc", 0))
    if re.search(r"\bvcc_lo\b|\bvcc_hi\b", t):
        out.add(("vcc", 0))
    if re.search(r"\bexec\b|\bexec_lo\b|\bexec_hi\b", t):
        out.add(("exec", 0))
    if re.search(r"\bm0\b", t):
        out.add(("m0", 0))
    return out


def split_ops(s):
    ops, depth, cur = [], 0, ""
    for ch in s:
        if ch == "[":
            depth += 1
        if ch == "]":
            depth -= 1
        if ch == "," and depth == 0:
            ops.append(cur.strip())
            cur = ""
        else:
            cur += ch
    if cur.strip():
        ops.append(cur.strip())
    return ops


class Ins:
    def __init__(self, text):
        self.text = text
        t = text.split(";")[0].strip()
        self.label = None
        self.op = None
        self.w = set()
        self.r = set()
        self.kind = "other"
        self.states = 1
        if not t or t.startswith("."):
            self.kind = "dir"
            self.states = 0
            if t.endswith(":"):
                self.label = t[:-1]
            return
        if t.endswith(":"):
            self.label = t[:-1]
            self.kind = "dir"
            self.states = 0
            return
        parts = t.split(None, 1)
        op = parts[0]
        self.op = op
        rest = parts[1] if len(parts) > 1 else ""
        ops = split_ops(rest)
        self.ops = ops
        R = [regs_of(o) for o in ops]
        self.dpp = ("_dpp" in op) or (" row_" in rest) or ("quad_perm" in rest)
        self.sdwa = "_sdwa" in op or "op_sel" in rest
        self.target = None
        if op == "s_nop":
            self.kind = "nop"
            self.states = int(ops[0], 0) + 1
        elif op.startswith("v_mfma") or op.startswith("v_smfmac"):
            self.kind = "mfma"
            self.w = R[0]
            self.A, self.B, self.C = R[1], R[2], R[3] if len(R) > 3 else set()
            self.r = self.A | self.B | self.C
            self.passes = 8 if "32x32" in op else 4
        elif op.startswith("v_"):
            self.kind = "valu"
            base = op.replace("_e32", "").replace("_e64", "").replace("_dpp", "").replace("_sdwa", "")
            self.base = base
            self.trans = base in TRANS
            if base.startswith("v_cmp"):
                self.w = R[0]
                self.r = set().union(*R[1:])
                if base.startswith("v_cmpx"):
                    self.w = self.w | {("exec", 0)}
            elif (base.startswith("v_permlane") and "swap" in base) or base == "v_swap_b32":
                self.w = R[0] | R[1]
                self.r = R[0] | R[1]
            elif base in ("v_add_co_u32", "v_sub_co_u32", "v_addc_co_u32", "v_subb_co_u32", "v_subrev_co_u32"):
                self.w = R[0] | R[1]
                self.r = set().union(*R[2:])
            elif base == "v_nop":
                pass
            else:
                self.w = R[0]
                self.r = set().union(*R[1:]) if len(R) > 1 else set()
                if base in ("v_fmac_f32", "v_writelane_b32", "v_pk_fmac_f16", "v_dot2c_f32_bf16") or self.dpp or self.sdwa:
                    self.r = self.r | R[0]
        elif op.startswith("buffer_") or op.startswith("global_"):
            self.kind = "vmem"
            self.lds = bool(re.search(r"\blds\b", rest)) or "load_lds" in op
            self.store = "store" in op or "atomic" in op
            self.wide = "x3" in op or "x4" in op
            if op in ("buffer_inv", "buffer_wbl2"):
                pass
            elif self.lds:
                self.r = set().union(*R) | {("m0", 0)}
            elif self.store:
                self.r = set().union(*R)
                self.data = R[0] if op.startswith("buffer_") else R[1]
                if "atomic" in op and re.search(r"\bsc0\b", rest):
                    self.w = R[0]
            else:
                self.w = R[0]
                self.r = set().union(*R[1:])
        elif op.startswith("ds_"):
            self.kind = "ds"
            if op.startswith("ds_read") or op.startswith("ds_bpermute") or op.startswith("ds_permute") or op.startswith("ds_swizzle") or "_rtn" in op:
                self.w = R[0]
                self.r = set().union(*R[1:])
            else:
                self.r = set().union(*R)
        elif op.startswith("s_"):
            self.kind = "salu"
            if op.startswith("s_cbranch") or op == "s_branch":
                self.kind = "branch"
                self.target = ops[0]
            elif op.startswith("s_cmp") or op in ("s_waitcnt", "s_barrier", "s_endpgm", "s_setprio", "s_sleep", "s_bitcmp0_b32", "s_bitcmp1_b32"):
                self.r = set().union(*R) if R else set()
            elif op.startswith("s_load") or op.startswith("s_buffer_load") or op.startswith("s_memtime") or op.startswith("s_memrealtime"):
                self.kind = "smem"
                self.w = R[0]
                self.r = set().union(*R[1:]) if len(R) > 1 else set()
            else:
                self.w = R[0]
                self.r = set().union(*R[1:]) if len(R) > 1 else set()
                if op.startswith("s_bitset"):
                    self.r = self.r | self.w
                if "saveexec" in op:
                    self.w = self.w | {("exec", 0)}


def _v(s):
    return {x for x in s if x[0] in ("v", "a")}


def _s(s):
    return {x for x in s if x[0] in ("s", "vcc")}


def need(p, c):
    n = 0
    if p.kind == "valu":
        wv, ws = _v(p.w), _s(p.w)
        if c.kind == "mfma" and wv & c.r:
            n = max(n, 2)
        if c.kind == "valu":
            if p.trans and not c.trans and wv & (c.r | c.w):
                n = max(n, 1)
            if p.trans and c.trans and wv & c.r:
                n = max(n, 1)
            if c.base in ("v_readlane_b32", "v_readfirstlane_b32") and wv & c.r:
                n = max(n, 1)
            if c.dpp and wv & c.r:
                n = max(n, 2)
            if c.base.startswith("v_permlane") and wv & c.r:
                n = max(n, 2)
            if ws & c.r:
                n = max(n, 4 if c.base in ("v_readlane_b32", "v_writelane_b32") else 2)
            if p.sdwa and wv & (c.r | c.w):
                n = max(n, 1)
            if ("exec", 0) in p.w:
                n = max(n, 5)
        if c.kind == "mfma" and ("exec", 0) in p.w:
            n = max(n, 4)
        if c.kind == "vmem" and ws & c.r:
            n = max(n, 5)
        if c.kind in ("salu", "branch", "smem") and ws & c.r:
            n = max(n, 1)
        if p.trans and c.kind in ("vmem", "ds") and wv & c.r:
            n = max(n, 1)
    if p.kind == "mfma":
        P = p.passes
        D = p.w
        if c.kind == "mfma":
            if D & c.C:
                if not (c.C == D and c.passes == P):
                    n = max(n, {4: 6, 8: 10}[P])
            if D & (c.A | c.B):
                n = max(n, {4: 8, 8: 12}[P])
            if D & c.w and not (c.C == D):
                n = max(n, {4: 8, 8: 12}[P])
        elif c.kind in ("valu", "vmem", "ds"):
            if D & (c.r | c.w):
                n = max(n, {4: 8, 8: 12}[P])
            if c.kind == "valu" and p.C & c.w:
                n = max(n, {4: 3, 8: 7}[P])
    if p.kind == "salu" and ("m0", 0) in p.w and c.kind == "vmem" and getattr(c, "lds", False):
        n = max(n, 1)
    if p.kind == "vmem" and getattr(p, "store", False) and getattr(p, "wide", False):
        if c.kind == "valu" and p.data & c.w:
            n = max(n, 2)
        elif p.data & c.w:
            n = max(n, 1)
    return n


class Asm:
    def __init__(self):
        self.ins = []

    def __call__(self, text):
        for line in text.split("\n"):
            if line.strip():
                self.ins.append(Ins(line.strip()))

    def raw(self, text):
        i = Ins("")
        i.text = text
        self.ins.append(i)

    def fix(self, verbose=False):
        out = []
        LOOK = 24
        inserted = 0
        for c in self.ins:
            if c.kind != "dir":
                dist = 0
                req = 0
                for p in reversed(out):
                    if p.kind == "dir":
                        continue
                    if p.op in ("s_branch", "s_endpgm"):
                        break
                    k = need(p, c)
                    if k - dist > req:
                        req = k - dist
                        why = p.text
                    dist += p.states
                    if dist > LOOK:
                        break
                if req > 0:
                    if verbose:
                        print(f"nop {req}: [{why}] -> [{c.text}]")
                    inserted += 1
                    while req > 0:
                        k = min(req, 16)
                        out.append(Ins(f"s_nop {k-1}"))
                        req -= k
            out.append(c)
        self.ins = out
        labels = {x.label: i for i, x in enumerate(out) if x.label}
        for i, b in enumerate(out):
            if b.kind == "branch" and b.target in labels:
                pre = [x for x in out[max(0, i - 60): i + 1] if x.kind != "dir"]
                for j in range(len(pre) - 2, -1, -1):
                    if pre[j].op in ("s_branch", "s_endpgm"):
                        pre = pre[j + 1:]
                        break
                post = [x for x in out[labels[b.target]: labels[b.target] + 60] if x.kind != "dir"]
                d0 = 0
                for c in post:
                    dist = d0
                    for p in reversed(pre):
                        k = need(p, c)
                        if k > dist:
                            raise RuntimeError(f"hazard across branch {b.text}: [{p.text}] -> [{c.text}] need {k} have {dist}")
                        dist += p.states
                        if dist > LOOK:
                            break
                    d0 += c.states
                    if d0 > LOOK or c.op in ("s_branch", "s_endpgm"):
                        break
        return inserted

    def text(self):
        o = []
        for x in self.ins:
            if x.kind == "dir":
                o.append(x.text)
            else:
                o.append("    " + x.text)
        return "\n".join(o) + "\n"
```

```python
import sys, math, struct
from asmlib import Asm

NAME = "gated_mix__softmax_full_mha__mixer_token_mlp__prompt"
MB = 1 << 20
WS_Q, WS_KV, WS_HT, WS_U, WS_O, WS_G = 0, 2 * MB, 6 * MB, 8 * MB, 10 * MB, 12 * MB
SZ_U = 172 * 8192
KA = dict(x=0, wqkv=8, wo=16, bx=24, w1=32, b1=40, w2=48, b2=56, gw=64, out=72, dbg=80, ws=88)


def f32(x):
    return "0x%08x" % struct.unpack("<I", struct.pack("<f", x))[0]


LOG2E = math.log2(math.e)


def srd(a, d, base, size, add=0):
    if add:
        a(f"s_add_u32 s{d}, s{base}, {hex(add)}")
        a(f"s_addc_u32 s{d+1}, s{base+1}, 0")
    else:
        a(f"s_mov_b32 s{d}, s{base}")
        a(f"s_mov_b32 s{d+1}, s{base+1}")
    a(f"s_mov_b32 s{d+2}, {hex(size)}")
    a(f"s_mov_b32 s{d+3}, 0x20000")


def vr(b, n):
    return f"v[{b}:{b+n-1}]"


def sr(b, n=4):
    return f"s[{b}:{b+n-1}]"


def mfma(a, D, A, B, C=None):
    c = vr(D, 16) if C is None else (C if isinstance(C, str) else vr(C, 16))
    a(f"v_mfma_f32_32x32x16_bf16 {vr(D,16)}, {vr(A,4)}, {vr(B,4)}, {c}")


def head(a, name):
    a.raw(f".p2align 8")
    a.raw(f".type {name},@function")
    a(f"{name}:")


def k1(a):
    nm = "k1_kernel"
    head(a, nm)
    SLOT = 28672
    a("s_cmp_ge_u32 s2, 256")
    a("s_cbranch_scc1 K1_END")
    a("s_load_dwordx4 s[4:7], s[0:1], 0")
    a("s_load_dwordx2 s[8:9], s[0:1], 64")
    a("s_load_dwordx2 s[10:11], s[0:1], 88")
    a("v_lshrrev_b32 v2, 6, v0")
    a("v_and_b32 v1, 63, v0")
    a("v_readfirstlane_b32 s12, v2")
    a("s_and_b32 s13, s2, 7")
    a("s_lshr_b32 s14, s2, 3")
    a("s_lshr_b32 s15, s13, 1")
    a("s_lshl_b32 s15, s15, 2")
    a("s_lshr_b32 s16, s14, 3")
    a("s_add_u32 s15, s15, s16")
    a("s_and_b32 s16, s13, 1")
    a("s_lshl_b32 s16, s16, 3")
    a("s_and_b32 s17, s14, 7")
    a("s_add_u32 s16, s16, s17")
    a("s_waitcnt lgkmcnt(0)")
    srd(a, 20, 4, 2 * MB)
    srd(a, 24, 6, 512 * 3072)
    srd(a, 28, 10, 2 * MB, WS_Q)
    srd(a, 32, 10, 4 * MB, WS_KV)
    srd(a, 36, 10, 2 * MB, WS_HT)
    srd(a, 40, 10, 8192, WS_G)
    srd(a, 44, 8, 1024)
    a("s_cmp_eq_u32 s12, 4")
    a("s_cbranch_scc1 K1_LN")

    vXo, vWo = 4, 8
    vXA, vWA = 10, 22
    vXf, vWf = 28, 36
    acc = 64
    a("v_lshrrev_b32 v2, 3, v1")
    a("v_and_b32 v3, 7, v1")
    a("v_lshrrev_b32 v9, 4, v1")
    a("v_xor_b32 v3, v3, v9")
    a("v_lshlrev_b32 v2, 10, v2")
    a(f"v_lshl_add_u32 v{vXo}, v3, 4, v2")
    a(f"v_xor_b32 v3, 4, v3")
    a(f"v_lshl_add_u32 v{vXo+1}, v3, 4, v2")
    a(f"v_add_u32 v{vXo+1}, 8192, v{vXo+1}")
    a(f"v_add_u32 v{vXo+2}, 16384, v{vXo}")
    a(f"v_add_u32 v{vXo+3}, 16384, v{vXo+1}")
    a("v_lshrrev_b32 v2, 2, v1")
    a("v_mul_u32_u24 v2, 3072, v2")
    a("v_and_b32 v3, 3, v1")
    a(f"v_lshl_add_u32 v{vWo}, v3, 4, v2")
    a("s_lshl_b32 s48, s15, 17")
    a("s_lshl_b32 s49, s12, 15")
    a("s_add_u32 s48, s48, s49")
    a("s_mul_i32 s49, s12, 49152")
    a("s_lshl_b32 s50, s16, 6")
    a("s_add_u32 s49, s49, s50")
    a("s_lshl_b32 s50, s12, 12")
    a("s_lshl_b32 s51, s12, 10")
    a("s_add_u32 s51, s51, 16384")

    def dma(c):
        sl = (c % 5) * SLOT
        a(f"s_add_u32 s52, s48, {c*128}")
        for n in range(4):
            a(f"s_add_u32 m0, s50, {sl + n*1024}")
            a("s_nop 0")
            a(f"buffer_load_dwordx4 v{vXo+n}, {sr(20)}, s52 offen lds")
        for b in range(3):
            a(f"s_add_u32 s53, s49, {c*64*3072 + b*1024}")
            a(f"s_add_u32 m0, s51, {sl + b*4096}")
            a("s_nop 0")
            a(f"buffer_load_dwordx4 v{vWo}, {sr(24)}, s53 offen lds")

    for c in range(5):
        dma(c)
    a("v_and_b32 v2, 31, v1")
    a("v_lshrrev_b32 v3, 5, v1")
    a("v_bfe_u32 v9, v1, 1, 3")
    a("v_lshlrev_b32 v2, 7, v2")
    a("v_add_u32 v2, s50, v2")
    for kk in range(4):
        a(f"v_add_u32 v60, {2*kk}, v3")
        a("v_xor_b32 v60, v60, v9")
        a(f"v_lshl_add_u32 v{vXA+kk}, v60, 4, v2")
        a(f"v_add_u32 v{vXA+4+kk}, {2*SLOT}, v{vXA+kk}")
        a(f"v_add_u32 v{vXA+8+kk}, {4*SLOT}, v{vXA+kk}")
    a("v_bfe_u32 v2, v1, 2, 2")
    a("v_lshl_add_u32 v2, v3, 3, v2")
    a("v_lshlrev_b32 v2, 6, v2")
    a("v_bfe_u32 v9, v1, 4, 1")
    a("v_lshl_add_u32 v2, v9, 5, v2")
    a("v_and_b32 v9, 3, v1")
    a(f"v_lshl_add_u32 v{vWA}, v9, 3, v2")
    a(f"v_add_u32 v{vWA+1}, {2*SLOT}, v{vWA}")
    a(f"v_add_u32 v{vWA+2}, {4*SLOT}, v{vWA}")
    for i in range(48):
        a(f"v_mov_b32 v{acc+i}, 0")

    def reads(c, kk):
        s = c % 5
        st, so = s // 2, (s % 2) * SLOT
        bf = kk % 2
        a(f"ds_read_b128 {vr(vXf+4*bf,4)}, v{vXA+4*st+kk} offset:{so}")
        for b in range(3):
            for q in range(2):
                a(f"ds_read_b64_tr_b16 {vr(vWf+12*bf+4*b+2*q,2)}, v{vWA+st} offset:{so+16384+b*4096+kk*1024+q*256}")

    def mm(kk):
        bf = kk % 2
        X, W = vXf + 4 * bf, vWf + 12 * bf
        mfma(a, acc, W, X)
        mfma(a, acc + 16, W + 4, X)
        mfma(a, acc + 32, X, W + 8)

    vm = [28, 21, 21, 21, 21, 14, 7, 0]
    for c in range(8):
        a(f"s_waitcnt vmcnt({vm[c]})")
        a("s_barrier")
        reads(c, 0)
        reads(c, 1)
        if 1 <= c <= 3:
            dma(c + 4)
        a("s_waitcnt lgkmcnt(7)")
        mm(0)
        reads(c, 2)
        a("s_waitcnt lgkmcnt(7)")
        mm(1)
        reads(c, 3)
        a("s_waitcnt lgkmcnt(7)")
        mm(2)
        a("s_waitcnt lgkmcnt(0)")
        mm(3)
    a("s_lshl_b32 s52, s15, 2")
    a("s_add_u32 s52, s52, s12")
    a("s_lshl_b32 s53, s16, 17")
    a("s_lshl_b32 s54, s52, 10")
    a("s_add_u32 s53, s53, s54")
    a("s_add_u32 s54, s53, 65536")
    a("s_lshl_b32 s55, s53, 1")
    a("s_add_u32 s56, s55, 131072")
    a(f"s_mov_b32 s57, {f32(0.25*LOG2E)}")
    a("v_lshlrev_b32 v2, 4, v1")
    a("v_bfe_u32 v9, v1, 4, 1")
    a("v_lshlrev_b32 v9, 17, v9")
    a("v_lshl_add_u32 v9, v3, 8, v9")
    a("v_and_b32 v60, 15, v1")
    a("v_lshl_add_u32 v9, v60, 4, v9")
    for i in range(16):
        a(f"v_mul_f32 v{acc+i}, s57, v{acc+i}")
    for i in range(24):
        a(f"v_cvt_pk_bf16_f32 v{28+i}, v{acc+2*i}, v{acc+2*i+1}")
    a(f"buffer_store_dwordx4 {vr(28,4)}, v2, {sr(28)}, s53 offen")
    a(f"buffer_store_dwordx4 {vr(32,4)}, v2, {sr(28)}, s54 offen")
    a(f"buffer_store_dwordx4 {vr(36,4)}, v2, {sr(32)}, s55 offen")
    a(f"buffer_store_dwordx4 {vr(40,4)}, v2, {sr(32)}, s56 offen")
    a(f"buffer_store_dwordx4 {vr(44,4)}, v9, {sr(32)}, s55 offen offset:1024")
    a(f"buffer_store_dwordx4 {vr(48,4)}, v9, {sr(32)}, s55 offen offset:1536")
    a("s_endpgm")

    a("K1_LN:")
    raw, gwr, X, GW, SUM, DOT = 4, 36, 40, 104, 112, 120
    a("s_lshl_b32 s48, s15, 4")
    a("s_add_u32 s48, s48, s16")
    a("s_lshl_b32 s49, s48, 13")
    a("v_lshlrev_b32 v2, 4, v1")
    a("s_add_u32 s50, s49, 4096")
    for r in range(8):
        a(f"buffer_load_dwordx4 {vr(raw+4*r,4)}, v2, {sr(20)}, s{49 + r//4} offen offset:{(r%4)*1024}")
    a(f"buffer_load_dwordx4 {vr(gwr,4)}, v2, {sr(44)}, 0 offen")
    a("s_mov_b32 s51, 0xffff0000")
    work = []
    w = work.append
    w("s_waitcnt vmcnt(0)")
    for i in range(4):
        w(f"v_lshlrev_b32 v{GW+2*i}, 16, v{gwr+i}")
        w(f"v_and_b32 v{GW+2*i+1}, s51, v{gwr+i}")
    for r in range(8):
        for i in range(4):
            w(f"v_lshlrev_b32 v{X+8*r+2*i}, 16, v{raw+4*r+i}")
            w(f"v_and_b32 v{X+8*r+2*i+1}, s51, v{raw+4*r+i}")
    for r in range(8):
        w(f"v_add_f32 v{SUM+r}, v{X+8*r}, v{X+8*r+1}")
        w(f"v_mul_f32 v{DOT+r}, v{X+8*r}, v{GW}")
    for e in range(1, 8):
        for r in range(8):
            if e >= 2:
                w(f"v_add_f32 v{SUM+r}, v{SUM+r}, v{X+8*r+e}")
            w(f"v_fmac_f32 v{DOT+r}, v{X+8*r+e}, v{GW+e}")

    def reduce(regs):
        for mod in ("row_shr:1 row_mask:0xf", "row_shr:2 row_mask:0xf", "row_shr:4 row_mask:0xf", "row_shr:8 row_mask:0xf",
                    "row_bcast:15 row_mask:0xa", "row_bcast:31 row_mask:0xc"):
            for r in regs:
                w(f"v_add_f32_dpp v{r}, v{r}, v{r} {mod} bank_mask:0xf")

    reduce(list(range(SUM, SUM + 16)))
    for r in range(8):
        w(f"v_mul_f32 v{SUM+r}, {f32(1/512)}, v{SUM+r}")
    for r in range(8):
        w(f"v_readlane_b32 s{60+r}, v{SUM+r}, 63")
    for r in range(8):
        w(f"v_mul_f32 v{DOT+r}, {f32(-LOG2E)}, v{DOT+r}")
    for r in range(8):
        w(f"v_exp_f32 v{DOT+r}, v{DOT+r}")
    for r in range(8):
        w(f"v_add_f32 v{DOT+r}, 1.0, v{DOT+r}")
    for r in range(8):
        w(f"v_rcp_f32 v{DOT+r}, v{DOT+r}")
    for e in range(8):
        for r in range(8):
            w(f"v_subrev_f32 v{X+8*r+e}, s{60+r}, v{X+8*r+e}")
    for r in range(8):
        w(f"v_mul_f32 v{SUM+r}, v{X+8*r}, v{X+8*r}")
    for e in range(1, 8):
        for r in range(8):
            w(f"v_fmac_f32 v{SUM+r}, v{X+8*r+e}, v{X+8*r+e}")
    reduce(list(range(SUM, SUM + 8)))
    w(f"v_mov_b32 v3, {f32(1e-5)}")
    w(f"s_mov_b32 s52, {f32(1/512)}")
    for r in range(8):
        w(f"v_fma_f32 v{SUM+r}, v{SUM+r}, s52, v3")
    for r in range(8):
        w(f"v_rsq_f32 v{SUM+r}, v{SUM+r}")
    w("s_nop 0")
    for r in range(8):
        w(f"v_readlane_b32 s{60+r}, v{SUM+r}, 63")
    w("v_lshlrev_b32 v3, 7, v1")
    for e in range(8):
        for r in range(8):
            w(f"v_mul_f32 v{X+8*r+e}, s{60+r}, v{X+8*r+e}")
        for p in range(4):
            w(f"v_cvt_pk_bf16_f32 v{raw+4*e+p}, v{X+16*p+e}, v{X+16*p+8+e}")
        w(f"buffer_store_dwordx4 {vr(raw+4*e,4)}, v3, {sr(36)}, s49 offen offset:{16*e}")
    n = len(work)
    per = n // 8
    for i, t in enumerate(work):
        if i % per == (1 if i < per else 0) and i // per < 8:
            a("s_barrier")
        a(t)
    a("s_lshl_b32 s52, s48, 5")
    a("v_mov_b32 v3, 0")
    a("s_mov_b32 exec_lo, 0")
    a("s_mov_b32 exec_hi, 0x80000000")
    a(f"buffer_store_dwordx4 {vr(DOT,4)}, v3, {sr(40)}, s52 offen")
    a(f"buffer_store_dwordx4 {vr(DOT+4,4)}, v3, {sr(40)}, s52 offen offset:16")
    a("K1_END:")
    a("s_endpgm")
    return dict(name=nm, vgpr=128, grid=256, block=320, lds=5 * SLOT)


def k2(a):
    nm = "k2_kernel"
    head(a, nm)
    Q, C, S, P, O, Kb, Vb = 4, 8, 24, 56, 64, 80, 88
    vL16, vLV, vK, vV = 2, 3, 104, 105
    a("s_cmp_ge_u32 s2, 256")
    a("s_cbranch_scc1 K2_END")
    a("s_load_dwordx2 s[10:11], s[0:1], 88")
    a("v_lshrrev_b32 v2, 6, v0")
    a("v_and_b32 v1, 63, v0")
    a("v_readfirstlane_b32 s12, v2")
    a("s_and_b32 s13, s2, 7")
    a("s_lshl_b32 s13, s13, 2")
    a("s_bfe_u32 s14, s2, 0x20003")
    a("s_add_u32 s13, s13, s14")
    a("s_lshr_b32 s14, s2, 5")
    a("s_lshl_b32 s14, s14, 3")
    a("s_add_u32 s14, s14, s12")
    a("s_lshl_b32 s15, s13, 16")
    a("s_lshl_b32 s16, s14, 10")
    a("s_add_u32 s15, s15, s16")
    a("s_lshl_b32 s16, s12, 14")
    a("s_lshl_b32 s17, s13, 17")
    a("s_add_u32 s17, s17, s16")
    a(f"v_lshlrev_b32 v{vL16}, 4, v1")
    a("s_waitcnt lgkmcnt(0)")
    srd(a, 20, 10, 2 * MB, WS_Q)
    srd(a, 24, 10, 4 * MB, WS_KV)
    srd(a, 28, 10, 2 * MB, WS_O)
    a(f"buffer_load_dwordx4 {vr(Q,4)}, v{vL16}, {sr(20)}, s15 offen")
    for g in range(4):
        a(f"s_add_u32 m0, s16, {g*4096}")
        a(f"s_add_u32 s18, s17, {g*4096}")
        for n in range(4):
            a(f"buffer_load_dwordx4 v{vL16}, {sr(24)}, s18 offen offset:{n*1024} lds")
    a("v_lshrrev_b32 v3, 5, v1")
    a("v_lshlrev_b32 v3, 8, v3")
    a("v_and_b32 v104, 15, v1")
    a("v_lshl_add_u32 v3, v104, 4, v3")
    a(f"v_add_u32 v{vLV}, 1024, v3")
    a(f"v_add_u32 v{vK}, s16, v{vL16}")
    a(f"v_add_u32 v{vV}, s16, v{vLV}")
    a("s_mov_b32 s32, 0x0000ffff")
    a("s_mov_b32 s33, 0x0000ffff")
    a("s_mov_b32 s34, 0")
    for i in range(16):
        a(f"v_mov_b32 v{Vb+i}, 0x3f803f80")
    for i in range(16):
        a(f"v_mov_b32 v{O+i}, 0")
    for i in range(4):
        a(f"v_mov_b32 v{P+4+i}, 0")

    def rdK(buf, off):
        a(f"ds_read_b128 {vr(Kb+4*buf,4)}, v{vK} offset:{off}")

    def rdV(buf, off):
        a("s_mov_b64 exec, s[32:33]")
        a(f"ds_read_b128 {vr(Vb+8*buf,4)}, v{vV} offset:{off}")
        a(f"ds_read_b128 {vr(Vb+8*buf+4,4)}, v{vV} offset:{off+512}")
        a("s_mov_b64 exec, -1")

    def setC(src):
        a(f"v_mov_b32 v{src+1}, v{src}")
        a(f"v_permlane32_swap_b32 v{src}, v{src+1}")
        a(f"v_max_f32 v{src}, v{src}, v{src+1}")
        a(f"v_sub_f32 v{C}, 0, v{src}")
        for i in range(1, 16):
            a(f"v_mov_b32 v{C+i}, v{C}")

    a("s_waitcnt vmcnt(15)")
    rdK(0, 0)
    a("s_waitcnt lgkmcnt(0)")
    mfma(a, S, Kb, Q, "0")
    a("s_waitcnt vmcnt(13)")
    rdK(1, 2048)
    rdV(0, 0)
    a(f"v_max3_f32 v{S}, v{S}, v{S+1}, v{S+2}")
    for i in range(3, 15, 2):
        a(f"v_max3_f32 v{S}, v{S}, v{S+i}, v{S+i+1}")
    a(f"v_max_f32 v{S}, v{S}, v{S+15}")
    setC(S)
    mfma(a, S, Kb, Q, C)
    a("s_add_u32 s19, s16, 16384")
    a("s_and_b32 s19, s19, 0x1ffff")

    def tile(i, first):
        b = i % 2
        Sc, Sn = S + 16 * b, S + 16 * (1 - b)
        e = lambda k: a(f"v_exp_f32 v{Sc+k}, v{Sc+k}")
        c = lambda k: a(f"v_cvt_pk_bf16_f32 v{P+k}, v{Sc+2*k}, v{Sc+2*k+1}")
        e(0); e(1)
        mfma(a, O, Vb + 8 * (1 - b) + 4, P + 4)
        for k in range(2, 8):
            e(k)
        a("s_waitcnt lgkmcnt(2)")
        mfma(a, Sn, Kb + 4 * (1 - b), Q, C)
        if i == 6:
            a(f"v_add_u32 v{vK}, s19, v{vL16}")
            if first:
                a("s_barrier")
        if first and i + 2 <= 7:
            a(f"s_waitcnt vmcnt({15 - 2*(i+2)})")
        rdK(b, ((i + 2) % 8) * 2048)
        for k in range(4):
            c(k)
        for k in range(8, 12):
            e(k)
        a("s_waitcnt lgkmcnt(1)")
        mfma(a, O, Vb + 8 * b, P)
        if i == 7:
            a(f"v_add_u32 v{vV}, s19, v{vLV}")
            a("s_add_u32 s19, s19, 16384")
            a("s_and_b32 s19, s19, 0x1ffff")
        if first and i == 5:
            a("s_waitcnt vmcnt(0)")
        rdV(1 - b, ((i + 1) % 8) * 2048)
        for k in range(12, 16):
            e(k)
        if i == 7:
            a("s_sub_u32 s35, s35, 1")
            a("s_cmp_lg_u32 s35, 0")
        for k in range(4, 8):
            c(k)

    a("s_mov_b32 s35, 8")
    for i in range(8):
        tile(i, True)
    a.raw(".p2align 6")
    a("K2_LOOP:")
    for i in range(8):
        tile(i, False)
    a("s_cbranch_scc1 K2_LOOP")
    a("s_nop 1")
    mfma(a, O, Vb + 8 + 4, P + 4)
    a("s_waitcnt lgkmcnt(0)")
    a(f"v_rcp_f32 v{S}, v{O+8}")
    a(f"v_max3_f32 v{S+1}, |v{O}|, |v{O+1}|, |v{O+2}|")
    a(f"v_max3_f32 v{S+1}, v{S+1}, |v{O+3}|, |v{O+4}|")
    a(f"v_max3_f32 v{S+1}, v{S+1}, |v{O+5}|, |v{O+6}|")
    a(f"v_max_f32 v{S+1}, v{S+1}, |v{O+7}|")
    a(f"v_mov_b32 v{S+2}, {f32(2.0**30)}")
    a(f"v_mov_b32 v{S+3}, {f32(2.0**120)}")
    a(f"v_cmp_nle_f32 vcc, v{O+8}, v{S+2}")
    a(f"v_cmp_nle_f32 s[36:37], v{S+1}, v{S+3}")
    a("s_or_b64 vcc, vcc, s[36:37]")
    a("s_cmp_lg_u32 s34, 0")
    a("s_cbranch_scc1 K2_OUT")
    a("s_cbranch_vccnz K2_SLOW")
    a("K2_OUT:")
    for i in range(8):
        a(f"v_mul_f32 v{O+i}, v{O+i}, v{S}")
    for i in range(4):
        a(f"v_cvt_pk_bf16_f32 v{P+i}, v{O+2*i}, v{O+2*i+1}")
    a(f"buffer_store_dwordx4 {vr(P,4)}, v{vL16}, {sr(28)}, s15 offen")
    a("K2_END:")
    a("s_endpgm")
    a("K2_SLOW:")
    a("s_mov_b32 s34, 1")
    a(f"v_mov_b32 v{vK}, v{vL16}")
    a(f"v_mov_b32 v{P}, 0xff800000")
    a("s_mov_b32 s35, 64")
    a("K2_SLOWL:")
    rdK(0, 0)
    a("s_waitcnt lgkmcnt(0)")
    mfma(a, S, Kb, Q, "0")
    a(f"v_add_u32 v{vK}, 2048, v{vK}")
    a("s_nop 15")
    for i in range(0, 16, 2):
        a(f"v_max3_f32 v{P}, v{P}, v{S+i}, v{S+i+1}")
    a("s_sub_u32 s35, s35, 1")
    a("s_cmp_lg_u32 s35, 0")
    a("s_cbranch_scc1 K2_SLOWL")
    setC(P)
    a(f"v_mov_b32 v{vK}, v{vL16}")
    a(f"v_mov_b32 v{vV}, v{vLV}")
    for i in range(16):
        a(f"v_mov_b32 v{O+i}, 0")
    for i in range(4):
        a(f"v_mov_b32 v{P+4+i}, 0")
    for i in range(8):
        a(f"v_mov_b32 v{Vb+8+i}, 0x3f803f80")
    rdK(0, 0)
    rdK(1, 2048)
    rdV(0, 0)
    a("s_waitcnt lgkmcnt(3)")
    mfma(a, S, Kb, Q, C)
    a("s_mov_b32 s19, 16384")
    a("s_mov_b32 s35, 8")
    a("s_nop 15")
    a("s_branch K2_LOOP")
    return dict(name=nm, vgpr=108, grid=256, block=512, lds=131072)


def gemm_wave(a, nsteps, P, srdT, srdD, sT, sD, sL, strideT, stepD, offD, t_is_A,
              vT0, vT1, vD, vR0, vR1, qoff, Tf, Df, acc):
    def dma(i):
        sl = (i % P) * 2048
        a(f"s_add_u32 m0, s{sL}, {sl}")
        a("s_nop 0")
        a(f"buffer_load_dwordx4 v{vT0}, {sr(srdT)}, s{sT} offen lds")
        a(f"s_add_u32 m0, s{sL}, {sl+1024}")
        a("s_nop 0")
        a(f"buffer_load_dwordx4 v{vT1}, {sr(srdT)}, s{sT} offen lds")
        a(f"s_add_u32 s{sT}, s{sT}, {16*strideT}")

    def ld(i):
        d = Df + 8 * (i % P)
        a(f"buffer_load_dwordx4 {vr(d,4)}, v{vD}, {sr(srdD)}, s{sD} offen")
        a(f"buffer_load_dwordx4 {vr(d+4,4)}, v{vD}, {sr(srdD)}, s{sD} offen offset:{offD}")
        a(f"s_add_u32 s{sD}, s{sD}, {stepD}")

    def rd(i):
        sl = (i % P) * 2048
        t = Tf + 8 * (i % 2)
        for b, vR in ((0, vR0), (1, vR1)):
            for q in range(2):
                a(f"ds_read_b64_tr_b16 {vr(t+4*b+2*q,2)}, v{vR} offset:{sl+q*qoff}")

    log = []
    def DMA(i):
        if i < nsteps:
            dma(i); log.extend([("T", i)] * 2)
    def LD(i):
        if i < nsteps:
            ld(i); log.extend([("D", i)] * 2)
    def wait_for(items):
        last = max(idx for idx, it in enumerate(log) if it in items)
        a(f"s_waitcnt vmcnt({len(log) - 1 - last})")

    DMA(0)
    for j in range(P):
        LD(j)
        if j + 1 < P:
            DMA(j + 1)
    for i in range(64):
        a(f"v_mov_b32 v{acc+i}, 0")
    wait_for([("T", 0)])
    rd(0)
    a("s_waitcnt lgkmcnt(0)")
    DMA(P)
    for i in range(nsteps):
        need = [("D", i)] + ([("T", i + 1)] if i + 1 < nsteps else [])
        wait_for(need)
        if i + 1 < nsteps:
            rd(i + 1)
        t, d = Tf + 8 * (i % 2), Df + 8 * (i % P)
        for x in range(2):
            for y in range(2):
                if t_is_A:
                    mfma(a, acc + 16 * (2 * x + y), t + 4 * x, d + 4 * y)
                else:
                    mfma(a, acc + 16 * (2 * x + y), d + 4 * x, t + 4 * y)
        LD(i + P)
        if i + 1 < nsteps:
            a("s_waitcnt lgkmcnt(0)")
        DMA(i + 1 + P)


def gemm_addrs(a, strideT, hmul, vT0, vT1, vR0, vR1, sL, t0, t1):
    a(f"v_lshrrev_b32 v{t0}, 3, v1")
    a(f"v_mul_u32_u24 v{t0}, {strideT}, v{t0}")
    a(f"v_bfe_u32 v{t1}, v1, 4, 1")
    a(f"v_lshlrev_b32 v{t1}, 2, v{t1}")
    a(f"v_xor_b32 v{t1}, v{t1}, v1")
    a(f"v_and_b32 v{t1}, 7, v{t1}")
    a(f"v_lshl_add_u32 v{vT0}, v{t1}, 4, v{t0}")
    a(f"v_add_u32 v{vT1}, {8*strideT}, v{vT0}")
    a(f"v_lshrrev_b32 v{t0}, 5, v1")
    a(f"v_mul_u32_u24 v{t0}, {hmul}, v{t0}")
    a(f"v_bfe_u32 v{t1}, v1, 2, 2")
    a(f"v_add_u32 v{t0}, v{t0}, v{t1}")
    a(f"v_lshlrev_b32 v{t0}, 7, v{t0}")
    a(f"v_bfe_u32 v{t1}, v1, 3, 1")
    a(f"v_lshl_add_u32 v{t0}, v{t1}, 6, v{t0}")
    a(f"v_bfe_u32 v{t1}, v1, 4, 1")
    a(f"v_lshl_add_u32 v{t0}, v{t1}, 5, v{t0}")
    a(f"v_and_b32 v{t1}, 3, v1")
    a(f"v_lshl_add_u32 v{t0}, v{t1}, 3, v{t0}")
    a(f"v_add_u32 v{vR0}, s{sL}, v{t0}")
    a(f"v_xor_b32 v{t0}, 64, v{t0}")
    a(f"v_add_u32 v{vR1}, s{sL}, v{t0}")


def k2b(a):
    nm = "k2b_kernel"
    head(a, nm)
    a("s_cmp_ge_u32 s2, 256")
    a("s_cbranch_scc1 K2B_END")
    a("s_and_b32 s13, s2, 7")
    a("s_lshr_b32 s14, s2, 6")
    a("s_lshl_b32 s14, s14, 3")
    a("s_add_u32 s13, s13, s14")
    a("s_bfe_u32 s14, s2, 0x30003")
    a("s_cmp_ge_u32 s13, 22")
    a("s_cbranch_scc1 K2B_END")
    a("s_load_dwordx4 s[4:7], s[0:1], 32")
    a("s_load_dwordx2 s[10:11], s[0:1], 88")
    a("v_lshrrev_b32 v2, 6, v0")
    a("v_and_b32 v1, 63, v0")
    a("v_readfirstlane_b32 s12, v2")
    vT0, vT1, vD, vR0, vR1 = 4, 5, 6, 7, 8
    Tf, Df, acc = 12, 28, 64
    a("s_lshl_b32 s15, s12, 13")
    a(f"s_mul_i32 s16, s12, {512*2752}")
    a("s_lshl_b32 s17, s13, 7")
    a("s_add_u32 s16, s16, s17")
    a("s_lshl_b32 s17, s12, 19")
    a("s_lshl_b32 s18, s14, 10")
    a("s_add_u32 s17, s17, s18")
    gemm_addrs(a, 2752, 8, vT0, vT1, vR0, vR1, 15, 9, 10)
    a("v_lshrrev_b32 v9, 5, v1")
    a("v_and_b32 v10, 31, v1")
    a("v_lshlrev_b32 v10, 4, v10")
    a(f"v_lshl_add_u32 v{vD}, v9, 13, v10")
    a("s_waitcnt lgkmcnt(0)")
    srd(a, 20, 4, 2048 * 2752)
    srd(a, 24, 10, 2 * MB, WS_HT)
    srd(a, 28, 10, SZ_U, WS_U)
    srd(a, 32, 6, 2752)
    gemm_wave(a, 32, 4, 20, 24, 16, 17, 15, 2752, 16384, 512, True, vT0, vT1, vD, vR0, vR1, 512, Tf, Df, acc)
    a("s_and_b32 s36, s12, 1")
    a("s_lshr_b32 s37, s12, 1")
    a("s_lshl_b32 s38, s13, 7")
    a("s_lshl_b32 s39, s36, 6")
    a("s_add_u32 s38, s38, s39")
    a("v_lshlrev_b32 v10, 3, v9")
    for g in range(4):
        a(f"buffer_load_dwordx2 {vr(Df+2*g,2)}, v10, {sr(32)}, s38 offen offset:{16*g}")
    a("v_lshlrev_b32 v2, 4, v1")
    a("v_add_u32 v3, s15, v2")
    a("s_xor_b32 s40, s15, 8192")
    a("v_add_u32 v11, s40, v2")
    a("s_nop 7")
    a("s_cmp_eq_u32 s36, 0")
    a("s_cbranch_scc1 K2B_X0")
    for i in range(32):
        a(f"v_swap_b32 v{acc+i}, v{acc+32+i}")
    a("K2B_X0:")
    for i in range(8):
        a(f"ds_write_b128 v3, {vr(acc+32+4*i,4)} offset:{1024*i}")
    a("s_waitcnt lgkmcnt(0)")
    a("s_barrier")
    for i in range(8):
        a(f"ds_read_b128 {vr(acc+32+4*i,4)}, v11 offset:{1024*i}")
    a("s_waitcnt lgkmcnt(0)")
    for i in range(32):
        a(f"v_add_f32 v{acc+i}, v{acc+i}, v{acc+32+i}")
    a("s_barrier")
    a("s_xor_b32 s40, s15, 16384")
    a("v_add_u32 v11, s40, v2")
    a("s_cmp_eq_u32 s37, 0")
    a("s_cbranch_scc1 K2B_Y0")
    for i in range(16):
        a(f"v_swap_b32 v{acc+i}, v{acc+16+i}")
    a("K2B_Y0:")
    for i in range(4):
        a(f"ds_write_b128 v3, {vr(acc+16+4*i,4)} offset:{1024*i}")
    a("s_waitcnt lgkmcnt(0)")
    a("s_barrier")
    for i in range(4):
        a(f"ds_read_b128 {vr(acc+16+4*i,4)}, v11 offset:{1024*i}")
    a("s_waitcnt vmcnt(0) lgkmcnt(0)")
    for i in range(16):
        a(f"v_add_f32 v{acc+i}, v{acc+i}, v{acc+16+i}")
    a("s_mov_b32 s41, 0xffff0000")
    for i in range(8):
        a(f"v_lshlrev_b32 v{acc+16+2*i}, 16, v{Df+i}")
        a(f"v_and_b32 v{acc+16+2*i+1}, s41, v{Df+i}")
    for i in range(16):
        a(f"v_add_f32 v{acc+i}, v{acc+i}, v{acc+16+i}")
    gelu(a, acc, acc + 16, acc + 32, 16, 42)
    for i in range(8):
        a(f"v_cvt_pk_bf16_f32 v{Tf+i}, v{acc+2*i}, v{acc+2*i+1}")
    a("s_lshl_b32 s38, s13, 16")
    a("s_lshl_b32 s39, s36, 15")
    a("s_add_u32 s38, s38, s39")
    a("s_add_u32 s38, s38, s18")
    a("s_lshl_b32 s39, s37, 9")
    a("s_add_u32 s38, s38, s39")
    a("s_add_u32 s39, s38, 16384")
    a(f"buffer_store_dwordx4 {vr(Tf,4)}, v{vD}, {sr(28)}, s38 offen")
    a(f"buffer_store_dwordx4 {vr(Tf+4,4)}, v{vD}, {sr(28)}, s39 offen")
    a("K2B_END:")
    a("s_endpgm")
    return dict(name=nm, vgpr=128, grid=256, block=256, lds=32768)


def gelu(a, X, T, U, n, s0):
    k = math.sqrt(2 / math.pi)
    a(f"s_mov_b32 s{s0}, {f32(-2*k*LOG2E*0.044715)}")
    a(f"v_mov_b32 v{U}, {f32(-2*k*LOG2E)}")
    for i in range(n):
        a(f"v_mul_f32 v{T+i}, v{X+i}, v{X+i}")
    for i in range(n):
        a(f"v_fma_f32 v{T+i}, v{T+i}, s{s0}, v{U}")
    for i in range(n):
        a(f"v_mul_f32 v{T+i}, v{T+i}, v{X+i}")
    for i in range(n):
        a(f"v_exp_f32 v{T+i}, v{T+i}")
    for i in range(n):
        a(f"v_add_f32 v{T+i}, 1.0, v{T+i}")
    for i in range(n):
        a(f"v_rcp_f32 v{T+i}, v{T+i}")
    for i in range(n):
        a(f"v_mul_f32 v{X+i}, v{X+i}, v{T+i}")


def k3(a):
    nm = "k3_kernel"
    head(a, nm)
    REG = 17408
    a("s_cmp_ge_u32 s2, 256")
    a("s_cbranch_scc1 K3_END")
    a("s_load_dwordx2 s[4:5], s[0:1], 16")
    a("s_load_dwordx4 s[44:47], s[0:1], 48")
    a("s_load_dwordx2 s[8:9], s[0:1], 72")
    a("s_load_dwordx2 s[10:11], s[0:1], 88")
    a("v_lshrrev_b32 v2, 6, v0")
    a("v_and_b32 v1, 63, v0")
    a("v_readfirstlane_b32 s12, v2")
    a("s_and_b32 s13, s2, 7")
    a("s_lshl_b32 s13, s13, 2")
    a("s_lshr_b32 s14, s2, 6")
    a("s_add_u32 s13, s13, s14")
    a("s_bfe_u32 s14, s2, 0x30003")
    vT0, vT1, vD, vR0, vR1 = 4, 5, 6, 7, 8
    Tf, Df, acc = 12, 28, 92
    a(f"s_mul_i32 s15, s12, {REG}")
    a("s_waitcnt lgkmcnt(0)")
    srd(a, 20, 4, 512 * 1024)
    srd(a, 24, 10, 2 * MB, WS_O)
    srd(a, 28, 44, 1376 * 4096)
    srd(a, 32, 10, SZ_U, WS_U)
    srd(a, 36, 8, 2 * MB)
    srd(a, 40, 10, 8192, WS_G)
    srd(a, 48, 46, 4096)
    a("s_cmp_ge_u32 s12, 2")
    a("s_cbranch_scc1 K3_MLP")
    a("s_lshl_b32 s16, s12, 18")
    a("s_lshl_b32 s17, s14, 7")
    a("s_add_u32 s16, s16, s17")
    a("s_lshl_b32 s17, s12, 20")
    a("s_lshl_b32 s18, s13, 11")
    a("s_add_u32 s17, s17, s18")
    gemm_addrs(a, 1024, 4, vT0, vT1, vR0, vR1, 15, 9, 10)
    a(f"v_lshlrev_b32 v{vD}, 4, v1")
    gemm_wave(a, 16, 8, 20, 24, 16, 17, 15, 1024, 65536, 1024, True, vT0, vT1, vD, vR0, vR1, 1024, Tf, Df, acc)
    a("s_branch K3_RED")
    a("K3_MLP:")
    a("s_sub_u32 s19, s12, 2")
    a(f"s_mul_i32 s16, s19, {15*16*4096}")
    a("s_lshl_b32 s17, s13, 7")
    a("s_add_u32 s16, s16, s17")
    a(f"s_mul_i32 s17, s19, {15*16384}")
    a("s_lshl_b32 s18, s14, 10")
    a("s_add_u32 s17, s17, s18")
    gemm_addrs(a, 4096, 4, vT0, vT1, vR0, vR1, 15, 9, 10)
    a("v_lshrrev_b32 v9, 5, v1")
    a("v_and_b32 v10, 31, v1")
    a("v_lshlrev_b32 v10, 4, v10")
    a(f"v_lshl_add_u32 v{vD}, v9, 13, v10")
    gemm_wave(a, 15, 8, 28, 32, 16, 17, 15, 4096, 16384, 512, False, vT0, vT1, vD, vR0, vR1, 1024, Tf, Df, acc)
    a("K3_RED:")
    a("v_lshrrev_b32 v2, 3, v0")
    a("s_lshl_b32 s16, s13, 8")
    a("s_lshl_b32 s17, s13, 7")
    a("v_lshlrev_b32 v3, 2, v2")
    a("v_lshlrev_b32 v4, 1, v2")
    a(f"buffer_load_dword v10, v3, {sr(40)}, s16 offen")
    a(f"buffer_load_ushort v11, v4, {sr(48)}, s17 offen")
    a("v_and_b32 v3, 31, v1")
    a("v_mul_u32_u24 v3, 272, v3")
    a("v_lshrrev_b32 v4, 5, v1")
    a("v_lshl_add_u32 v3, v4, 4, v3")
    a("v_add_u32 v3, s15, v3")
    a("s_nop 7")
    for x in range(2):
        for y in range(2):
            for g in range(4):
                a(f"ds_write_b128 v3, {vr(acc+16*(2*x+y)+4*g,4)} offset:{y*32*272 + x*128 + g*32}")
    a("v_mul_u32_u24 v3, 272, v2")
    a("v_and_b32 v4, 7, v0")
    a("v_lshl_add_u32 v3, v4, 5, v3")
    a(f"v_add_u32 v5, {3*REG}, v3")
    a(f"v_add_u32 v6, {6*REG}, v3")
    a("s_waitcnt lgkmcnt(0)")
    a("s_barrier")
    R = 28
    for w in range(8):
        base = [3, 5, 6][w // 3]
        off = (w % 3) * REG
        a(f"ds_read_b128 {vr(R+8*w,4)}, v{base} offset:{off}")
        if w == 7:
            a("s_waitcnt lgkmcnt(8)")
        a(f"ds_read_b128 {vr(R+8*w+4,4)}, v{base} offset:{off+16}")
    a("v_lshlrev_b32 v2, 10, v2")
    a("v_lshl_add_u32 v2, v4, 4, v2")
    a("s_lshl_b32 s16, s13, 16")
    a("s_lshl_b32 s17, s14, 7")
    a("s_add_u32 s16, s16, s17")
    a("s_waitcnt vmcnt(0) lgkmcnt(0)")
    a("v_lshlrev_b32 v11, 16, v11")
    a("v_sub_f32 v12, 1.0, v10")
    for i in range(8):
        a(f"v_add_f32 v{R+i}, v{R+i}, v{R+8+i}")
        a(f"v_add_f32 v{R+16+i}, v{R+16+i}, v{R+24+i}")
        a(f"v_add_f32 v{R+32+i}, v{R+32+i}, v{R+40+i}")
        a(f"v_add_f32 v{R+48+i}, v{R+48+i}, v{R+56+i}")
    for i in range(8):
        a(f"v_add_f32 v{R+16+i}, v{R+16+i}, v{R+32+i}")
        a(f"v_add_f32 v{R+48+i}, v{R+48+i}, v11")
    for i in range(8):
        a(f"v_add_f32 v{R+16+i}, v{R+16+i}, v{R+48+i}")
        a(f"v_mul_f32 v{R+i}, v{R+i}, v10")
    for i in range(8):
        a(f"v_fmac_f32 v{R+i}, v{R+16+i}, v12")
    for i in range(4):
        a(f"v_cvt_pk_bf16_f32 v{16+i}, v{R+2*i}, v{R+2*i+1}")
    a(f"buffer_store_dwordx4 {vr(16,4)}, v2, {sr(36)}, s16 offen")
    a("K3_END:")
    a("s_endpgm")
    return dict(name=nm, vgpr=156, grid=256, block=512, lds=8 * REG)


def build(path, kernels, order=None, verbose=False):
    ref = open("cdna_kernels/" + NAME + ".s.ref").read().split("\n")
    hdr = [l for l in ref if l.startswith(";") and "@launch" not in l and "Override launch" not in l and "grid=ceil" not in l]
    body, infos = "", []
    for k in kernels:
        a = Asm()
        info = k(a)
        n = a.fix(verbose)
        body += a.text()
        infos.append(info)
    by = {i["name"]: i for i in infos}
    order = order or [i["name"] for i in infos]
    s = "\n".join(hdr) + "\n"
    for o in order:
        i = by[o]
        s += f"; @launch kernel={i['name']} grid=({i['grid']},1,1) block=({i['block']},1,1) lds={i['lds']}\n"
    s += '.amdgcn_target "amdgcn-amd-amdhsa--gfx950"\n.text\n'
    s += body
    s += '.section .rodata,"a"\n'
    for i in infos:
        acc = (i["vgpr"] + 3) // 4 * 4
        s += f""".p2align 6
.amdhsa_kernel {i['name']}
  .amdhsa_next_free_vgpr {i['vgpr']}
  .amdhsa_next_free_sgpr 80
  .amdhsa_accum_offset {acc}
  .amdhsa_group_segment_fixed_size 0
  .amdhsa_kernarg_size 96
  .amdhsa_user_sgpr_count 2
  .amdhsa_user_sgpr_kernarg_segment_ptr 1
  .amdhsa_system_sgpr_workgroup_id_x 1
.end_amdhsa_kernel
"""
    open(path, "w").write(s)


if __name__ == "__main__":
    out = sys.argv[1] if len(sys.argv) > 1 else "cdna_kernels/" + NAME + ".s"
    build(out, [k1, k2, k2b, k3], verbose="-v" in sys.argv)
```

```python
from gen import *
def kempty(a):
    head(a, "ke_kernel")
    a("s_endpgm")
    return dict(name="ke_kernel", vgpr=8, grid=256, block=64, lds=0)
ks=[k1,k2,k2b,k3,kempty]
base=["k1_kernel","k2_kernel","k2b_kernel","k3_kernel"]
build("vA.s", ks, base+["ke_kernel"])
build("vB.s", ks, base+["ke_kernel"]*4)
build("vC.s", ks[:4], ["k1_kernel","k2_kernel","k2_kernel","k2b_kernel","k3_kernel"])
build("vD.s", ks[:4], ["k1_kernel","k1_kernel","k2_kernel","k2b_kernel","k3_kernel"])
build("vE.s", ks[:4], ["k1_kernel","k2_kernel","k2b_kernel","k3_kernel","k3_kernel"])
build("vF.s", ks[:4], ["k1_kernel","k2_kernel","k2b_kernel","k2b_kernel","k3_kernel"])
```

```python
from mbgen import HEAD
def desc(name, vgprs):
    acc = (vgprs + 3)//4*4
    return f"""
.p2align 6
.amdhsa_kernel {name}
  .amdhsa_next_free_vgpr {vgprs}
  .amdhsa_next_free_sgpr 40
  .amdhsa_accum_offset {acc}
  .amdhsa_group_segment_fixed_size 0
  .amdhsa_kernarg_size 16
  .amdhsa_user_sgpr_count 2
  .amdhsa_user_sgpr_kernarg_segment_ptr 1
  .amdhsa_system_sgpr_workgroup_id_x 1
.end_amdhsa_kernel
"""
def meta(names):
    s = """
.amdgpu_metadata
---
amdhsa.version: [1, 2]
amdhsa.kernels:
"""
    for n in names:
        s += f"""  - .name: {n}
    .symbol: {n}.kd
    .kernarg_segment_size: 16
    .kernarg_segment_align: 8
    .group_segment_fixed_size: 0
    .private_segment_fixed_size: 0
    .wavefront_size: 64
    .sgpr_count: 40
    .vgpr_count: 64
    .max_flat_workgroup_size: 1024
    .args:
      - {{.name: kernargs, .size: 16, .offset: 0, .value_kind: by_value}}
"""
    s += "...\n.end_amdgpu_metadata\n"
    return s
def kern(name, mode, R, share, iters, width=4, lanepat="lin", flags=""):
    s = f"""
.globl {name}
.p2align 8
.type {name},@function
{name}:
    s_load_dwordx4 s[4:7], s[0:1], 0
    v_lshrrev_b32 v1, 6, v0
    v_and_b32 v2, 63, v0
    s_nop 0
    v_readfirstlane_b32 s22, v1
    s_waitcnt lgkmcnt(0)
    s_mov_b32 s8, s4
    s_mov_b32 s9, s5
    s_mov_b32 s10, 0x100000
    s_mov_b32 s11, 0x00020000
    s_mov_b32 s12, s6
    s_mov_b32 s13, s7
    s_mov_b32 s14, 0x8000000
    s_mov_b32 s15, 0x00020000
    ; region index = xcd + 8*((wg>>3)/share)
    s_and_b32 s23, s2, 7
    s_lshr_b32 s24, s2, {3 + (share.bit_length()-1)}
    s_lshl_b32 s24, s24, 3
    s_add_u32 s23, s23, s24
    s_mul_i32 s23, s23, {R}
    s_lshl_b32 s24, s22, 13      ; running offset in region
    s_lshl_b32 s26, s22, 13
"""
    if lanepat == "lin":
        s += f"    v_lshlrev_b32 v3, {2 if width==1 else (3 if width==2 else 4)}, v2\n"
    elif lanepat == "seg64":
        s += "    v_lshrrev_b32 v3, 2, v2\n    v_lshlrev_b32 v3, 7, v3\n    v_and_b32 v4, 3, v2\n    v_lshl_add_u32 v3, v4, 4, v3\n"
    elif lanepat == "seg32":
        s += "    v_lshrrev_b32 v3, 1, v2\n    v_lshlrev_b32 v3, 7, v3\n    v_and_b32 v4, 1, v2\n    v_lshl_add_u32 v3, v4, 4, v3\n"
    s += f"""
    s_barrier
    s_mov_b32 s20, {iters}
    s_memtime s[16:17]
    s_waitcnt lgkmcnt(0)
L_{name}:
    s_add_u32 s25, s23, s24
    s_add_u32 s27, s25, 4096
"""
    sfx = {1:"dword",2:"dwordx2",4:"dwordx4"}[width]
    for i in range(8):
        so = "s25" if i < 4 else "s27"
        if mode == "reg":
            s += f"    buffer_load_{sfx} v[{8+4*i}:{8+4*i+width-1}], v3, s[12:15], {so} offen offset:{(i%4)*1024} {flags}\n" if width > 1 else f"    buffer_load_{sfx} v{8+4*i}, v3, s[12:15], {so} offen offset:{(i%4)*1024} {flags}\n"
        else:
            if i % 4 == 0:
                s += f"    s_add_u32 m0, s26, {i*1024}\n    s_nop 0\n"
            s += f"    buffer_load_{sfx} v3, s[12:15], {so} offen offset:{(i%4)*1024} {flags} lds\n"
    s += f"""
    s_add_u32 s24, s24, s28
    s_and_b32 s24, s24, {R-1}
    s_waitcnt vmcnt(8)
    s_sub_u32 s20, s20, 1
    s_cmp_lg_u32 s20, 0
    s_cbranch_scc1 L_{name}
    s_waitcnt vmcnt(0)
    s_memtime s[18:19]
    s_waitcnt lgkmcnt(0)
    s_sub_u32 s16, s18, s16
    s_lshl_b32 s21, s2, 4
    v_add_u32 v1, s21, v1
    v_lshlrev_b32 v1, 2, v1
    v_mov_b32 v4, s16
    v_cmp_eq_u32 vcc, 0, v2
    s_and_saveexec_b64 s[18:19], vcc
    buffer_store_dword v4, v1, s[8:11], 0 offen
    s_waitcnt vmcnt(0)
    s_endpgm
"""
    return s
K = []
for nw in (4, 8, 16):
    for nm, args in [("reg128k", ("reg", 131072*2, 8)), ("lds128k", ("lds", 131072*2, 8)), ("regL1", ("reg", 16384, 8)), ("ldsL1", ("lds", 16384, 8)),
                     ("regpriv", ("reg", 131072, 1)), ("ldspriv", ("lds", 131072, 1))]:
        K.append((f"{nm}_w{nw}", args, {}, nw))
    K.append((f"reg64seg_w{nw}", ("reg", 131072*2, 8), dict(lanepat="seg64"), nw))
    K.append((f"reg32seg_w{nw}", ("reg", 131072*2, 8), dict(lanepat="seg32"), nw))
    K.append((f"regx2_w{nw}", ("reg", 131072*2, 8), dict(width=2), nw))
    K.append((f"regsc1_w{nw}", ("reg", 131072*2, 8), dict(flags="sc1"), nw))
    K.append((f"regnt_w{nw}", ("reg", 131072*2, 8), dict(flags="nt"), nw))
    K.append((f"ldsnt_w{nw}", ("lds", 131072*2, 8), dict(flags="nt"), nw))
s = HEAD
IT = 200
for n, a, kw, nw in K:
    t = kern(n, *a, IT, **kw)
    t = t.replace("    s_barrier\n", f"    s_mov_b32 s28, {nw*8192}\n    s_barrier\n")
    s += t
s += '\n.section .rodata,"a"\n'
for k in K: s += desc(k[0], 64)
s += meta([k[0] for k in K])
open("mb4.s","w").write(s)
import json
json.dump([(k[0], k[3], IT, k[2].get("width",4)) for k in K], open("mb4.json","w"))
```

```python
import sys

HEAD = """.amdgcn_target "amdgcn-amd-amdhsa--gfx950"
.text
"""

def kernel(name, body, iters, vgprs=128, pre=""):
    s = f"""
.globl {name}
.p2align 8
.type {name},@function
{name}:
    s_load_dwordx2 s[4:5], s[0:1], 0
    s_waitcnt lgkmcnt(0)
    s_mov_b32 s8, s4
    s_mov_b32 s9, s5
    s_mov_b32 s10, 0x100000
    s_mov_b32 s11, 0x00020000
"""
    for i in range(1, vgprs):
        s += f"    v_mov_b32 v{i}, 0.5\n"
    s += pre
    s += f"""
    s_barrier
    s_mov_b32 s20, {iters}
    s_memtime s[12:13]
    s_waitcnt lgkmcnt(0)
.p2align 6
L_{name}:
{body}
    s_sub_u32 s20, s20, 1
    s_cmp_lg_u32 s20, 0
    s_cbranch_scc1 L_{name}
    s_nop 15
    s_nop 15
    s_memtime s[14:15]
    s_waitcnt lgkmcnt(0)
    s_sub_u32 s16, s14, s12
    v_lshrrev_b32 v1, 6, v0
    v_and_b32 v2, 63, v0
    s_lshl_b32 s17, s2, 4
    v_add_u32 v1, s17, v1
    v_lshlrev_b32 v1, 2, v1
    v_mov_b32 v3, s16
    v_cmp_eq_u32 vcc, 0, v2
    s_and_saveexec_b64 s[18:19], vcc
    buffer_store_dword v3, v1, s[8:11], 0 offen
    s_waitcnt vmcnt(0)
    s_endpgm
"""
    return s

def desc(name, vgprs):
    acc = (vgprs + 3)//4*4
    return f"""
.p2align 6
.amdhsa_kernel {name}
  .amdhsa_next_free_vgpr {vgprs}
  .amdhsa_next_free_sgpr 40
  .amdhsa_accum_offset {acc}
  .amdhsa_group_segment_fixed_size 0
  .amdhsa_kernarg_size 8
  .amdhsa_user_sgpr_count 2
  .amdhsa_user_sgpr_kernarg_segment_ptr 1
  .amdhsa_system_sgpr_workgroup_id_x 1
.end_amdhsa_kernel
"""

def meta(names, vgprs):
    s = """
.amdgpu_metadata
---
amdhsa.version: [1, 2]
amdhsa.kernels:
"""
    for n in names:
        s += f"""  - .name: {n}
    .symbol: {n}.kd
    .kernarg_segment_size: 8
    .kernarg_segment_align: 8
    .group_segment_fixed_size: 0
    .private_segment_fixed_size: 0
    .wavefront_size: 64
    .sgpr_count: 40
    .vgpr_count: {vgprs[n]}
    .max_flat_workgroup_size: 1024
    .args:
      - {{.name: kernargs, .size: 8, .offset: 0, .value_kind: by_value}}
"""
    s += """...
.end_amdgpu_metadata
"""
    return s

def build(kerns, path):
    s = HEAD
    for k in kerns:
        s += kernel(*k)
    s += '\n.section .rodata,"a"\n'
    for k in kerns:
        s += desc(k[0], k[3])
    s += meta([k[0] for k in kerns], {k[0]: k[3] for k in kerns})
    open(path, "w").write(s)
```

```python
from mbgen import HEAD
from mb4 import desc, meta
def kern(name, nw, nlines, stride, pf=True):
    NB = nw*nlines*128
    s = f"""
.globl {name}
.p2align 8
.type {name},@function
{name}:
    s_memtime s[16:17]
    s_load_dwordx4 s[4:7], s[0:1], 0
    v_lshrrev_b32 v1, 6, v0
    v_and_b32 v2, 63, v0
    s_nop 0
    v_readfirstlane_b32 s22, v1
    v_lshlrev_b32 v3, 4, v2
    s_waitcnt lgkmcnt(0)
    s_mov_b32 s8, s4
    s_mov_b32 s9, s5
    s_mov_b32 s10, 0x100000
    s_mov_b32 s11, 0x00020000
    s_mov_b32 s12, s6
    s_mov_b32 s13, s7
    s_mov_b32 s14, 0x8000000
    s_mov_b32 s15, 0x00020000
    s_mul_i32 s23, s2, {NB}
    s_mul_i32 s24, s22, {nlines*128}
    s_add_u32 s23, s23, s24
    s_add_u32 s26, s6, s23
    s_addc_u32 s27, s7, 0
    s_memtime s[32:33]
"""
    if pf:
        for i in range(nlines*128//stride):
            s += f"    s_load_dword s{28+(i%2)}, s[26:27], {i*stride}\n"
    s += """    s_memtime s[34:35]
    s_waitcnt lgkmcnt(0)
    s_memtime s[36:37]
    s_barrier
    s_memtime s[38:39]
"""
    for i in range(nlines//8):
        s += f"    buffer_load_dwordx4 v[{8+4*(i%8)}:{11+4*(i%8)}], v3, s[12:15], s23 offen\n    s_add_u32 s23, s23, 1024\n"
    s += f"""
    s_waitcnt vmcnt(0)
    s_memtime s[18:19]
    s_waitcnt lgkmcnt(0)
    s_sub_u32 s18, s18, s38
    s_sub_u32 s34, s34, s32
    s_sub_u32 s36, s36, s32
    s_lshl_b32 s21, s2, 4
    v_add_u32 v1, s21, v1
    v_lshlrev_b32 v1, 4, v1
    v_mov_b32 v4, s34
    v_mov_b32 v5, s36
    v_mov_b32 v6, s18
    v_mov_b32 v7, 1
    v_cmp_eq_u32 vcc, 0, v2
    s_and_saveexec_b64 s[18:19], vcc
    buffer_store_dwordx4 v[4:7], v1, s[8:11], 0 offen
    s_waitcnt vmcnt(0)
    s_endpgm
"""
    return s
K = [("n1_192",1,192,128,False),("w1_192",1,192,128),("w1_192h",1,192,64),("w4_48",4,48,128),("w4_48h",4,48,64),("w8_24",8,24,128),("n4_48",4,48,128,False)]
s = HEAD
for k in K: s += kern(*k)
s += '\n.section .rodata,"a"\n'
for k in K: s += desc(k[0], 64)
s += meta([k[0] for k in K])
open("mb10.s","w").write(s)
import json
json.dump([(k[0],k[1]) for k in K], open("mb10.json","w"))
```

```python
import sys, math, struct
from asmlib import Asm

NAME = "gated_mix__softmax_full_mha__mixer_token_mlp__prompt"
MB = 1 << 20
WS_Q, WS_KV, WS_HT, WS_U, WS_O, WS_G, WS_F, WS_Y = 0, 2 * MB, 6 * MB, 8 * MB, 10 * MB, 12 * MB, 12 * MB + 65536, 13 * MB
SZ_U = 172 * 8192
SZ_F = 32768
PROF = False
OPT = set()
WS_P = 16 * MB
LOG2E = math.log2(math.e)


def f32(x):
    return "0x%08x" % struct.unpack("<I", struct.pack("<f", x))[0]


def srd(a, d, base, size, add=0):
    if add:
        a(f"s_add_u32 s{d}, s{base}, {hex(add)}")
        a(f"s_addc_u32 s{d+1}, s{base+1}, 0")
    else:
        a(f"s_mov_b32 s{d}, s{base}")
        a(f"s_mov_b32 s{d+1}, s{base+1}")
    a(f"s_mov_b32 s{d+2}, {hex(size)}")
    a(f"s_mov_b32 s{d+3}, 0x20000")


def vr(b, n):
    return f"v[{b}:{b+n-1}]"


def sr(b, n=4):
    return f"s[{b}:{b+n-1}]"


def mfma(a, D, A, B, C=None):
    c = vr(D, 16) if C is None else (C if isinstance(C, str) else vr(C, 16))
    a(f"v_mfma_f32_32x32x16_bf16 {vr(D,16)}, {vr(A,4)}, {vr(B,4)}, {c}")


def head(a, name):
    a.raw(f".p2align 8")
    a.raw(f".type {name},@function")
    a(f"{name}:")
    if PROF:
        a("s_memrealtime s[70:71]")
        a("s_memtime s[72:73]")


def stamp(a, i):
    if PROF:
        a(f"s_memtime s[{72+2*i}:{73+2*i}]")


def endprof(a, kidx, n):
    if not PROF:
        return
    a("s_waitcnt vmcnt(0)")
    a(f"s_memtime s[{72+2*(n+1)}:{73+2*(n+1)}]")
    a("s_memrealtime s[100:101]")
    a("s_mov_b64 exec, -1")
    srd(a, 4, 10, MB, WS_P + kidx * MB)
    a("s_lshl_b32 s8, s2, 4")
    a("s_add_u32 s8, s8, s12")
    a("s_lshl_b32 s8, s8, 7")
    a("s_waitcnt lgkmcnt(0)")
    a("v_mov_b32 v2, 0")
    a("v_mov_b32 v3, s70")
    a("buffer_store_dword v3, v2, s[4:7], s8 offen")
    a("v_mov_b32 v3, s100")
    a("buffer_store_dword v3, v2, s[4:7], s8 offen offset:4")
    for i in range(1, n + 2):
        a(f"s_sub_u32 s9, s{72+2*i}, s72")
        a("v_mov_b32 v3, s9")
        a(f"buffer_store_dword v3, v2, s[4:7], s8 offen offset:{4+4*i}")


def k1(a):
    nm = "k1_kernel"
    head(a, nm)
    SLOT, NS = 28672, 4
    ST = " sc1" if "k1sc1" in OPT else (" nt" if "k1nt" in OPT else "")
    a("s_cmp_ge_u32 s2, 256")
    a("s_cbranch_scc1 K1_END")
    a("s_load_dwordx4 s[4:7], s[0:1], 0")
    a("s_load_dwordx2 s[8:9], s[0:1], 64")
    a("s_load_dwordx2 s[10:11], s[0:1], 88")
    a("v_lshrrev_b32 v2, 6, v0")
    a("v_and_b32 v1, 63, v0")
    a("v_readfirstlane_b32 s12, v2")
    a("s_and_b32 s13, s2, 7")
    a("s_lshr_b32 s14, s2, 3")
    a("s_lshr_b32 s15, s13, 1")
    a("s_lshl_b32 s15, s15, 2")
    a("s_lshr_b32 s16, s14, 3")
    a("s_add_u32 s15, s15, s16")
    a("s_lshl_b32 s58, s16, 1")
    a("s_and_b32 s16, s13, 1")
    a("s_lshl_b32 s16, s16, 3")
    a("s_and_b32 s17, s14, 7")
    a("s_add_u32 s16, s16, s17")
    a("s_add_u32 s58, s58, s17")
    a("s_cmp_eq_u32 s12, 8")
    a("s_cbranch_scc1 K1_LN")
    a("s_cmp_ge_u32 s12, 4")
    a("s_cbranch_scc1 K1_LOAD")

    vXA, vWA = 10, 18
    vXf, vWf = 112, 124
    acc = 64
    a("s_lshl_b32 s50, s12, 12")
    a("v_and_b32 v2, 31, v1")
    a("v_lshrrev_b32 v3, 5, v1")
    a("v_bfe_u32 v9, v1, 1, 3")
    a("v_lshlrev_b32 v2, 7, v2")
    a("v_add_u32 v2, s50, v2")
    for kk in range(4):
        a(f"v_add_u32 v60, {2*kk}, v3")
        a("v_xor_b32 v60, v60, v9")
        a(f"v_lshl_add_u32 v{vXA+kk}, v60, 4, v2")
        a(f"v_add_u32 v{vXA+4+kk}, {2*SLOT}, v{vXA+kk}")
    a("v_bfe_u32 v2, v1, 2, 2")
    a("v_lshl_add_u32 v2, v3, 3, v2")
    a("v_lshlrev_b32 v2, 6, v2")
    a("v_bfe_u32 v9, v1, 4, 1")
    a("v_lshl_add_u32 v2, v9, 5, v2")
    a("v_and_b32 v9, 3, v1")
    a(f"v_lshl_add_u32 v{vWA}, v9, 3, v2")
    a(f"v_add_u32 v{vWA+1}, {2*SLOT}, v{vWA}")
    a("s_waitcnt lgkmcnt(0)")
    srd(a, 28, 10, 2 * MB, WS_Q)
    srd(a, 32, 10, 4 * MB, WS_KV)

    def reads(t):
        c, kk = t // 4, t % 4
        s = c % NS
        st, so = s // 2, (s % 2) * SLOT
        bf = t % 3
        r = [f"ds_read_b128 {vr(vXf+4*bf,4)}, v{vXA+4*st+kk} offset:{so}"]
        for b in range(3):
            for q in range(2):
                r.append(f"ds_read_b64_tr_b16 {vr(vWf+12*bf+4*b+2*q,2)}, v{vWA+st} offset:{so+16384+b*4096+kk*1024+q*256}")
        return r

    stamp(a, 1)
    a("s_barrier")
    stamp(a, 2)
    for t in range(2):
        for x in reads(t):
            a(x)
    for t in range(32):
        if t % 4 == 2 and t + 2 < 32:
            a("s_barrier")
            stamp(a, 3 + t // 4)
        a(f"s_waitcnt lgkmcnt({7 if t + 1 < 32 else 0})")
        rr = reads(t + 2) if t + 2 < 32 else []
        bf = t % 3
        X, W = vXf + 4 * bf, vWf + 12 * bf
        for j, (D, A, B) in enumerate(((acc, W, X), (acc + 16, W + 4, X), (acc + 32, X, W + 8))):
            mfma(a, D, A, B, "0" if t == 0 else None)
            for x in rr[(0, 3, 5)[j]:(3, 5, 7)[j]]:
                a(x)
    stamp(a, 10)
    stamp(a, 11)
    a("s_lshl_b32 s52, s15, 2")
    a("s_add_u32 s52, s52, s12")
    a("s_lshl_b32 s53, s16, 17")
    a("s_lshl_b32 s54, s52, 10")
    a("s_add_u32 s53, s53, s54")
    a("s_add_u32 s54, s53, 65536")
    a("s_lshl_b32 s55, s53, 1")
    a("s_add_u32 s56, s55, 131072")
    a(f"s_mov_b32 s57, {f32(0.25*LOG2E)}")
    a("v_lshlrev_b32 v2, 4, v1")
    a("v_bfe_u32 v9, v1, 4, 1")
    a("v_lshlrev_b32 v9, 17, v9")
    a("v_lshl_add_u32 v9, v3, 8, v9")
    a("v_and_b32 v60, 15, v1")
    a("v_lshl_add_u32 v9, v60, 4, v9")
    for i in range(16):
        a(f"v_mul_f32 v{acc+i}, s57, v{acc+i}")
    stores = [(28, "v2", 28, 53, 0), (32, "v2", 28, 54, 0), (36, "v2", 32, 55, 0), (40, "v2", 32, 56, 0),
              (44, "v9", 32, 55, 1024), (48, "v9", 32, 55, 1536)]
    for j in (2, 3, 4, 5, 0, 1):
        r, ad, sd, so, off = stores[j]
        for i in range(4):
            a(f"v_cvt_pk_bf16_f32 v{r+i}, v{acc+8*j+2*i}, v{acc+8*j+2*i+1}")
        a(f"buffer_store_dwordx4 {vr(r,4)}, {ad}, {sr(sd)}, s{so} offen offset:{off}{ST}")
    endprof(a, 0, 11)
    a("s_endpgm")

    a("K1_LOAD:")
    vXo, vWo = 4, 12
    a("s_sub_u32 s59, s12, 4")
    a("v_lshrrev_b32 v2, 3, v1")
    a("v_and_b32 v3, 7, v1")
    a("v_lshrrev_b32 v20, 4, v1")
    a("v_xor_b32 v3, v3, v20")
    a("v_lshlrev_b32 v2, 10, v2")
    a(f"v_lshl_add_u32 v{vXo}, v3, 4, v2")
    a(f"v_xor_b32 v3, 4, v3")
    a(f"v_lshl_add_u32 v{vXo+1}, v3, 4, v2")
    a(f"v_add_u32 v{vXo+1}, 8192, v{vXo+1}")
    for n in range(2, 4):
        a(f"v_add_u32 v{vXo+n}, 16384, v{vXo+n-2}")
    a("v_lshrrev_b32 v2, 2, v1")
    a("v_mul_u32_u24 v2, 3072, v2")
    a("v_and_b32 v3, 3, v1")
    a(f"v_lshl_add_u32 v{vWo}, v3, 4, v2")
    a("s_lshl_b32 s48, s15, 17")
    a("s_lshl_b32 s49, s59, 15")
    a("s_add_u32 s48, s48, s49")
    a("s_mul_i32 s49, s59, 49152")
    a("s_lshl_b32 s50, s16, 6")
    a("s_add_u32 s49, s49, s50")
    a("s_lshl_b32 s50, s59, 12")
    a("s_lshl_b32 s51, s59, 10")
    a("s_add_u32 s51, s51, 16384")
    a("s_waitcnt lgkmcnt(0)")
    srd(a, 20, 4, 2 * MB)
    srd(a, 24, 6, 512 * 3072)

    def dma(c):
        sl = (c % NS) * SLOT
        for t in ["s_and_b32 s58, s58, 7", "s_lshl_b32 s52, s58, 7", "s_add_u32 s52, s52, s48",
                  "s_mul_i32 s53, s58, 196608", "s_add_u32 s53, s53, s49", "s_add_u32 s58, s58, 1"]:
            a(t)
        for r in range(1):
            for b in range(3):
                a(f"s_add_u32 m0, s51, {sl + r*1024 + b*3072}")
                a("s_nop 0")
                a(f"buffer_load_dwordx4 v{vWo+r}, {sr(24)}, s53 offen offset:{b*1024} lds")
        for n in range(4):
            a(f"s_add_u32 m0, s50, {sl + n*1024}")
            a("s_nop 0")
            a(f"buffer_load_dwordx4 v{vXo+n}, {sr(20)}, s52 offen lds")

    stamp(a, 1)
    dma(0)
    for c in range(8):
        if c + 1 < 8:
            dma(c + 1)
            a("s_waitcnt vmcnt(7)")
        else:
            a("s_waitcnt vmcnt(0)")
        stamp(a, 2 + c)
        a("s_barrier")
    endprof(a, 0, 9)
    a("s_endpgm")

    a("K1_LN:")
    raw, gwr, X, GW, SUM, DOT = 4, 36, 40, 104, 112, 120
    a("s_lshl_b32 s48, s15, 4")
    a("s_add_u32 s48, s48, s16")
    a("s_lshl_b32 s49, s48, 13")
    a("v_lshlrev_b32 v2, 4, v1")
    a("s_add_u32 s50, s49, 4096")
    a("s_waitcnt lgkmcnt(0)")
    srd(a, 20, 4, 2 * MB)
    srd(a, 44, 8, 1024)
    for r in range(8):
        a(f"buffer_load_dwordx4 {vr(raw+4*r,4)}, v2, {sr(20)}, s{49 + r//4} offen offset:{(r%4)*1024}")
    a(f"buffer_load_dwordx4 {vr(gwr,4)}, v2, {sr(44)}, 0 offen")
    srd(a, 36, 10, 2 * MB, WS_HT)
    srd(a, 40, 10, 8192, WS_G)
    srd(a, 24, 10, SZ_F, WS_F)
    a("s_mov_b32 s51, 0xffff0000")
    work = []
    w = work.append
    w("s_waitcnt vmcnt(0)")
    for i in range(4):
        w(f"v_lshlrev_b32 v{GW+2*i}, 16, v{gwr+i}")
        w(f"v_and_b32 v{GW+2*i+1}, s51, v{gwr+i}")
    for r in range(8):
        for i in range(4):
            w(f"v_lshlrev_b32 v{X+8*r+2*i}, 16, v{raw+4*r+i}")
            w(f"v_and_b32 v{X+8*r+2*i+1}, s51, v{raw+4*r+i}")
    w("v_mov_b32 v4, 0"); w("v_mov_b32 v5, 0"); w("v_mov_b32 v6, 0"); w("v_mov_b32 v7, 0")
    w("v_lshlrev_b32 v3, 15, v1")
    w("s_lshl_b32 s52, s2, 7")
    w(f"buffer_store_dwordx4 v[4:7], v3, {sr(24)}, s52 offen")
    for r in range(8):
        w(f"v_add_f32 v{SUM+r}, v{X+8*r}, v{X+8*r+1}")
        w(f"v_mul_f32 v{DOT+r}, v{X+8*r}, v{GW}")
    for e in range(1, 8):
        for r in range(8):
            if e >= 2:
                w(f"v_add_f32 v{SUM+r}, v{SUM+r}, v{X+8*r+e}")
            w(f"v_fmac_f32 v{DOT+r}, v{X+8*r+e}, v{GW+e}")

    def reduce(regs):
        for mod in ("row_shr:1 row_mask:0xf", "row_shr:2 row_mask:0xf", "row_shr:4 row_mask:0xf", "row_shr:8 row_mask:0xf",
                    "row_bcast:15 row_mask:0xa", "row_bcast:31 row_mask:0xc"):
            for r in regs:
                w(f"v_add_f32_dpp v{r}, v{r}, v{r} {mod} bank_mask:0xf")

    reduce(list(range(SUM, SUM + 8)))
    for r in range(8):
        w(f"v_mul_f32 v{SUM+r}, {f32(1/512)}, v{SUM+r}")
    for r in range(8):
        w(f"v_readlane_b32 s{60+r}, v{SUM+r}, 63")
    for e in range(8):
        for r in range(8):
            w(f"v_subrev_f32 v{X+8*r+e}, s{60+r}, v{X+8*r+e}")
    for r in range(8):
        w(f"v_mul_f32 v{SUM+r}, v{X+8*r}, v{X+8*r}")
    for e in range(1, 8):
        for r in range(8):
            w(f"v_fmac_f32 v{SUM+r}, v{X+8*r+e}, v{X+8*r+e}")
    reduce(list(range(SUM, SUM + 8)))
    w(f"v_mov_b32 v3, {f32(1e-5)}")
    w(f"s_mov_b32 s52, {f32(1/512)}")
    for r in range(8):
        w(f"v_fma_f32 v{SUM+r}, v{SUM+r}, s52, v3")
    for r in range(8):
        w(f"v_rsq_f32 v{SUM+r}, v{SUM+r}")
    w("s_nop 0")
    for r in range(8):
        w(f"v_readlane_b32 s{60+r}, v{SUM+r}, 63")
    w("v_lshlrev_b32 v3, 7, v1")
    for e in range(8):
        for r in range(8):
            w(f"v_mul_f32 v{X+8*r+e}, s{60+r}, v{X+8*r+e}")
        for p in range(4):
            w(f"v_cvt_pk_bf16_f32 v{raw+4*e+p}, v{X+16*p+e}, v{X+16*p+8+e}")
        w(f"buffer_store_dwordx4 {vr(raw+4*e,4)}, v3, {sr(36)}, s49 offen offset:{16*e}{ST}")
    nmain = len(work)
    reduce(list(range(DOT, DOT + 8)))
    for r in range(8):
        w(f"v_mul_f32 v{DOT+r}, {f32(-LOG2E)}, v{DOT+r}")
    for r in range(8):
        w(f"v_exp_f32 v{DOT+r}, v{DOT+r}")
    for r in range(8):
        w(f"v_add_f32 v{DOT+r}, 1.0, v{DOT+r}")
    for r in range(8):
        w(f"v_rcp_f32 v{DOT+r}, v{DOT+r}")
    per = 64
    nb = 0
    for i, t in enumerate(work):
        if i % per == 0 and nb < 8:
            a("s_barrier")
            nb += 1
        a(t)
    assert nb == 8
    a("s_lshl_b32 s52, s48, 5")
    a("v_mov_b32 v3, 0")
    a("s_mov_b32 exec_lo, 0")
    a("s_mov_b32 exec_hi, 0x80000000")
    a(f"buffer_store_dwordx4 {vr(DOT,4)}, v3, {sr(40)}, s52 offen")
    a(f"buffer_store_dwordx4 {vr(DOT+4,4)}, v3, {sr(40)}, s52 offen offset:16")
    endprof(a, 0, 0)
    a("K1_END:")
    a("s_endpgm")
    return dict(name=nm, vgpr=160, grid=256, block=576, lds=NS * SLOT)


class Gemm:
    def __init__(s, a, nsteps, P, srdT, srdD, sT, sD, sL, strideT, stepD, t_is_A, vT0, vT1, vD0, vD1, vR0, vR1, qoff,
                 Tf, Df, acc, dflags="", sW=None):
        s.__dict__.update(locals())
        s.log = []

    def DMA(s, i):
        if i >= s.nsteps:
            return
        a = s.a
        sl = (i % s.P) * 2048
        a(f"s_add_u32 m0, s{s.sL}, {sl}")
        a("s_nop 0")
        a(f"buffer_load_dwordx4 v{s.vT0}, {sr(s.srdT)}, s{s.sT} offen lds")
        a(f"s_add_u32 m0, s{s.sL}, {sl+1024}")
        a("s_nop 0")
        a(f"buffer_load_dwordx4 v{s.vT1}, {sr(s.srdT)}, s{s.sT} offen lds")
        s.advT()
        s.log.extend([("T", i)] * 2)

    def advT(s):
        a = s.a
        a(f"s_add_u32 s{s.sT}, s{s.sT}, {16*s.strideT}")
        a(f"s_cmp_eq_u32 s{s.sT}, s{s.sW+1}")
        a(f"s_cselect_b32 s{s.sT}, s{s.sW}, s{s.sT}")

    def advD(s):
        a = s.a
        a(f"s_add_u32 s{s.sD}, s{s.sD}, {s.stepD}")
        a(f"s_cmp_eq_u32 s{s.sD}, s{s.sW+3}")
        a(f"s_cselect_b32 s{s.sD}, s{s.sW+2}, s{s.sD}")

    def setup(s, sRot):
        a = s.a
        a(f"s_mov_b32 s{s.sW}, s{s.sT}")
        a(f"s_add_u32 s{s.sW+1}, s{s.sT}, {16*s.strideT*s.nsteps}")
        a(f"s_mov_b32 s{s.sW+2}, s{s.sD}")
        a(f"s_add_u32 s{s.sW+3}, s{s.sD}, {s.stepD*s.nsteps}")
        a(f"s_mul_i32 s{s.sW+4}, s{sRot}, {16*s.strideT}")
        a(f"s_add_u32 s{s.sT}, s{s.sT}, s{s.sW+4}")
        a(f"s_mul_i32 s{s.sW+4}, s{sRot}, {s.stepD}")
        a(f"s_add_u32 s{s.sD}, s{s.sD}, s{s.sW+4}")

    def LD1(s, i, half):
        if i >= s.nsteps:
            return
        a = s.a
        d = s.Df + 8 * (i % (s.P + 1)) + 4 * half
        a(f"buffer_load_dwordx4 {vr(d,4)}, v{(s.vD0, s.vD1)[half]}, {sr(s.srdD)}, s{s.sD} offen{s.dflags}")
        if half:
            s.advD()
        s.log.append(("D", i))

    def DMA1(s, i, half):
        if i >= s.nsteps:
            return
        a = s.a
        sl = (i % s.P) * 2048 + 1024 * half
        a(f"s_add_u32 m0, s{s.sL}, {sl}")
        a("s_nop 0")
        a(f"buffer_load_dwordx4 v{(s.vT0, s.vT1)[half]}, {sr(s.srdT)}, s{s.sT} offen lds")
        if half:
            s.advT()
        s.log.append(("T", i))

    def rd(s, i):
        sl = (i % s.P) * 2048
        t = s.Tf + 8 * (i % 2)
        for b, vR in ((0, s.vR0), (1, s.vR1)):
            for q in range(2):
                s.a(f"ds_read_b64_tr_b16 {vr(t+4*b+2*q,2)}, v{vR} offset:{sl+q*s.qoff}")

    def wait_for(s, items):
        last = max(idx for idx, it in enumerate(s.log) if it in items)
        s.a(f"s_waitcnt vmcnt({len(s.log) - 1 - last})")

    def pro_T(s):
        for j in range(s.P):
            s.DMA(j)

    def pro_D(s):
        for j in range(s.P):
            s.LD1(j, 0)
            s.LD1(j, 1)

    def main(s, st0):
        a = s.a
        s.wait_for([("T", 0)])
        s.rd(0)
        a("s_waitcnt lgkmcnt(0)")
        s.DMA(s.P)
        n = s.nsteps
        for i in range(n):
            need = [("D", i)] + ([("T", i + 1)] if i + 1 < n else [])
            s.wait_for(need)
            if i == n // 2:
                stamp(a, st0)
            t, d = s.Tf + 8 * (i % 2), s.Df + 8 * (i % (s.P + 1))
            for k in range(4):
                x, y = k // 2, k % 2
                C = "0" if i == 0 else None
                if s.t_is_A:
                    mfma(a, s.acc + 16 * k, t + 4 * x, d + 4 * y, C)
                else:
                    mfma(a, s.acc + 16 * k, d + 4 * x, t + 4 * y, C)
                if k == 0:
                    if i + 1 < n:
                        s.rd(i + 1)
                    s.LD1(i + s.P, 0)
                elif k == 1:
                    s.LD1(i + s.P, 1)
                elif k == 2:
                    if i + 1 < n:
                        a("s_waitcnt lgkmcnt(0)")
                    s.DMA1(i + 1 + s.P, 0)
                else:
                    s.DMA1(i + 1 + s.P, 1)


def gemm_src(a, strideT, vT0, vT1, t0, t1):
    a(f"v_lshrrev_b32 v{t0}, 3, v1")
    a(f"v_mul_u32_u24 v{t0}, {strideT}, v{t0}")
    a(f"v_bfe_u32 v{t1}, v1, 4, 1")
    a(f"v_lshlrev_b32 v{t1}, 2, v{t1}")
    a(f"v_xor_b32 v{t1}, v{t1}, v1")
    a(f"v_and_b32 v{t1}, 7, v{t1}")
    a(f"v_lshl_add_u32 v{vT0}, v{t1}, 4, v{t0}")
    a(f"v_add_u32 v{vT1}, {8*strideT}, v{vT0}")


def gemm_rd(a, hmul, vR0, vR1, sL, sSwap, t0, t1):
    a(f"v_lshrrev_b32 v{t0}, 5, v1")
    a(f"v_mul_u32_u24 v{t0}, {hmul}, v{t0}")
    a(f"v_bfe_u32 v{t1}, v1, 2, 2")
    a(f"v_add_u32 v{t0}, v{t0}, v{t1}")
    a(f"v_lshlrev_b32 v{t0}, 7, v{t0}")
    a(f"v_bfe_u32 v{t1}, v1, 3, 1")
    a(f"v_lshl_add_u32 v{t0}, v{t1}, 6, v{t0}")
    a(f"v_bfe_u32 v{t1}, v1, 4, 1")
    a(f"v_lshl_add_u32 v{t0}, v{t1}, 5, v{t0}")
    a(f"v_and_b32 v{t1}, 3, v1")
    a(f"v_lshl_add_u32 v{t0}, v{t1}, 3, v{t0}")
    if sSwap is not None:
        a(f"v_xor_b32 v{t0}, s{sSwap}, v{t0}")
    a(f"v_add_u32 v{vR0}, s{sL}, v{t0}")
    a(f"v_xor_b32 v{t0}, 64, v{t0}")
    a(f"v_add_u32 v{vR1}, s{sL}, v{t0}")


def gelu(a, X, T, U, n, s0):
    k = math.sqrt(2 / math.pi)
    a(f"s_mov_b32 s{s0}, {f32(-2*k*LOG2E*0.044715)}")
    a(f"v_mov_b32 v{U}, {f32(-2*k*LOG2E)}")
    for i in range(n):
        a(f"v_mul_f32 v{T+i}, v{X+i}, v{X+i}")
    for i in range(n):
        a(f"v_fma_f32 v{T+i}, v{T+i}, s{s0}, v{U}")
    for i in range(n):
        a(f"v_mul_f32 v{T+i}, v{T+i}, v{X+i}")
    for i in range(n):
        a(f"v_exp_f32 v{T+i}, v{T+i}")
    for i in range(n):
        a(f"v_add_f32 v{T+i}, 1.0, v{T+i}")
    for i in range(n):
        a(f"v_rcp_f32 v{T+i}, v{T+i}")
    for i in range(n):
        a(f"v_mul_f32 v{X+i}, v{X+i}, v{T+i}")


def lds_spin(a, lab, vaddr, off, want, vt, cnt, sleep=1):
    a(f"s_mov_b32 s{cnt}, 0x100000")
    a(f"{lab}:")
    a(f"ds_read_b32 v{vt}, v{vaddr} offset:{off}")
    a("s_waitcnt lgkmcnt(0)")
    a(f"v_cmp_ne_u32 vcc, {want}, v{vt}")
    a(f"s_sub_u32 s{cnt}, s{cnt}, 1")
    a(f"s_cbranch_scc1 {lab}_X")
    a(f"s_cbranch_vccz {lab}_X")
    a(f"s_sleep {sleep}")
    a(f"s_branch {lab}")
    a(f"{lab}_X:")


def mreduce(a, tag, acc, sL, fl, vA, vB, vT, R, cnt):
    a(f"v_lshlrev_b32 v{vA}, 4, v1")
    a(f"v_add_u32 v{vA}, s{sL}, v{vA}")
    a(f"v_mov_b32 v{vB}, s{sL}")
    a(f"v_mov_b32 v{vT+1}, 1")
    a("s_nop 7")
    wr, rdb = {1: 0, 2: 1, 3: 3}, {1: 1, 2: 3, 3: 0}
    for r in (1, 2, 3):
        if wr[r]:
            a(f"v_xor_b32 v{vT+2}, {8192*wr[r]}, v{vA}")
        for i in range(4):
            a(f"ds_write_b128 v{vT+2 if wr[r] else vA}, {vr(acc+16*r+4*i,4)} offset:{1024*i}")
        a(f"v_xor_b32 v{vT+3}, {8192*r}, v{vB}")
        if r > 1:
            for i in range(16):
                a(f"v_add_f32 v{acc+i}, v{acc+i}, v{R+i}")
        a("s_waitcnt lgkmcnt(0)")
        a(f"ds_write_b32 v{vB}, v{vT+1} offset:{6144+fl+4*(r-1)}")
        lds_spin(a, f"{tag}_R{r}", vT + 3, 6144 + fl + 4 * (r - 1), 1, vT, cnt)
        if rdb[r]:
            a(f"v_xor_b32 v{vT+2}, {8192*rdb[r]}, v{vA}")
        for i in range(4):
            a(f"ds_read_b128 {vr(R+4*i,4)}, v{vT+2 if rdb[r] else vA} offset:{1024*i}")
        a("s_waitcnt lgkmcnt(0)")
    for i in range(16):
        a(f"v_add_f32 v{acc+i}, v{acc+i}, v{R+i}")


def k2(a):
    nm = "k2_kernel"
    head(a, nm)
    Q, C, S, P, O, Kb, Vb = 4, 8, 24, 56, 64, 80, 88
    vL16, vLV, vK, vV, vOne = 2, 3, 104, 105, 106
    KVF = 131072 + 6144 + 64
    a("s_cmp_ge_u32 s2, 256")
    a("s_cbranch_scc1 K2_END")
    a("s_load_dwordx2 s[10:11], s[0:1], 88")
    a("s_load_dwordx8 s[40:47], s[0:1], 32")
    a("s_load_dwordx2 s[48:49], s[0:1], 16")
    a("v_lshrrev_b32 v2, 6, v0")
    a("v_and_b32 v1, 63, v0")
    a("v_readfirstlane_b32 s12, v2")
    a("s_and_b32 s13, s2, 7")
    a("s_lshl_b32 s13, s13, 2")
    a("s_bfe_u32 s14, s2, 0x20003")
    a("s_add_u32 s13, s13, s14")
    a("s_lshr_b32 s14, s2, 5")
    a("s_mov_b32 s16, 0")
    a("s_lshl_b32 s17, s13, 17")
    a(f"v_lshlrev_b32 v{vL16}, 4, v1")
    a("s_cmp_ge_u32 s12, 8")
    a("s_cbranch_scc1 K2_MLP")
    a("s_lshl_b32 s14, s14, 3")
    a("s_add_u32 s14, s14, s12")
    a("s_lshl_b32 s15, s13, 16")
    a("s_lshl_b32 s18, s14, 10")
    a("s_add_u32 s15, s15, s18")
    a("s_lshl_b32 s18, s12, 11")
    a("s_mov_b32 m0, s18")
    a("s_add_u32 s18, s18, s17")
    a("s_waitcnt lgkmcnt(0)")
    srd(a, 20, 10, 2 * MB, WS_Q)
    srd(a, 24, 10, 4 * MB, WS_KV)
    a(f"buffer_load_dwordx4 v{vL16}, {sr(24)}, s18 offen lds")
    a(f"buffer_load_dwordx4 {vr(Q,4)}, v{vL16}, {sr(20)}, s15 offen")
    a(f"buffer_load_dwordx4 v{vL16}, {sr(24)}, s18 offen offset:1024 lds")
    srd(a, 28, 10, 2 * MB, WS_O)
    a("v_lshrrev_b32 v3, 5, v1")
    a("v_lshlrev_b32 v3, 8, v3")
    a("v_and_b32 v104, 15, v1")
    a("v_lshl_add_u32 v3, v104, 4, v3")
    a(f"v_add_u32 v{vLV}, 1024, v3")
    a(f"v_add_u32 v{vK}, s16, v{vL16}")
    a(f"v_add_u32 v{vV}, s16, v{vLV}")
    a("s_mov_b32 s32, 0x0000ffff")
    a("s_mov_b32 s33, 0x0000ffff")
    a("s_mov_b32 s34, 0")
    a("s_setprio 2")
    a(f"v_and_b32 v{vOne}, 27, v1")
    a(f"v_cmp_eq_u32 vcc, 16, v{vOne}")
    a(f"v_mov_b32 v{vOne}, 0x3f803f80")
    a(f"v_cndmask_b32 v{vOne}, 0, v{vOne}, vcc")
    for i in range(16):
        a(f"v_mov_b32 v{Vb+i}, v{vOne}")
    for i in range(16):
        a(f"v_mov_b32 v{O+i}, 0")
    for i in range(4):
        a(f"v_mov_b32 v{P+4+i}, 0")

    def rdK(buf, off):
        a(f"ds_read_b128 {vr(Kb+4*buf,4)}, v{vK} offset:{off}")

    def rdV(buf, off):
        a("s_mov_b64 exec, s[32:33]")
        a(f"ds_read_b128 {vr(Vb+8*buf,4)}, v{vV} offset:{off}")
        a(f"ds_read_b128 {vr(Vb+8*buf+4,4)}, v{vV} offset:{off+512}")
        a("s_mov_b64 exec, -1")

    def setC(src):
        a(f"v_mov_b32 v{src+1}, v{src}")
        a(f"v_permlane32_swap_b32 v{src}, v{src+1}")
        a(f"v_max_f32 v{src}, v{src}, v{src+1}")
        a(f"v_sub_f32 v{C}, 0, v{src}")
        for i in range(1, 16):
            a(f"v_mov_b32 v{C+i}, v{C}")

    a("v_and_b32 v107, 3, v1")
    a("v_lshlrev_b32 v107, 2, v107")
    a(f"v_add_u32 v107, {KVF}, v107")
    stamp(a, 1)
    a("s_waitcnt vmcnt(0)")
    a("s_barrier")
    stamp(a, 2)
    rdK(0, 0)
    rdK(1, 2048)
    rdV(0, 0)
    a("s_waitcnt lgkmcnt(3)")
    mfma(a, S, Kb, Q, "0")
    a(f"v_max3_f32 v{S}, v{S}, v{S+1}, v{S+2}")
    for i in range(3, 15, 2):
        a(f"v_max3_f32 v{S}, v{S}, v{S+i}, v{S+i+1}")
    a(f"v_max_f32 v{S}, v{S}, v{S+15}")
    setC(S)
    mfma(a, S, Kb, Q, C)
    a("s_add_u32 s19, s16, 16384")
    a("s_and_b32 s19, s19, 0x1ffff")
    a("s_mov_b32 s35, 8")

    def tile(i, first):
        b = i % 2
        Sc, Sn = S + 16 * b, S + 16 * (1 - b)
        e = lambda k: a(f"v_exp_f32 v{Sc+k}, v{Sc+k}")
        c = lambda k: a(f"v_cvt_pk_bf16_f32 v{P+k}, v{Sc+2*k}, v{Sc+2*k+1}")
        e(0); e(1)
        mfma(a, O, Vb + 8 * (1 - b) + 4, P + 4)
        for k in range(2, 8):
            e(k)
        a("s_waitcnt lgkmcnt(2)")
        mfma(a, Sn, Kb + 4 * (1 - b), Q, C)
        if i == 6:
            a(f"v_add_u32 v{vK}, s19, v{vL16}")
            if first:
                lds_spin(a, "K2_KVW", 107, 0, 1, 108, 36, 4)
        rdK(b, ((i + 2) % 8) * 2048)
        for k in range(4):
            c(k)
        for k in range(8, 12):
            e(k)
        a("s_waitcnt lgkmcnt(1)")
        mfma(a, O, Vb + 8 * b, P)
        if i == 7:
            a(f"v_add_u32 v{vV}, s19, v{vLV}")
            a("s_add_u32 s19, s19, 16384")
            a("s_and_b32 s19, s19, 0x1ffff")
        rdV(1 - b, ((i + 1) % 8) * 2048)
        for k in range(12, 16):
            e(k)
        if i == 7:
            a("s_sub_u32 s35, s35, 1")
            a("s_cmp_lg_u32 s35, 0")
        for k in range(4, 8):
            c(k)

    stamp(a, 3)
    for i in range(8):
        tile(i, True)
    stamp(a, 4)
    a.raw(".p2align 6")
    a("K2_LOOP:")
    a("s_cmp_eq_u32 s35, 3")
    a("s_cbranch_scc0 K2_P1")
    a("s_setprio 1")
    a("K2_P1:")
    a("s_cmp_eq_u32 s35, 1")
    a("s_cbranch_scc0 K2_P2")
    a("s_setprio 0")
    a("K2_P2:")
    for i in range(8):
        tile(i, False)
    a("s_cbranch_scc1 K2_LOOP")
    stamp(a, 5)
    a("s_nop 1")
    mfma(a, O, Vb + 8 + 4, P + 4)
    a("s_waitcnt lgkmcnt(0)")
    a(f"v_rcp_f32 v{S}, v{O+8}")
    a(f"v_max3_f32 v{S+1}, |v{O}|, |v{O+1}|, |v{O+2}|")
    a(f"v_max3_f32 v{S+1}, v{S+1}, |v{O+3}|, |v{O+4}|")
    a(f"v_max3_f32 v{S+1}, v{S+1}, |v{O+5}|, |v{O+6}|")
    a(f"v_max_f32 v{S+1}, v{S+1}, |v{O+7}|")
    a(f"v_mov_b32 v{S+2}, {f32(2.0**30)}")
    a(f"v_mov_b32 v{S+3}, {f32(2.0**120)}")
    a(f"v_cmp_nle_f32 vcc, v{O+8}, v{S+2}")
    a(f"v_cmp_nle_f32 s[36:37], v{S+1}, v{S+3}")
    a("s_or_b64 vcc, vcc, s[36:37]")
    a("s_cmp_lg_u32 s34, 0")
    a("s_cbranch_scc1 K2_OUT")
    a("s_cbranch_vccnz K2_SLOW")
    a("K2_OUT:")
    for i in range(8):
        a(f"v_mul_f32 v{O+i}, v{O+i}, v{S}")
    for i in range(4):
        a(f"v_cvt_pk_bf16_f32 v{P+i}, v{O+2*i}, v{O+2*i+1}")
    a(f"buffer_store_dwordx4 {vr(P,4)}, v{vL16}, {sr(28)}, s15 offen")
    endprof(a, 1, 5)
    a("K2_END:")
    a("s_endpgm")
    a("K2_SLOW:")
    a("s_mov_b32 s34, 1")
    a(f"v_mov_b32 v{vK}, v{vL16}")
    a(f"v_mov_b32 v{P}, 0xff800000")
    a("s_mov_b32 s35, 64")
    a("K2_SLOWL:")
    rdK(0, 0)
    a("s_waitcnt lgkmcnt(0)")
    mfma(a, S, Kb, Q, "0")
    a(f"v_add_u32 v{vK}, 2048, v{vK}")
    a("s_nop 15")
    for i in range(0, 16, 2):
        a(f"v_max3_f32 v{P}, v{P}, v{S+i}, v{S+i+1}")
    a("s_sub_u32 s35, s35, 1")
    a("s_cmp_lg_u32 s35, 0")
    a("s_cbranch_scc1 K2_SLOWL")
    setC(P)
    a(f"v_mov_b32 v{vK}, v{vL16}")
    a(f"v_mov_b32 v{vV}, v{vLV}")
    for i in range(16):
        a(f"v_mov_b32 v{O+i}, 0")
    for i in range(4):
        a(f"v_mov_b32 v{P+4+i}, 0")
    for i in range(8):
        a(f"v_mov_b32 v{Vb+8+i}, v{vOne}")
    rdK(0, 0)
    rdK(1, 2048)
    rdV(0, 0)
    a("s_waitcnt lgkmcnt(3)")
    mfma(a, S, Kb, Q, C)
    a("s_mov_b32 s19, 16384")
    a("s_mov_b32 s35, 8")
    a("s_nop 15")
    a("s_branch K2_LOOP")

    a("K2_MLP:")
    PD = 3
    vT0, vT1, vD0, vD1, vR0, vR1 = 4, 5, 6, 7, 8, 9
    Tf, Df, acc, tmp = 12, 28, 64, 60
    a("s_setprio 3")
    a("s_sub_u32 s13, s12, 8")
    a("s_lshl_b32 s61, s13, 12")
    a("s_lshl_b32 s62, s14, 14")
    a("s_mov_b32 s63, s17")
    a("s_and_b32 s14, s2, 7")
    a("s_bfe_u32 s15, s2, 0x30003")
    a("s_lshr_b32 s16, s2, 6")
    a("s_lshl_b32 s17, s16, 3")
    a("s_add_u32 s17, s17, s14")
    a("s_lshl_b32 s18, s14, 2")
    a("s_add_u32 s18, s18, s16")
    a("s_lshl_b32 s19, s13, 13")
    a("s_add_u32 s19, s19, 131072")
    a("s_and_b32 s50, s13, 1")
    a("s_lshr_b32 s51, s13, 1")
    a("v_mov_b32 v10, s19")
    for i in range(4):
        a(f"v_mov_b32 v{12+i}, 0")
    a("ds_write_b128 v10, v[12:15] offset:6144")
    a("ds_write_b128 v10, v[12:15] offset:6160")
    a("s_lshl_b32 s64, s13, 2")
    a(f"s_add_u32 s64, s64, {KVF}")
    a(f"v_mov_b32 v{tmp+2}, s64")
    a(f"v_mov_b32 v{tmp+3}, 1")
    a(f"ds_write_b32 v{tmp+2}, v12")
    a("v_lshrrev_b32 v10, 5, v1")
    a("v_and_b32 v11, 31, v1")
    a("v_lshlrev_b32 v11, 4, v11")
    a("v_lshl_add_u32 v3, v10, 13, v11")
    a("s_waitcnt lgkmcnt(0)")
    srd(a, 24, 10, 4 * MB, WS_KV)

    def kvdma():
        a("s_add_u32 s62, s62, 16384")
        a("s_cmp_ge_u32 s62, 0x20000")
        a("s_cselect_b32 s62, 16384, s62")
        a("s_add_u32 s64, s62, s61")
        a("s_mov_b32 m0, s64")
        a("s_add_u32 s64, s64, s63")
        for n in range(4):
            a(f"buffer_load_dwordx4 v{vL16}, {sr(24)}, s64 offen offset:{n*1024} lds")

    stamp(a, 1)
    srd(a, 20, 40, 2048 * 2752)
    srd(a, 28, 10, SZ_U, WS_U)
    srd(a, 32, 44, 1376 * 4096)
    srd(a, 36, 10, SZ_F, WS_F)
    a("s_barrier")
    for j in range(7):
        kvdma()
    srd(a, 24, 10, 2 * MB, WS_HT)
    a("s_cmp_ge_u32 s17, 22")
    a("s_cbranch_scc1 K2_IDLE")
    a(f"s_mul_i32 s52, s13, {512*2752}")
    a("s_lshl_b32 s53, s17, 7")
    a("s_add_u32 s52, s52, s53")
    a("s_lshl_b32 s53, s13, 19")
    a("s_lshl_b32 s54, s15, 10")
    a("s_add_u32 s53, s53, s54")
    a("s_lshl_b32 s55, s51, 6")
    a("s_lshl_b32 s56, s50, 9")
    gemm_src(a, 2752, vT0, vT1, 10, 11)
    a(f"v_xor_b32 v{vD0}, s56, v3")
    a(f"v_xor_b32 v{vD1}, 512, v{vD0}")
    g1 = Gemm(a, 32, PD, 20, 24, 52, 53, 19, 2752, 16384, True, vT0, vT1, vD0, vD1, vR0, vR1, 512, Tf, Df, acc, "", 64)
    a("s_mul_i32 s57, s16, 11")
    a("s_lshl_b32 s58, s15, 2")
    a("s_add_u32 s57, s57, s58")
    a("s_and_b32 s57, s57, 31")
    if "norot" in OPT:
        a("s_mov_b32 s57, 0")
    g1.setup(57)
    g1.pro_T()
    g1.pro_D()
    gemm_rd(a, 8, vR0, vR1, 19, 55, 10, 11)
    a("s_waitcnt vmcnt(12)")
    a(f"ds_write_b32 v{tmp+2}, v{tmp+3}")
    stamp(a, 2)
    g1.main(3)
    stamp(a, 4)
    srd(a, 60, 42, 2752)
    a("s_lshl_b32 s57, s17, 7")
    a("s_add_u32 s57, s57, s55")
    a("v_lshrrev_b32 v10, 5, v1")
    a("v_lshlrev_b32 v10, 3, v10")
    for g in range(4):
        a(f"buffer_load_dwordx2 {vr(Df+2*g,2)}, v10, {sr(60)}, s57 offen offset:{16*g}")
    mreduce(a, "K2_M1", acc, 19, 0, 10, 11, tmp, Df + 16, 58)
    stamp(a, 5)
    a("s_mov_b32 s57, 0xffff0000")
    a("s_waitcnt vmcnt(0)")
    for i in range(8):
        a(f"v_lshlrev_b32 v{acc+16+2*i}, 16, v{Df+i}")
        a(f"v_and_b32 v{acc+16+2*i+1}, s57, v{Df+i}")
    for i in range(16):
        a(f"v_add_f32 v{acc+i}, v{acc+i}, v{acc+16+i}")
    gelu(a, acc, acc + 16, acc + 32, 16, 57)
    for i in range(8):
        a(f"v_cvt_pk_bf16_f32 v{Tf+i}, v{acc+2*i}, v{acc+2*i+1}")
    a("s_lshl_b32 s57, s17, 16")
    a("s_lshl_b32 s58, s51, 15")
    a("s_add_u32 s57, s57, s58")
    a("s_add_u32 s57, s57, s54")
    a("s_add_u32 s58, s57, 16384")
    a(f"buffer_store_dwordx4 {vr(Tf,4)}, v{vD0}, {sr(28)}, s57 offen sc1")
    a(f"buffer_store_dwordx4 {vr(Tf+4,4)}, v{vD0}, {sr(28)}, s58 offen sc1")
    a("s_lshl_b32 s57, s2, 7")
    a("s_lshl_b32 s58, s13, 2")
    a("s_add_u32 s57, s57, s58")
    a("v_lshlrev_b32 v10, 15, v1")
    a("v_mov_b32 v11, 1")
    a("s_waitcnt vmcnt(0)")
    a(f"buffer_store_dword v11, v10, {sr(36)}, s57 offen sc1")
    a("s_branch K2_MLP2")
    a("K2_IDLE:")
    a("s_waitcnt vmcnt(0)")
    a(f"ds_write_b32 v{tmp+2}, v{tmp+3}")
    if "nopf" not in OPT:
        a("s_cmp_lt_u32 s16, 3")
        a("s_cbranch_scc1 K2_MLP2")
        srd(a, 60, 48, 512 * 1024)
        a("s_lshl_b32 s57, s15, 2")
        a("s_add_u32 s57, s57, s13")
        a(f"s_mul_i32 s58, s57, {43*4096}")
        a("s_lshl_b32 s59, s14, 9")
        a("s_add_u32 s58, s58, s59")
        a("v_lshrrev_b32 v10, 2, v1")
        a("v_lshlrev_b32 v10, 12, v10")
        a("v_and_b32 v11, 3, v1")
        a("v_lshl_add_u32 v10, v11, 7, v10")
        for j in range(3):
            a(f"buffer_load_dword v{Tf+j}, v10, {sr(32)}, s58 offen")
            a("s_add_u32 s58, s58, 65536")
        a("s_lshl_b32 s58, s57, 14")
        a("v_lshlrev_b32 v10, 7, v1")
        a(f"buffer_load_dword v{Tf+3}, v10, {sr(60)}, s58 offen")
        a("s_add_u32 s58, s58, 8192")
        a(f"buffer_load_dword v{Tf+4}, v10, {sr(60)}, s58 offen")
        a("s_waitcnt vmcnt(0)")
    a("K2_MLP2:")
    stamp(a, 6)
    a(f"s_mul_i32 s52, s13, {22*16*4096}")
    a("s_lshl_b32 s53, s18, 7")
    a("s_add_u32 s52, s52, s53")
    a(f"s_mul_i32 s53, s13, {22*16384}")
    a("s_lshl_b32 s54, s15, 10")
    a("s_add_u32 s53, s53, s54")
    a("s_lshl_b32 s55, s50, 6")
    a("s_lshl_b32 s56, s51, 9")
    gemm_src(a, 4096, vT0, vT1, 10, 11)
    a(f"v_xor_b32 v{vD0}, s56, v3")
    a(f"v_xor_b32 v{vD1}, 512, v{vD0}")
    g2 = Gemm(a, 22, PD, 32, 28, 52, 53, 19, 4096, 16384, False, vT0, vT1, vD0, vD1, vR0, vR1, 1024, Tf, Df, acc, " sc1", 64)
    a("s_mul_i32 s57, s16, 11")
    a("s_lshr_b32 s57, s57, 1")
    if "norot" in OPT:
        a("s_mov_b32 s57, 0")
    g2.setup(57)
    g2.pro_T()
    gemm_rd(a, 4, vR0, vR1, 19, 55, 10, 11)
    a("s_mul_i32 s57, s13, 11")
    a("s_lshr_b32 s57, s57, 1")
    a("v_min_u32 v10, 5, v1")
    a("v_add_u32 v10, s57, v10")
    a("v_lshrrev_b32 v11, 3, v10")
    a("v_and_b32 v10, 7, v10")
    a("v_lshl_add_u32 v10, v11, 6, v10")
    a("v_lshlrev_b32 v10, 7, v10")
    a("s_lshl_b32 s57, s15, 10")
    a("s_mov_b32 s58, 0x40000")
    a("K2_POLL:")
    a(f"buffer_load_dwordx4 {vr(tmp,4)}, v10, {sr(36)}, s57 offen sc1")
    a("s_waitcnt vmcnt(0)")
    a(f"v_and_b32 v{tmp}, v{tmp}, v{tmp+1}")
    a(f"v_and_b32 v{tmp+2}, v{tmp+2}, v{tmp+3}")
    a(f"v_and_b32 v{tmp}, v{tmp}, v{tmp+2}")
    a(f"v_cmp_ne_u32 vcc, 1, v{tmp}")
    a("s_sub_u32 s58, s58, 1")
    a("s_cbranch_scc1 K2_POLLX")
    a("s_cbranch_vccz K2_POLLX")
    a("s_sleep 6")
    a("s_branch K2_POLL")
    a("K2_POLLX:")
    stamp(a, 7)
    g2.pro_D()
    g2.main(8)
    stamp(a, 9)
    srd(a, 60, 46, 4096)
    a("s_lshl_b32 s57, s18, 7")
    a("s_add_u32 s57, s57, s55")
    a("v_and_b32 v10, 31, v1")
    a("v_lshlrev_b32 v10, 1, v10")
    a(f"buffer_load_ushort v{Df}, v10, {sr(60)}, s57 offen")
    mreduce(a, "K2_M2", acc, 19, 16, 10, 11, tmp, Df + 16, 58)
    stamp(a, 10)
    srd(a, 60, 10, 2 * MB, WS_Y)
    a("s_waitcnt vmcnt(0)")
    a(f"v_lshlrev_b32 v{Df}, 16, v{Df}")
    for i in range(16):
        a(f"v_add_f32 v{acc+i}, v{acc+i}, v{Df}")
    for i in range(8):
        a(f"v_cvt_pk_bf16_f32 v{Tf+i}, v{acc+2*i}, v{acc+2*i+1}")
    a("s_lshl_b32 s57, s2, 13")
    a("s_lshl_b32 s58, s13, 11")
    a("s_add_u32 s57, s57, s58")
    a("v_lshlrev_b32 v10, 4, v1")
    a(f"buffer_store_dwordx4 {vr(Tf,4)}, v10, {sr(60)}, s57 offen")
    a(f"buffer_store_dwordx4 {vr(Tf+4,4)}, v10, {sr(60)}, s57 offen offset:1024")
    endprof(a, 1, 10)
    a("s_endpgm")
    return dict(name=nm, vgpr=128, grid=256, block=768, lds=163840)


def k3(a):
    nm = "k3_kernel"
    head(a, nm)
    a("s_cmp_ge_u32 s2, 256")
    a("s_cbranch_scc1 K3_END")
    a("s_load_dwordx2 s[4:5], s[0:1], 16")
    a("s_load_dwordx2 s[8:9], s[0:1], 72")
    a("s_load_dwordx2 s[10:11], s[0:1], 88")
    a("v_lshrrev_b32 v2, 6, v0")
    a("v_and_b32 v1, 63, v0")
    a("v_readfirstlane_b32 s12, v2")
    a("s_and_b32 s13, s2, 7")
    a("s_lshl_b32 s13, s13, 2")
    a("s_lshr_b32 s14, s2, 6")
    a("s_add_u32 s13, s13, s14")
    a("s_lshl_b32 s15, s14, 1")
    a("s_bfe_u32 s14, s2, 0x30003")
    a("s_add_u32 s15, s15, s14")
    vT0, vT1, vL, vR, vO = 4, 5, 6, 7, 8
    Tf, Of, acc, Y = 12, 28, 44, 60
    a(f"v_lshlrev_b32 v{vL}, 4, v1")
    a("s_cmp_ge_u32 s12, 4")
    a("s_cbranch_scc1 K3_COMP")
    gemm_src(a, 1024, vT0, vT1, 9, 10)
    a("s_lshl_b32 s16, s12, 14")
    a("s_lshl_b32 s17, s14, 7")
    a("s_add_u32 s16, s16, s17")
    a("s_lshl_b32 s17, s12, 16")
    a("s_lshl_b32 s18, s13, 11")
    a("s_add_u32 s17, s17, s18")
    a("s_lshl_b32 s18, s12, 12")
    a("s_waitcnt lgkmcnt(0)")
    srd(a, 20, 4, 512 * 1024)
    srd(a, 24, 10, 2 * MB, WS_O)

    def dma(c):
        a("s_and_b32 s15, s15, 7")
        a("s_lshl_b32 s19, s15, 16")
        a("s_add_u32 s19, s19, s16")
        a("s_lshl_b32 s48, s15, 18")
        a("s_add_u32 s48, s48, s17")
        a(f"s_add_u32 m0, s18, {c*16384 + 2048}")
        a("s_add_u32 s15, s15, 1")
        a(f"buffer_load_dwordx4 v{vL}, {sr(24)}, s48 offen lds")
        a(f"buffer_load_dwordx4 v{vL}, {sr(24)}, s48 offen offset:1024 lds")
        a(f"s_add_u32 m0, s18, {c*16384}")
        a("s_nop 0")
        a(f"buffer_load_dwordx4 v{vT0}, {sr(20)}, s19 offen lds")
        a(f"s_add_u32 m0, s18, {c*16384 + 1024}")
        a("s_nop 0")
        a(f"buffer_load_dwordx4 v{vT1}, {sr(20)}, s19 offen lds")

    stamp(a, 1)
    LA = 3
    for c in range(LA):
        dma(c)
    for c in range(8):
        a(f"s_waitcnt vmcnt({4*min(LA-1, 7-c)})")
        stamp(a, 2 + c)
        a("s_barrier")
        if c + LA < 8:
            dma(c + LA)
    endprof(a, 2, 9)
    a("s_endpgm")
    a("K3_COMP:")
    a("s_sub_u32 s16, s12, 4")
    a("s_lshl_b32 s49, s2, 13")
    a("s_lshl_b32 s50, s16, 11")
    a("s_add_u32 s49, s49, s50")
    a("s_and_b32 s50, s16, 1")
    a("s_lshr_b32 s51, s16, 1")
    a("s_lshl_b32 s52, s13, 8")
    a("s_lshl_b32 s53, s50, 7")
    a("s_add_u32 s52, s52, s53")
    a("s_mov_b32 s54, 0")
    a("s_lshl_b32 s55, s51, 6")
    gemm_rd(a, 4, vR, 11, 54, 55, 9, 10)
    a("s_lshl_b32 s55, s50, 10")
    a("s_add_u32 s55, s55, 2048")
    a(f"v_add_u32 v{vO}, s55, v{vL}")
    a(f"v_add_u32 v9, 65536, v{vR}")
    a(f"v_add_u32 v10, 65536, v{vO}")
    a("v_and_b32 v11, 31, v1")
    a("v_lshlrev_b32 v11, 2, v11")
    a("s_waitcnt lgkmcnt(0)")
    srd(a, 28, 10, 2 * MB, WS_Y)
    srd(a, 32, 10, 8192, WS_G)
    srd(a, 36, 8, 2 * MB)

    def rd(t):
        off = (t % 16) * 4096
        r, o = (vR, vO) if t < 16 else (9, 10)
        b = t % 4
        a(f"ds_read_b64_tr_b16 {vr(Tf+4*b,2)}, v{r} offset:{off}")
        a(f"ds_read_b64_tr_b16 {vr(Tf+4*b+2,2)}, v{r} offset:{off+1024}")
        a(f"ds_read_b128 {vr(Of+4*b,4)}, v{o} offset:{off}")

    for c in range(8):
        a("s_barrier")
        if c in (0, 3, 7):
            stamp(a, 1 + (0, 3, 7).index(c))
        for j in range(4):
            rd(4 * c + j)
        if c == 4:
            a(f"buffer_load_dwordx4 {vr(Y,4)}, v{vL}, {sr(28)}, s49 offen")
            a(f"buffer_load_dwordx4 {vr(Y+4,4)}, v{vL}, {sr(28)}, s49 offen offset:1024")
            a(f"buffer_load_dword v{Y+8}, v11, {sr(32)}, s52 offen")
        for j in range(4):
            t = 4 * c + j
            a(f"s_waitcnt lgkmcnt({3*(3-j)})")
            mfma(a, acc, Tf + 4 * j, Of + 4 * j, "0" if t == 0 else None)
    a("s_waitcnt vmcnt(0)")
    stamp(a, 4)
    a("v_and_b32 v9, 31, v1")
    a("v_lshlrev_b32 v9, 10, v9")
    a("v_lshrrev_b32 v10, 5, v1")
    a("v_lshl_add_u32 v9, v10, 4, v9")
    a("s_lshl_b32 s52, s13, 16")
    a("s_lshl_b32 s53, s50, 15")
    a("s_add_u32 s52, s52, s53")
    a("s_lshl_b32 s53, s14, 7")
    a("s_add_u32 s52, s52, s53")
    a("s_lshl_b32 s53, s51, 6")
    a("s_add_u32 s52, s52, s53")
    a("s_mov_b32 s53, 0xffff0000")
    a(f"v_sub_f32 v{Y+9}, 1.0, v{Y+8}")
    for i in range(8):
        a(f"v_lshlrev_b32 v{Tf+2*i}, 16, v{Y+i}")
        a(f"v_and_b32 v{Tf+2*i+1}, s53, v{Y+i}")
    for i in range(16):
        a(f"v_mul_f32 v{Tf+i}, v{Tf+i}, v{Y+9}")
    for i in range(16):
        a(f"v_fmac_f32 v{Tf+i}, v{acc+i}, v{Y+8}")
    for i in range(8):
        a(f"v_cvt_pk_bf16_f32 v{Of+i}, v{Tf+2*i}, v{Tf+2*i+1}")
    for p in range(2):
        a(f"v_permlane32_swap_b32 v{Of+4*p}, v{Of+4*p+2}")
        a(f"v_permlane32_swap_b32 v{Of+4*p+1}, v{Of+4*p+3}")
        a(f"buffer_store_dwordx4 {vr(Of+4*p,4)}, v9, {sr(36)}, s52 offen offset:{32*p}")
    endprof(a, 2, 4)
    a("K3_END:")
    a("s_endpgm")
    return dict(name=nm, vgpr=72, grid=256, block=512, lds=131072)


def build(path, kernels, order=None, verbose=False):
    ref = open("cdna_kernels/" + NAME + ".s.ref").read().split("\n")
    hdr = [l for l in ref if l.startswith(";") and "@launch" not in l and "Override launch" not in l and "grid=ceil" not in l]
    body, infos = "", []
    for k in kernels:
        a = Asm()
        info = k(a)
        n = a.fix(verbose)
        body += a.text()
        infos.append(info)
    by = {i["name"]: i for i in infos}
    order = order or [i["name"] for i in infos]
    s = "\n".join(hdr) + "\n"
    for o in order:
        i = by[o]
        s += f"; @launch kernel={i['name']} grid=({i['grid']},1,1) block=({i['block']},1,1) lds={i['lds']}\n"
    s += '.amdgcn_target "amdgcn-amd-amdhsa--gfx950"\n.text\n'
    s += body
    s += '.section .rodata,"a"\n'
    for i in infos:
        acc = (i["vgpr"] + 3) // 4 * 4
        s += f""".p2align 6
.amdhsa_kernel {i['name']}
  .amdhsa_next_free_vgpr {i['vgpr']}
  .amdhsa_next_free_sgpr {102 if PROF else 80}
  .amdhsa_accum_offset {acc}
  .amdhsa_group_segment_fixed_size 0
  .amdhsa_kernarg_size 96
  .amdhsa_user_sgpr_count 2
  .amdhsa_user_sgpr_kernarg_segment_ptr 1
  .amdhsa_system_sgpr_workgroup_id_x 1
.end_amdhsa_kernel
"""
    open(path, "w").write(s)


if __name__ == "__main__":
    out = sys.argv[1] if len(sys.argv) > 1 and not sys.argv[1][0] in "-+" else "cdna_kernels/" + NAME + ".s"
    PROF = "-p" in sys.argv
    OPT = set(x[1:] for x in sys.argv if x.startswith("+"))
    build(out, [k1, k2, k3], verbose="-v" in sys.argv)
```

```python
import gen2
from gen2 import *
def mk_pf(name, items):
    def k(a):
        head(a, name)
        a("s_cmp_ge_u32 s2, 256")
        a(f"s_cbranch_scc1 {name}_E")
        a("v_lshlrev_b32 v1, 4, v0")
        for j, (off, size) in enumerate(items):
            a(f"s_load_dwordx2 s[{4+2*j}:{5+2*j}], s[0:1], {off}")
        a("s_waitcnt lgkmcnt(0)")
        n = 0
        for j, (off, size) in enumerate(items):
            srd(a, 20, 4 + 2 * j, size)
            per = (size + 256*4096 - 1) // (256*4096)
            a(f"s_mul_i32 s30, s2, {per*4096}")
            for r in range(per):
                a(f"buffer_load_dwordx4 {vr(4+4*(n%8),4)}, v1, s[20:23], s30 offen")
                a("s_add_u32 s30, s30, 4096")
                n += 1
        a("s_waitcnt vmcnt(0)")
        a(f"{name}_E:")
        a("s_endpgm")
        return dict(name=name, vgpr=40, grid=256, block=256, lds=0)
    return k
def spin(a):
    head(a, "spin_kernel")
    a("v_mov_b32 v1, 0.5")
    a("s_mov_b32 s4, 40")
    a("SPL:")
    for i in range(64):
        a(f"v_exp_f32 v{2+i%8}, v1")
    a("s_sub_u32 s4, s4, 1")
    a("s_cmp_lg_u32 s4, 0")
    a("s_cbranch_scc1 SPL")
    a("s_endpgm")
    return dict(name="spin_kernel", vgpr=16, grid=256, block=512, lds=0)
allin = [(0, 2*MB), (8, 512*3072), (16, 512*1024), (32, 2048*2752), (48, 1376*4096)]
base = ["k1_kernel","k2_kernel","k3_kernel"]
build("e0.s", [k1,k2,k3])
build("e1.s", [k1,k2,k3,mk_pf("pf_kernel", allin)], ["pf_kernel"]+base)
build("e2.s", [k1,k2,k3,spin], ["spin_kernel"]+base)
build("e3.s", [k1,k2,k3], base+base)
build("e4.s", [k1,k2,k3,mk_pf("pf_kernel", [(24, 2*MB)])], ["pf_kernel"]+base)
build("e5.s", [k1,k2,k3,spin], base+["spin_kernel"])
```

```python
import sys, math, struct
from asmlib import Asm

NAME = "gated_mix__softmax_full_mha__mixer_token_mlp__prompt"
MB = 1 << 20
WS_Q, WS_KV, WS_HT, WS_U, WS_O, WS_G, WS_F = 0, 2 * MB, 6 * MB, 8 * MB, 10 * MB, 12 * MB, 13 * MB
SZ_U = 172 * 8192
F_HT, F_QKV, F_U, F_O, F_E = 0, 4096, 16384, 32768, 65536
SZ_F = 65536 + 128
PROF = False
OPT = set()
WS_P = 16 * MB
LOG2E = math.log2(math.e)
pX, pWQKV, pWO, pW1, pB1, pW2, pB2, pGW, pOUT, pWS = 4, 6, 8, 12, 14, 16, 18, 20, 22, 26
MREG = 131072
L_PUB = MREG + 6144 + 80
L_KVF, L_C0F, L_DONE, L_TAG = MREG + 6144 + 64, MREG + 6144 + 96, MREG + 6144 + 128, MREG + 6144 + 160


def f32(x):
    return "0x%08x" % struct.unpack("<I", struct.pack("<f", x))[0]


def srd(a, d, base, size, add=0):
    if add:
        a(f"s_add_u32 s{d}, s{base}, {hex(add)}")
        a(f"s_addc_u32 s{d+1}, s{base+1}, 0")
    else:
        a(f"s_mov_b32 s{d}, s{base}")
        a(f"s_mov_b32 s{d+1}, s{base+1}")
    a(f"s_mov_b32 s{d+2}, {hex(size)}")
    a(f"s_mov_b32 s{d+3}, 0x20000")


def vr(b, n):
    return f"v[{b}:{b+n-1}]"


def sr(b, n=4):
    return f"s[{b}:{b+n-1}]"


def mfma(a, D, A, B, C=None):
    c = vr(D, 16) if C is None else (C if isinstance(C, str) else vr(C, 16))
    a(f"v_mfma_f32_32x32x16_bf16 {vr(D,16)}, {vr(A,4)}, {vr(B,4)}, {c}")


def stamp(a, i):
    if PROF:
        a(f"s_memtime s[{72+2*i}:{73+2*i}]")


def endprof(a, n=12):
    if not PROF:
        return
    a("s_waitcnt vmcnt(0)")
    a(f"s_memtime s[{72+2*(n+1)}:{73+2*(n+1)}]")
    a("s_memrealtime s[100:101]")
    a("s_mov_b64 exec, -1")
    srd(a, 28, pWS, MB, WS_P)
    a("s_lshl_b32 s52, s2, 4")
    a("s_add_u32 s52, s52, s3")
    a("s_lshl_b32 s52, s52, 7")
    a("s_waitcnt lgkmcnt(0)")
    a("v_mov_b32 v2, 0")
    a("v_mov_b32 v3, s70")
    a("buffer_store_dword v3, v2, s[28:31], s52 offen")
    a("v_mov_b32 v3, s100")
    a("buffer_store_dword v3, v2, s[28:31], s52 offen offset:4")
    for i in range(1, n + 2):
        a(f"s_sub_u32 s53, s{72+2*i}, s72")
        a("v_mov_b32 v3, s53")
        a(f"buffer_store_dword v3, v2, s[28:31], s52 offen offset:{4+4*i}")


def gemm_src(a, strideT, vT0, vT1, t0, t1):
    a(f"v_lshrrev_b32 v{t0}, 3, v1")
    a(f"v_mul_u32_u24 v{t0}, {strideT}, v{t0}")
    a(f"v_bfe_u32 v{t1}, v1, 4, 1")
    a(f"v_lshlrev_b32 v{t1}, 2, v{t1}")
    a(f"v_xor_b32 v{t1}, v{t1}, v1")
    a(f"v_and_b32 v{t1}, 7, v{t1}")
    a(f"v_lshl_add_u32 v{vT0}, v{t1}, 4, v{t0}")
    a(f"v_add_u32 v{vT1}, {8*strideT}, v{vT0}")


def gemm_rd(a, hmul, vR0, vR1, sL, sSwap, t0, t1):
    a(f"v_lshrrev_b32 v{t0}, 5, v1")
    a(f"v_mul_u32_u24 v{t0}, {hmul}, v{t0}")
    a(f"v_bfe_u32 v{t1}, v1, 2, 2")
    a(f"v_add_u32 v{t0}, v{t0}, v{t1}")
    a(f"v_lshlrev_b32 v{t0}, 7, v{t0}")
    a(f"v_bfe_u32 v{t1}, v1, 3, 1")
    a(f"v_lshl_add_u32 v{t0}, v{t1}, 6, v{t0}")
    a(f"v_bfe_u32 v{t1}, v1, 4, 1")
    a(f"v_lshl_add_u32 v{t0}, v{t1}, 5, v{t0}")
    a(f"v_and_b32 v{t1}, 3, v1")
    a(f"v_lshl_add_u32 v{t0}, v{t1}, 3, v{t0}")
    if sL is None:
        a(f"v_xor_b32 v{vR0}, s{sSwap}, v{t0}")
        return
    a(f"v_xor_b32 v{t0}, s{sSwap}, v{t0}")
    a(f"v_add_u32 v{vR0}, s{sL}, v{t0}")
    a(f"v_xor_b32 v{t0}, 64, v{t0}")
    a(f"v_add_u32 v{vR1}, s{sL}, v{t0}")


def lds_spin(a, lab, vaddr, off, want, vt, cnt, sleep=1):
    a(f"s_mov_b32 s{cnt}, 0x100000")
    a(f"{lab}:")
    a(f"ds_read_b32 v{vt}, v{vaddr} offset:{off}")
    a("s_waitcnt lgkmcnt(0)")
    a(f"v_cmp_ne_u32 vcc, {want}, v{vt}")
    a(f"s_sub_u32 s{cnt}, s{cnt}, 1")
    a(f"s_cbranch_scc1 {lab}_X")
    a(f"s_cbranch_vccz {lab}_X")
    a(f"s_sleep {sleep}")
    a(f"s_branch {lab}")
    a(f"{lab}_X:")


def poll(a, lab, n, vaddr, sF, soff, vt, vTag, cnt, sleep, extra=None):
    a(f"s_mov_b32 s{cnt}, 0x40000")
    a(f"{lab}:")
    if n == 1:
        a(f"buffer_load_dwordx2 {vr(vt,2)}, v{vaddr}, {sr(sF)}, {soff} offen sc1")
    else:
        a(f"buffer_load_dwordx4 {vr(vt,4)}, v{vaddr}, {sr(sF)}, {soff} offen sc1")
    if n == 4:
        a(f"buffer_load_dwordx4 {vr(vt+4,4)}, v{vaddr}, {sr(sF)}, {soff} offen offset:16 sc1")
    a("s_waitcnt vmcnt(0)")
    for i in range(2 * n):
        a(f"v_xor_b32 v{vt+i}, v{vt+i}, v{vTag + i % 2}")
    k = 2 * n
    i = 1
    while i < k:
        if i + 1 < k:
            a(f"v_or3_b32 v{vt}, v{vt}, v{vt+i}, v{vt+i+1}")
            i += 2
        else:
            a(f"v_or_b32 v{vt}, v{vt}, v{vt+i}")
            i += 1
    a(f"v_cmp_ne_u32 vcc, 0, v{vt}")
    a(f"s_sub_u32 s{cnt}, s{cnt}, 1")
    a(f"s_cbranch_scc1 {lab}_X")
    a(f"s_cbranch_vccz {lab}_X")
    a(f"s_sleep {sleep}")
    a(f"s_branch {lab}")
    a(f"{lab}_X:")


def publish(a, sF, soff, vTag, vt):
    a(f"v_lshlrev_b32 v{vt}, 18, v1")
    a("s_waitcnt vmcnt(0)")
    a(f"buffer_store_dwordx2 {vr(vTag,2)}, v{vt}, {sr(sF)}, s{soff} offen sc1")


def get_tag(a, vTag, vt):
    a(f"v_mov_b32 v{vt}, {L_TAG}")
    a(f"ds_read_b64 {vr(vTag,2)}, v{vt}")


def spf(a, k, n):
    if "nospf" in OPT:
        return
    for j in range(n):
        a(f"s_load_dword s65, s[66:67], {(k+j)*128}")


class Gemm:
    def __init__(s, a, nsteps, P, srdT, srdD, sT, sD, sL, strideT, stepD, t_is_A, vT0, vT1, vD0, vD1, vR0, vR1, qoff,
                 Tf, Df, acc, dflags, sW):
        s.__dict__.update(locals())
        s.log = []

    def advT(s):
        a = s.a
        a(f"s_add_u32 s{s.sT}, s{s.sT}, {16*s.strideT}")
        a(f"s_cmp_eq_u32 s{s.sT}, s{s.sW+1}")
        a(f"s_cselect_b32 s{s.sT}, s{s.sW}, s{s.sT}")

    def advD(s):
        a = s.a
        a(f"s_add_u32 s{s.sD}, s{s.sD}, {s.stepD}")
        a(f"s_cmp_eq_u32 s{s.sD}, s{s.sW+3}")
        a(f"s_cselect_b32 s{s.sD}, s{s.sW+2}, s{s.sD}")

    def setup(s, sRot):
        a = s.a
        a(f"s_mov_b32 s{s.sW}, s{s.sT}")
        a(f"s_add_u32 s{s.sW+1}, s{s.sT}, {16*s.strideT*s.nsteps}")
        a(f"s_mov_b32 s{s.sW+2}, s{s.sD}")
        a(f"s_add_u32 s{s.sW+3}, s{s.sD}, {s.stepD*s.nsteps}")
        a(f"s_mul_i32 s{s.sW+4}, s{sRot}, {16*s.strideT}")
        a(f"s_add_u32 s{s.sT}, s{s.sT}, s{s.sW+4}")
        a(f"s_mul_i32 s{s.sW+4}, s{sRot}, {s.stepD}")
        a(f"s_add_u32 s{s.sD}, s{s.sD}, s{s.sW+4}")

    def LD1(s, i, half):
        if i >= s.nsteps:
            return
        d = s.Df + 8 * (i % (s.P + 1)) + 4 * half
        s.a(f"buffer_load_dwordx4 {vr(d,4)}, v{(s.vD0, s.vD1)[half]}, {sr(s.srdD)}, s{s.sD} offen{s.dflags}")
        if half:
            s.advD()
        s.log.append(("D", i))

    def DMA1(s, i, half):
        if i >= s.nsteps:
            return
        a = s.a
        sl = (i % s.P) * 2048 + 1024 * half
        a(f"s_add_u32 m0, s{s.sL}, {sl}")
        a("s_nop 0")
        a(f"buffer_load_dwordx4 v{(s.vT0, s.vT1)[half]}, {sr(s.srdT)}, s{s.sT} offen lds")
        if half:
            s.advT()
        s.log.append(("T", i))

    def rd(s, i):
        sl = (i % s.P) * 2048
        t = s.Tf + 8 * (i % 2)
        for b, vR in ((0, s.vR0), (1, s.vR1)):
            for q in range(2):
                s.a(f"ds_read_b64_tr_b16 {vr(t+4*b+2*q,2)}, v{vR} offset:{sl+q*s.qoff}")

    def wait_for(s, items):
        last = max(idx for idx, it in enumerate(s.log) if it in items)
        s.a(f"s_waitcnt vmcnt({min(63, len(s.log) - 1 - last)})")

    def pro_T(s):
        for j in range(s.P):
            s.DMA1(j, 0)
            s.DMA1(j, 1)

    def pro_D(s):
        for j in range(s.P):
            s.LD1(j, 0)
            s.LD1(j, 1)

    def main(s, hooks={}):
        a = s.a
        s.wait_for([("T", 0)])
        s.rd(0)
        a("s_waitcnt lgkmcnt(0)")
        s.DMA1(s.P, 0)
        s.DMA1(s.P, 1)
        n = s.nsteps
        for i in range(n):
            if i in hooks:
                hooks[i]()
            need = [("D", i)] + ([("T", i + 1)] if i + 1 < n else [])
            s.wait_for(need)
            t, d = s.Tf + 8 * (i % 2), s.Df + 8 * (i % (s.P + 1))
            for k in range(4):
                x, y = k // 2, k % 2
                C = "0" if i == 0 else None
                if s.t_is_A:
                    mfma(a, s.acc + 16 * k, t + 4 * x, d + 4 * y, C)
                else:
                    mfma(a, s.acc + 16 * k, d + 4 * x, t + 4 * y, C)
                if k == 0:
                    if i + 1 < n:
                        s.rd(i + 1)
                    s.LD1(i + s.P, 0)
                elif k == 1:
                    s.LD1(i + s.P, 1)
                elif k == 2:
                    if i + 1 < n:
                        a("s_waitcnt lgkmcnt(0)")
                    s.DMA1(i + 1 + s.P, 0)
                else:
                    s.DMA1(i + 1 + s.P, 1)


def gelu(a, X, T, U, n, s0):
    k = math.sqrt(2 / math.pi)
    a(f"s_mov_b32 s{s0}, {f32(-2*k*LOG2E*0.044715)}")
    a(f"v_mov_b32 v{U}, {f32(-2*k*LOG2E)}")
    for i in range(n):
        a(f"v_mul_f32 v{T+i}, v{X+i}, v{X+i}")
    for i in range(n):
        a(f"v_fma_f32 v{T+i}, v{T+i}, s{s0}, v{U}")
    for i in range(n):
        a(f"v_mul_f32 v{T+i}, v{T+i}, v{X+i}")
    for i in range(n):
        a(f"v_exp_f32 v{T+i}, v{T+i}")
    for i in range(n):
        a(f"v_add_f32 v{T+i}, 1.0, v{T+i}")
    for i in range(n):
        a(f"v_rcp_f32 v{T+i}, v{T+i}")
    for i in range(n):
        a(f"v_mul_f32 v{X+i}, v{X+i}, v{T+i}")


def mreduce(a, tag, acc, sL, fl, vA, vB, vT, R, cnt):
    a(f"v_lshlrev_b32 v{vA}, 4, v1")
    a(f"v_add_u32 v{vA}, s{sL}, v{vA}")
    a(f"v_mov_b32 v{vB}, s{sL}")
    a(f"v_mov_b32 v{vT+1}, 1")
    a("s_nop 7")
    wr, rdb = {1: 0, 2: 1, 3: 3}, {1: 1, 2: 3, 3: 0}

    def add():
        for i in range(0, 16, 2):
            a(f"v_pk_add_f32 {vr(acc+i,2)}, {vr(acc+i,2)}, {vr(R+i,2)}")

    for r in (1, 2, 3):
        if wr[r]:
            a(f"v_xor_b32 v{vT+2}, {8192*wr[r]}, v{vA}")
        for i in range(4):
            a(f"ds_write_b128 v{vT+2 if wr[r] else vA}, {vr(acc+16*r+4*i,4)} offset:{1024*i}")
        a(f"v_xor_b32 v{vT+3}, {8192*r}, v{vB}")
        if r > 1:
            add()
        a("s_waitcnt lgkmcnt(0)")
        a(f"ds_write_b32 v{vB}, v{vT+1} offset:{6144+fl+4*(r-1)}")
        lds_spin(a, f"{tag}_R{r}", vT + 3, 6144 + fl + 4 * (r - 1), 1, vT, cnt)
        if rdb[r]:
            a(f"v_xor_b32 v{vT+2}, {8192*rdb[r]}, v{vA}")
        for i in range(4):
            a(f"ds_read_b128 {vr(R+4*i,4)}, v{vT+2 if rdb[r] else vA} offset:{1024*i}")
        a("s_waitcnt lgkmcnt(0)")
    add()


def kernel(a):
    global PROF
    nm = NAME + "_kernel"
    a.raw(f".globl {nm}")
    a.raw(".p2align 8")
    a.raw(f".type {nm},@function")
    a(f"{nm}:")
    if PROF:
        a("s_memrealtime s[70:71]")
        a("s_memtime s[72:73]")
    SLOT, NS = 32768, 4
    vTag = 166
    a("s_cmp_ge_u32 s2, 256")
    a("s_cbranch_scc1 END")
    a("s_load_dwordx16 s[4:19], s[0:1], 0")
    a("s_load_dwordx8 s[20:27], s[0:1], 64")
    a("v_lshrrev_b32 v2, 6, v0")
    a("v_and_b32 v1, 63, v0")
    a("v_readfirstlane_b32 s3, v2")
    a("s_and_b32 s52, s2, 7")
    a("s_lshr_b32 s53, s2, 3")
    a("s_lshr_b32 s54, s52, 1")
    a("s_lshl_b32 s54, s54, 3")
    a("s_lshr_b32 s55, s53, 2")
    a("s_add_u32 s54, s54, s55")
    a("s_and_b32 s56, s53, 3")
    a("s_lshl_b32 s58, s56, 1")
    a("s_add_u32 s58, s58, s55")
    a("s_and_b32 s55, s52, 1")
    a("s_lshl_b32 s55, s55, 2")
    a("s_add_u32 s55, s55, s56")
    a("s_cmp_ge_u32 s3, 8")
    a("s_cbranch_scc1 P1_M")
    a("s_cmp_ge_u32 s3, 4")
    a("s_cbranch_scc1 P1_LOAD")

    vXA, vWA = 10, 18
    vXf, vWf = 112, 124
    acc = 64
    a("s_and_b32 s56, s3, 1")
    a("s_lshr_b32 s57, s3, 1")
    a("s_lshl_b32 s59, s56, 12")
    a("v_and_b32 v2, 31, v1")
    a("v_lshrrev_b32 v3, 5, v1")
    a("v_bfe_u32 v9, v1, 1, 3")
    a("v_lshlrev_b32 v2, 7, v2")
    a("v_add_u32 v2, s59, v2")
    for kk in range(4):
        a(f"v_add_u32 v60, {2*kk}, v3")
        a("v_xor_b32 v60, v60, v9")
        a(f"v_lshl_add_u32 v{vXA+kk}, v60, 4, v2")
        a(f"v_add_u32 v{vXA+4+kk}, {2*SLOT}, v{vXA+kk}")
    a("s_lshl_b32 s59, s57, 6")
    gemm_rd(a, 8, vWA, None, None, 59, 2, 9)
    a(f"v_add_u32 v{vWA+1}, {2*SLOT}, v{vWA}")
    a("s_waitcnt lgkmcnt(0)")
    srd(a, 28, pWS, 2 * MB, WS_Q)
    srd(a, 32, pWS, 4 * MB, WS_KV)
    srd(a, 36, pWS, SZ_F, WS_F)

    def reads(t):
        c, kk = t // 4, t % 4
        s = c % NS
        st, so = s // 2, (s % 2) * SLOT
        bf = t % 3
        r = [f"ds_read_b128 {vr(vXf+4*bf,4)}, v{vXA+4*st+kk} offset:{so}"]
        for b in range(3):
            for q in range(2):
                r.append(f"ds_read_b64_tr_b16 {vr(vWf+12*bf+4*b+2*q,2)}, v{vWA+st} offset:{so+8192+b*8192+kk*2048+q*512}")
        return r

    a("s_barrier")
    stamp(a, 1)
    for t in range(2):
        for x in reads(t):
            a(x)
    for t in range(32):
        if t % 4 == 2 and t + 2 < 32:
            a("s_barrier")
        a(f"s_waitcnt lgkmcnt({7 if t + 1 < 32 else 0})")
        rr = reads(t + 2) if t + 2 < 32 else []
        bf = t % 3
        X, W = vXf + 4 * bf, vWf + 12 * bf
        for j, (D, A, B) in enumerate(((acc + 16, W + 4, X), (acc + 32, X, W + 8), (acc, W, X))):
            mfma(a, D, A, B, "0" if t == 0 else None)
            for x in rr[(0, 3, 5)[j]:(3, 5, 7)[j]]:
                a(x)
    stamp(a, 2)
    get_tag(a, vTag, 2)
    a("s_lshl_b32 s59, s54, 1")
    a("s_add_u32 s59, s59, s56")
    a("s_lshl_b32 s60, s55, 1")
    a("s_add_u32 s60, s60, s57")
    a("s_lshl_b32 s61, s60, 17")
    a("s_lshl_b32 s62, s59, 10")
    a("s_add_u32 s61, s61, s62")
    a("s_add_u32 s62, s61, 65536")
    a("s_lshl_b32 s63, s61, 1")
    a("s_add_u32 s64, s63, 131072")
    a(f"s_mov_b32 s65, {f32(0.25*LOG2E)}")
    a("v_lshlrev_b32 v2, 4, v1")
    a("v_bfe_u32 v9, v1, 4, 1")
    a("v_lshlrev_b32 v9, 17, v9")
    a("v_lshl_add_u32 v9, v3, 8, v9")
    a("v_and_b32 v60, 15, v1")
    a("v_lshl_add_u32 v9, v60, 4, v9")
    stores = [(28, "v2", 28, 61, 0), (32, "v2", 28, 62, 0), (36, "v2", 32, 63, 0), (40, "v2", 32, 64, 0),
              (44, "v9", 32, 63, 1024), (48, "v9", 32, 63, 1536)]
    for j in (2, 3, 4, 5, 0, 1):
        r, ad, sd, so, off = stores[j]
        if j < 2:
            for i in range(8):
                a(f"v_mul_f32 v{acc+8*j+i}, s65, v{acc+8*j+i}")
        for i in range(4):
            a(f"v_cvt_pk_bf16_f32 v{r+i}, v{acc+8*j+2*i}, v{acc+8*j+2*i+1}")
        a(f"buffer_store_dwordx4 {vr(r,4)}, {ad}, {sr(sd)}, s{so} offen offset:{off} sc1")
    a("s_lshl_b32 s60, s60, 6")
    a("s_add_u32 s59, s59, s60")
    a("s_lshl_b32 s59, s59, 3")
    a(f"s_add_u32 s59, s59, {F_QKV}")
    a("s_lshl_b32 s60, s3, 2")
    a(f"s_add_u32 s60, s60, {L_PUB}")
    a("v_mov_b32 v61, s60")
    a("v_mov_b32 v62, 1")
    a("s_waitcnt lgkmcnt(0)")
    publish(a, 36, 59, vTag, 60)
    a("ds_write_b32 v61, v62")
    stamp(a, 3)
    a("s_branch ATT")

    a("P1_LOAD:")
    vX0, vX1, vT0, vT1 = 4, 5, 6, 7
    a("s_sub_u32 s59, s3, 4")
    a("v_lshrrev_b32 v2, 3, v1")
    a("v_and_b32 v3, 7, v1")
    a("v_lshrrev_b32 v20, 4, v1")
    a("v_xor_b32 v3, v3, v20")
    a("v_lshlrev_b32 v2, 10, v2")
    a(f"v_lshl_add_u32 v{vX0}, v3, 4, v2")
    a(f"v_xor_b32 v3, 4, v3")
    a(f"v_lshl_add_u32 v{vX1}, v3, 4, v2")
    a(f"v_add_u32 v{vX1}, 8192, v{vX1}")
    gemm_src(a, 3072, vT0, vT1, 2, 3)
    a("s_lshl_b32 s60, s54, 16")
    a("s_lshl_b32 s61, s59, 14")
    a("s_add_u32 s60, s60, s61")
    a("s_mul_i32 s61, s59, 49152")
    a("s_lshl_b32 s62, s55, 7")
    a("s_add_u32 s61, s61, s62")
    a("s_lshl_b32 s62, s59, 11")
    a("s_waitcnt lgkmcnt(0)")
    srd(a, 28, pX, 2 * MB)
    srd(a, 32, pWQKV, 512 * 3072)

    def dma(c):
        sl = (c % NS) * SLOT
        for t in ["s_and_b32 s58, s58, 7", "s_lshl_b32 s63, s58, 7", "s_add_u32 s63, s63, s60",
                  "s_mul_i32 s64, s58, 196608", "s_add_u32 s64, s64, s61", "s_add_u32 s58, s58, 1"]:
            a(t)
        for n, v in enumerate((vX0, vX1)):
            a(f"s_add_u32 m0, s62, {sl + n*1024}")
            a("s_nop 0")
            a(f"buffer_load_dwordx4 v{v}, {sr(28)}, s63 offen lds")
        for b in range(3):
            for n, v in enumerate((vT0, vT1)):
                a(f"s_add_u32 m0, s62, {sl + 8192 + b*7168 + n*1024}")
                a("s_nop 0")
                a(f"buffer_load_dwordx4 v{v}, {sr(32)}, s64 offen offset:{b*1024} lds")

    dma(0)
    for c in range(8):
        if c + 1 < 8:
            dma(c + 1)
            a("s_waitcnt vmcnt(8)")
        else:
            a("s_waitcnt vmcnt(0)")
        if "p1st" in OPT and c >= 1:
            stamp(a, 5 + c)
        a("s_barrier")
        if c == 0:
            stamp(a, 1)
    stamp(a, 2)
    if "p1st" in OPT:
        PROF = False
    get_tag(a, vTag, 2)
    srd(a, 28, pWS, 2 * MB, WS_Q)
    srd(a, 32, pWS, 4 * MB, WS_KV)
    srd(a, 36, pWS, SZ_F, WS_F)
    a("v_and_b32 v3, 3, v1")
    a("v_lshlrev_b32 v3, 2, v3")
    a(f"v_add_u32 v3, {L_PUB}, v3")
    lds_spin(a, "L_PUBW", 3, 0, 1, 4, 62, 2)
    stamp(a, 3)

    a("ATT:")
    Q, C, S, P, O, Kb, Vb = 4, 8, 24, 56, 64, 80, 88
    vL16, vLV, vK, vV, vOne, vF = 2, 3, 104, 105, 106, 107
    a("s_lshl_b32 s54, s52, 2")
    a("s_and_b32 s55, s53, 3")
    a("s_add_u32 s54, s54, s55")
    a("s_lshr_b32 s55, s53, 2")
    a("s_lshl_b32 s56, s55, 3")
    a("s_add_u32 s56, s56, s3")
    a("s_lshl_b32 s57, s54, 16")
    a("s_lshl_b32 s58, s56, 10")
    a("s_add_u32 s57, s57, s58")
    a("s_lshl_b32 s58, s3, 11")
    a("s_lshl_b32 s59, s54, 17")
    a("s_add_u32 s59, s59, s58")
    a("s_lshr_b32 s60, s54, 1")
    a("s_lshl_b32 s60, s60, 6")
    a("s_add_u32 s60, s60, s3")
    a("s_lshl_b32 s60, s60, 3")
    a(f"s_add_u32 s60, s60, {F_QKV}")
    a("s_lshl_b32 s61, s55, 6")
    a("v_lshrrev_b32 v3, 5, v1")
    a(f"v_mul_u32_u24 v{vF}, s61, v3")
    a(f"v_lshlrev_b32 v{vL16}, 4, v1")
    a("v_lshlrev_b32 v3, 8, v3")
    a("v_and_b32 v104, 15, v1")
    a("v_lshl_add_u32 v3, v104, 4, v3")
    a(f"v_add_u32 v{vLV}, 1024, v3")
    a(f"v_mov_b32 v{vK}, v{vL16}")
    a(f"v_mov_b32 v{vV}, v{vLV}")
    a("s_mov_b32 s40, 0x0000ffff")
    a("s_mov_b32 s41, 0x0000ffff")
    a("s_mov_b32 s42, 0")
    a(f"v_and_b32 v{vOne}, 27, v1")
    a(f"v_cmp_eq_u32 vcc, 16, v{vOne}")
    a(f"v_mov_b32 v{vOne}, 0x3f803f80")
    a(f"v_cndmask_b32 v{vOne}, 0, v{vOne}, vcc")
    for i in range(16):
        a(f"v_mov_b32 v{Vb+i}, v{vOne}")
    for i in range(16):
        a(f"v_mov_b32 v{O+i}, 0")
    for i in range(4):
        a(f"v_mov_b32 v{P+4+i}, 0")
    poll(a, "A_POLL", 1, vF, 36, "s60", S, vTag, 62, 2)
    stamp(a, 4)
    a("s_mov_b32 m0, s58")
    a("s_setprio 2")
    a(f"buffer_load_dwordx4 v{vL16}, {sr(32)}, s59 offen sc1 lds")
    a(f"buffer_load_dwordx4 {vr(Q,4)}, v{vL16}, {sr(28)}, s57 offen sc1")
    a(f"buffer_load_dwordx4 v{vL16}, {sr(32)}, s59 offen offset:1024 sc1 lds")
    srd(a, 28, pWS, 2 * MB, WS_O)
    a("s_lshl_b32 s58, s3, 2")
    a(f"s_add_u32 s58, s58, {L_C0F}")
    a("v_mov_b32 v108, s58")
    a("v_mov_b32 v109, 1")
    a(f"v_and_b32 v{vF}, 7, v1")
    a(f"v_lshlrev_b32 v{vF}, 2, v{vF}")
    a(f"v_add_u32 v{vF}, {L_C0F}, v{vF}")
    a("s_waitcnt vmcnt(0)")
    a("ds_write_b32 v108, v109")
    lds_spin(a, "A_C0", vF, 0, 1, 110, 62)
    stamp(a, 5)

    def rdK(buf, off):
        a(f"ds_read_b128 {vr(Kb+4*buf,4)}, v{vK} offset:{off}")

    def rdV(buf, off):
        a("s_mov_b64 exec, s[40:41]")
        a(f"ds_read_b128 {vr(Vb+8*buf,4)}, v{vV} offset:{off}")
        a(f"ds_read_b128 {vr(Vb+8*buf+4,4)}, v{vV} offset:{off+512}")
        a("s_mov_b64 exec, -1")

    def setC(src):
        a(f"v_mov_b32 v{src+1}, v{src}")
        a(f"v_permlane32_swap_b32 v{src}, v{src+1}")
        a(f"v_max_f32 v{src}, v{src}, v{src+1}")
        a(f"v_sub_f32 v{C}, 0, v{src}")
        for i in range(1, 16):
            a(f"v_mov_b32 v{C+i}, v{C}")

    rdK(0, 0)
    rdK(1, 2048)
    rdV(0, 0)
    a("v_and_b32 v111, 3, v1")
    a("v_lshlrev_b32 v111, 2, v111")
    a(f"v_add_u32 v111, {L_KVF}, v111")
    a("s_waitcnt lgkmcnt(3)")
    mfma(a, S, Kb, Q, "0")
    a(f"v_max3_f32 v{S}, v{S}, v{S+1}, v{S+2}")
    for i in range(3, 15, 2):
        a(f"v_max3_f32 v{S}, v{S}, v{S+i}, v{S+i+1}")
    a(f"v_max_f32 v{S}, v{S}, v{S+15}")
    setC(S)
    mfma(a, S, Kb, Q, C)
    a("s_mov_b32 s43, 16384")
    a("s_mov_b32 s44, 8")

    def tile(i, first):
        b = i % 2
        Sc, Sn = S + 16 * b, S + 16 * (1 - b)
        e = lambda k: a(f"v_exp_f32 v{Sc+k}, v{Sc+k}")
        c = lambda k: a(f"v_cvt_pk_bf16_f32 v{P+k}, v{Sc+2*k}, v{Sc+2*k+1}")
        e(0); e(1)
        mfma(a, O, Vb + 8 * (1 - b) + 4, P + 4)
        for k in range(2, 8):
            e(k)
        a("s_waitcnt lgkmcnt(2)")
        mfma(a, Sn, Kb + 4 * (1 - b), Q, C)
        if i == 6:
            a(f"v_add_u32 v{vK}, s43, v{vL16}")
            if first:
                lds_spin(a, "A_KVW", 111, 0, 1, 110, 62, 4)
        rdK(b, ((i + 2) % 8) * 2048)
        for k in range(4):
            c(k)
        for k in range(8, 12):
            e(k)
        a("s_waitcnt lgkmcnt(1)")
        mfma(a, O, Vb + 8 * b, P)
        if i == 7:
            a(f"v_add_u32 v{vV}, s43, v{vLV}")
            a("s_add_u32 s43, s43, 16384")
            a("s_and_b32 s43, s43, 0x1ffff")
        rdV(1 - b, ((i + 1) % 8) * 2048)
        for k in range(12, 16):
            e(k)
        if i == 7:
            a("s_sub_u32 s44, s44, 1")
            a("s_cmp_lg_u32 s44, 0")
        for k in range(4, 8):
            c(k)

    for i in range(8):
        tile(i, True)
    stamp(a, 6)
    a.raw(".p2align 6")
    a("A_LOOP:")
    a("s_cmp_eq_u32 s44, 3")
    a("s_cbranch_scc0 A_P1")
    a("s_setprio 1")
    a("A_P1:")
    a("s_cmp_eq_u32 s44, 1")
    a("s_cbranch_scc0 A_P2")
    a("s_setprio 0")
    a("A_P2:")
    for i in range(8):
        tile(i, False)
    a("s_cbranch_scc1 A_LOOP")
    stamp(a, 7)
    a("s_nop 1")
    mfma(a, O, Vb + 8 + 4, P + 4)
    a("s_waitcnt lgkmcnt(0)")
    a(f"v_mov_b32 v{S+2}, {f32(2.0**30)}")
    a(f"v_mov_b32 v{S+3}, {f32(2.0**120)}")
    a("s_lshr_b32 s59, s56, 1")
    a("s_lshl_b32 s59, s59, 2")
    a("s_and_b32 s60, s53, 3")
    a("s_add_u32 s59, s59, s60")
    a("s_lshl_b32 s59, s59, 3")
    a("s_add_u32 s59, s59, s52")
    a("s_lshl_b32 s59, s59, 1")
    a("s_and_b32 s60, s3, 1")
    a("s_add_u32 s59, s59, s60")
    a("s_lshl_b32 s59, s59, 3")
    a(f"s_add_u32 s59, s59, {F_O}")
    a(f"v_rcp_f32 v{S}, v{O+8}")
    a(f"v_max3_f32 v{S+1}, |v{O}|, |v{O+1}|, |v{O+2}|")
    a(f"v_max3_f32 v{S+1}, v{S+1}, |v{O+3}|, |v{O+4}|")
    a(f"v_max3_f32 v{S+1}, v{S+1}, |v{O+5}|, |v{O+6}|")
    a(f"v_max_f32 v{S+1}, v{S+1}, |v{O+7}|")
    a(f"v_cmp_nle_f32 vcc, v{O+8}, v{S+2}")
    a(f"v_cmp_nle_f32 s[46:47], v{S+1}, v{S+3}")
    a("s_or_b64 vcc, vcc, s[46:47]")
    a("s_cmp_lg_u32 s42, 0")
    a("s_cbranch_scc1 A_OUT")
    a("s_cbranch_vccnz A_SLOW")
    a("A_OUT:")
    a("ds_write_b32 v108, v109 offset:32")
    for i in range(8):
        a(f"v_mul_f32 v{O+i}, v{O+i}, v{S}")
    for i in range(4):
        a(f"v_cvt_pk_bf16_f32 v{P+i}, v{O+2*i}, v{O+2*i+1}")
    a(f"buffer_store_dwordx4 {vr(P,4)}, v{vL16}, {sr(28)}, s57 offen sc1")
    publish(a, 36, 59, vTag, 110)
    stamp(a, 8)
    if "p1st" in OPT:
        PROF = True
    a("s_cmp_lt_u32 s3, 4")
    a("s_cbranch_scc1 P3_LOAD")
    endprof(a)
    a("END:")
    a("s_endpgm")
    a("A_SLOW:")
    a("s_mov_b32 s42, 1")
    a(f"v_mov_b32 v{vK}, v{vL16}")
    a(f"v_mov_b32 v{P}, 0xff800000")
    a("s_mov_b32 s44, 64")
    a("A_SLOWL:")
    rdK(0, 0)
    a("s_waitcnt lgkmcnt(0)")
    mfma(a, S, Kb, Q, "0")
    a(f"v_add_u32 v{vK}, 2048, v{vK}")
    a("s_nop 15")
    for i in range(0, 16, 2):
        a(f"v_max3_f32 v{P}, v{P}, v{S+i}, v{S+i+1}")
    a("s_sub_u32 s44, s44, 1")
    a("s_cmp_lg_u32 s44, 0")
    a("s_cbranch_scc1 A_SLOWL")
    setC(P)
    a(f"v_mov_b32 v{vK}, v{vL16}")
    a(f"v_mov_b32 v{vV}, v{vLV}")
    for i in range(16):
        a(f"v_mov_b32 v{O+i}, 0")
    for i in range(4):
        a(f"v_mov_b32 v{P+4+i}, 0")
    for i in range(8):
        a(f"v_mov_b32 v{Vb+8+i}, v{vOne}")
    rdK(0, 0)
    rdK(1, 2048)
    rdV(0, 0)
    a("s_waitcnt lgkmcnt(3)")
    mfma(a, S, Kb, Q, C)
    a("s_mov_b32 s43, 16384")
    a("s_mov_b32 s44, 8")
    a("s_nop 15")
    a("s_branch A_LOOP")

    a("P3_LOAD:")
    vT0, vT1 = 4, 5
    a("s_setprio 3")
    gemm_src(a, 1024, vT0, vT1, 6, 7)
    a("s_lshl_b32 s54, s52, 2")
    a("s_lshr_b32 s55, s53, 3")
    a("s_add_u32 s54, s54, s55")
    a("s_and_b32 s56, s53, 7")
    a("s_lshl_b32 s57, s55, 1")
    a("s_add_u32 s57, s57, s56")
    a("s_lshl_b32 s58, s3, 14")
    a("s_lshl_b32 s59, s56, 7")
    a("s_add_u32 s58, s58, s59")
    a("s_lshl_b32 s59, s3, 16")
    a("s_lshl_b32 s60, s54, 11")
    a("s_add_u32 s59, s59, s60")
    a("s_lshl_b32 s60, s3, 12")
    srd(a, 32, pWO, 512 * 1024)
    a("s_lshl_b32 s61, s54, 2")
    a("s_add_u32 s61, s61, s3")
    a("s_lshl_b32 s61, s61, 7")
    a(f"s_add_u32 s61, s61, {F_O}")
    a("v_and_b32 v6, 15, v1")
    a("v_lshlrev_b32 v6, 3, v6")
    lds_spin(a, "P3_DONE", vF, 32, 1, 110, 62)
    stamp(a, 9)
    for c in range(8):
        a(f"s_add_u32 s63, s57, {c}")
        a("s_and_b32 s63, s63, 7")
        a("s_lshl_b32 s63, s63, 16")
        a(f"s_add_u32 m0, s60, {c*16384}")
        a("s_add_u32 s63, s63, s58")
        a(f"buffer_load_dwordx4 v{vT0}, {sr(32)}, s63 offen lds")
        a(f"s_add_u32 m0, s60, {c*16384 + 1024}")
        a("s_nop 0")
        a(f"buffer_load_dwordx4 v{vT1}, {sr(32)}, s63 offen lds")
    poll(a, "P3_POLL", 1, 6, 36, "s61", 8, vTag, 62, 1)
    stamp(a, 10)
    for c in range(8):
        a(f"s_add_u32 s63, s57, {c}")
        a("s_and_b32 s63, s63, 7")
        a("s_lshl_b32 s63, s63, 18")
        a(f"s_add_u32 m0, s60, {c*16384 + 2048}")
        a("s_add_u32 s63, s63, s59")
        a(f"buffer_load_dwordx4 v{vL16}, {sr(28)}, s63 offen sc1 lds")
        a(f"buffer_load_dwordx4 v{vL16}, {sr(28)}, s63 offen offset:1024 sc1 lds")
        if c >= 3 and c % 2 == 1:
            a("s_waitcnt vmcnt(4)")
            a("s_barrier")
    a("s_waitcnt vmcnt(0)")
    a("s_barrier")
    stamp(a, 11)
    endprof(a)
    a("s_endpgm")

    a("P1_M:")
    a("s_sub_u32 s48, s3, 8")
    a("s_lshl_b32 s49, s48, 13")
    a(f"s_add_u32 s49, s49, {MREG}")
    a("v_mov_b32 v10, s49")
    for i in range(4):
        a(f"v_mov_b32 v{12+i}, 0")
    a("ds_write_b128 v10, v[12:15] offset:6144")
    a("ds_write_b128 v10, v[12:15] offset:6160")
    a("s_cmp_eq_u32 s3, 8")
    a("s_cbranch_scc1 P1_LN")
    a("s_mul_i32 s66, s2, 22016")
    a("s_sub_u32 s67, s48, 1")
    a("s_mul_i32 s67, s67, 7296")
    a("s_add_u32 s66, s66, s67")
    a("s_waitcnt lgkmcnt(0)")
    srd(a, 36, pWS, SZ_F, WS_F)
    a(f"s_add_u32 s66, s66, s{pW1}")
    a(f"s_addc_u32 s67, s{pW1+1}, 0")
    a("s_cmp_eq_u32 s3, 9")
    a("s_cbranch_scc0 P1_H")
    a(f"v_mov_b32 v2, {F_E}")
    a(f"buffer_load_dwordx2 v[4:5], v2, {sr(36)}, 0 offen sc1")
    a("v_lshlrev_b32 v3, 2, v1")
    a(f"v_add_u32 v3, {L_KVF}, v3")
    a("s_mov_b64 exec, 0xffffff")
    a("ds_write_b32 v3, v12")
    a("s_mov_b64 exec, -1")
    a("s_mov_b32 s56, 0x9e3779b1")
    a(f"v_mov_b32 v2, {L_TAG}")
    a("s_waitcnt vmcnt(0)")
    a("v_mul_lo_u32 v4, v4, s56")
    a("v_add_u32 v4, 1, v4")
    a("v_add_u32 v5, 0x7f4a7c15, v5")
    a("ds_write_b64 v2, v[4:5]")
    a("s_waitcnt lgkmcnt(0)")
    a("P1_H:")
    for c in range(8):
        a("s_barrier")
        if c < 7:
            spf(a, 7 * c, 7)
        else:
            spf(a, 49, 9)
    get_tag(a, vTag, 2)
    a("s_branch MLP")

    a("P1_LN:")
    raw, gwr, X, GW, SUM, DOT = 4, 36, 40, 104, 112, 120
    a("s_lshl_b32 s56, s54, 3")
    a("s_add_u32 s56, s56, s55")
    a("s_lshl_b32 s57, s56, 13")
    a("v_lshlrev_b32 v2, 4, v1")
    a("s_add_u32 s58, s57, 4096")
    a("s_waitcnt lgkmcnt(0)")
    srd(a, 28, pX, 2 * MB)
    srd(a, 32, pGW, 1024)
    for r in range(8):
        a(f"buffer_load_dwordx4 {vr(raw+4*r,4)}, v2, {sr(28)}, s{57 + r//4} offen offset:{(r%4)*1024}")
    a(f"buffer_load_dwordx4 {vr(gwr,4)}, v2, {sr(32)}, 0 offen")
    srd(a, 28, pWS, 2 * MB, WS_HT)
    srd(a, 32, pWS, 8192, WS_G)
    srd(a, 36, pWS, SZ_F, WS_F)
    a("s_mov_b32 s59, 0xffff0000")
    work = []
    w = work.append
    w("s_waitcnt vmcnt(0)")
    for i in range(4):
        w(f"v_lshlrev_b32 v{GW+2*i}, 16, v{gwr+i}")
        w(f"v_and_b32 v{GW+2*i+1}, s59, v{gwr+i}")
    for r in range(8):
        for i in range(4):
            w(f"v_lshlrev_b32 v{X+8*r+2*i}, 16, v{raw+4*r+i}")
            w(f"v_and_b32 v{X+8*r+2*i+1}, s59, v{raw+4*r+i}")
    T = raw
    for r in range(8):
        w(f"v_pk_add_f32 {vr(T+4*r,2)}, {vr(X+8*r,2)}, {vr(X+8*r+2,2)}")
        w(f"v_pk_mul_f32 {vr(T+4*r+2,2)}, {vr(X+8*r,2)}, {vr(GW,2)}")
    for e in (2, 4, 6):
        for r in range(8):
            if e >= 4:
                w(f"v_pk_add_f32 {vr(T+4*r,2)}, {vr(T+4*r,2)}, {vr(X+8*r+e,2)}")
            w(f"v_pk_fma_f32 {vr(T+4*r+2,2)}, {vr(X+8*r+e,2)}, {vr(GW+e,2)}, {vr(T+4*r+2,2)}")
    for r in range(8):
        w(f"v_add_f32 v{SUM+r}, v{T+4*r}, v{T+4*r+1}")
        w(f"v_add_f32 v{DOT+r}, v{T+4*r+2}, v{T+4*r+3}")

    def reduce(regs):
        for mod in ("row_shr:1 row_mask:0xf", "row_shr:2 row_mask:0xf", "row_shr:4 row_mask:0xf", "row_shr:8 row_mask:0xf",
                    "row_bcast:15 row_mask:0xa", "row_bcast:31 row_mask:0xc"):
            for r in regs:
                w(f"v_add_f32_dpp v{r}, v{r}, v{r} {mod} bank_mask:0xf")

    reduce(list(range(SUM, SUM + 8)))
    for r in range(8):
        w(f"v_mul_f32 v{SUM+r}, {f32(1/512)}, v{SUM+r}")
    for r in range(8):
        w(f"v_readlane_b32 s{40+r}, v{SUM+r}, 63")
    for e in range(8):
        for r in range(8):
            w(f"v_subrev_f32 v{X+8*r+e}, s{40+r}, v{X+8*r+e}")
    for r in range(8):
        w(f"v_pk_mul_f32 {vr(T+4*r,2)}, {vr(X+8*r,2)}, {vr(X+8*r,2)}")
    for e in (2, 4, 6):
        for r in range(8):
            w(f"v_pk_fma_f32 {vr(T+4*r,2)}, {vr(X+8*r+e,2)}, {vr(X+8*r+e,2)}, {vr(T+4*r,2)}")
    for r in range(8):
        w(f"v_add_f32 v{SUM+r}, v{T+4*r}, v{T+4*r+1}")
    reduce(list(range(SUM, SUM + 8)))
    w(f"v_mov_b32 v3, {f32(1e-5)}")
    w(f"s_mov_b32 s60, {f32(1/512)}")
    for r in range(8):
        w(f"v_fma_f32 v{SUM+r}, v{SUM+r}, s60, v3")
    for r in range(8):
        w(f"v_rsq_f32 v{SUM+r}, v{SUM+r}")
    w("s_nop 0")
    for r in range(8):
        w(f"v_readlane_b32 s{40+r}, v{SUM+r}, 63")
    w("v_and_b32 v3, 31, v1")
    w("v_lshlrev_b32 v3, 7, v3")
    w(f"v_lshrrev_b32 v{GW}, 5, v1")
    w(f"v_lshl_add_u32 v3, v{GW}, 13, v3")
    w(f"v_and_b32 v{GW}, 7, v1")
    w(f"v_lshl_add_u32 v3, v{GW}, 4, v3")
    w(f"v_add_u32 v3, {MREG}, v3")
    w(f"v_lshrrev_b32 v{GW+1}, 3, v1")
    w(f"v_xor_b32 v{GW}, v{GW}, v{GW+1}")
    w(f"v_lshlrev_b32 v{GW+1}, 7, v{GW+1}")
    w(f"v_lshl_add_u32 v{GW}, v{GW}, 4, v{GW+1}")
    w(f"v_add_u32 v{GW}, {MREG}, v{GW}")
    for e in range(8):
        for r in range(8):
            w(f"v_mul_f32 v{X+8*r+e}, s{40+r}, v{X+8*r+e}")
        for p in range(4):
            w(f"v_cvt_pk_bf16_f32 v{raw+4*e+p}, v{X+16*p+e}, v{X+16*p+8+e}")
        w(f"v_xor_b32 v{GW+2}, {16*e}, v3")
        w(f"ds_write_b128 v{GW+2}, {vr(raw+4*e,4)}")
    w("s_waitcnt lgkmcnt(0)")
    for j in range(8):
        w(f"ds_read_b128 {vr(raw+4*j,4)}, v{GW} offset:{(j//4)*8192 + (j%4)*1024}")
    for j in range(8):
        w(f"s_waitcnt lgkmcnt({7-j})")
        w(f"buffer_store_dwordx4 {vr(raw+4*j,4)}, v2, {sr(28)}, s{57 + j//4} offen offset:{(j%4)*1024} sc1")
    reduce(list(range(DOT, DOT + 8)))
    for r in range(8):
        w(f"v_mul_f32 v{DOT+r}, {f32(-LOG2E)}, v{DOT+r}")
    for r in range(8):
        w(f"v_exp_f32 v{DOT+r}, v{DOT+r}")
    for r in range(8):
        w(f"v_add_f32 v{DOT+r}, 1.0, v{DOT+r}")
    for r in range(8):
        w(f"v_rcp_f32 v{DOT+r}, v{DOT+r}")
    w("s_lshl_b32 s60, s56, 5")
    w("v_mov_b32 v3, 0")
    w("s_mov_b32 exec_lo, 0")
    w("s_mov_b32 exec_hi, 0x80000000")
    w(f"buffer_store_dwordx4 {vr(DOT,4)}, v3, {sr(32)}, s60 offen sc1")
    w(f"buffer_store_dwordx4 {vr(DOT+4,4)}, v3, {sr(32)}, s60 offen offset:16 sc1")
    w("s_mov_b64 exec, -1")
    per = int(next((o[3:] for o in OPT if o.startswith('per')), 90))
    nb = 0
    for i, t in enumerate(work):
        if i % per == 0:
            a("s_barrier")
            nb += 1
        a(t)
    while nb < 8:
        a("s_barrier")
        nb += 1
    assert nb == 8, nb
    get_tag(a, vTag, 2)
    a("s_lshl_b32 s60, s56, 3")
    a("s_waitcnt lgkmcnt(0)")
    publish(a, 36, 60, vTag, 2)

    a("MLP:")
    stamp(a, 1)
    PD = 3
    vT0, vT1, vD0, vD1, vR0, vR1 = 4, 5, 6, 7, 8, 9
    Tf, Df, acc, tmp = 12, 28, 64, 128
    vKF = 136
    a("s_setprio 3")
    a("s_and_b32 s54, s53, 7")
    a("s_lshr_b32 s55, s53, 3")
    a("s_lshl_b32 s56, s55, 3")
    a("s_add_u32 s56, s56, s52")
    a("s_and_b32 s50, s48, 1")
    a("s_lshr_b32 s51, s48, 1")
    a("v_lshlrev_b32 v2, 4, v1")
    a("v_lshrrev_b32 v10, 5, v1")
    a("v_and_b32 v11, 31, v1")
    a("v_lshlrev_b32 v11, 4, v11")
    a("v_lshl_add_u32 v3, v10, 13, v11")
    a("s_lshl_b32 s57, s48, 2")
    a(f"s_add_u32 s57, s57, {L_KVF}")
    a(f"v_mov_b32 v{vKF}, s57")
    a(f"v_mov_b32 v{vKF+1}, 1")
    srd(a, 28, pW1, 2048 * 2752)
    srd(a, 32, pWS, 2 * MB, WS_HT)
    srd(a, 40, pWS, 4 * MB, WS_KV)
    a("s_waitcnt lgkmcnt(0)")

    def kvrest(lab):
        a(f"v_and_b32 v{tmp+4}, 7, v1")
        a(f"v_lshlrev_b32 v{tmp+4}, 2, v{tmp+4}")
        a(f"v_add_u32 v{tmp+4}, {L_C0F}, v{tmp+4}")
        lds_spin(a, lab + "C", tmp + 4, 0, 1, tmp, 45, 2)
        a("s_lshl_b32 s44, s52, 10")
        a("s_and_b32 s45, s53, 2")
        a("s_lshl_b32 s45, s45, 8")
        a("s_add_u32 s44, s44, s45")
        a(f"s_add_u32 s44, s44, {F_QKV}")
        a(f"v_lshlrev_b32 v{tmp+4}, 3, v1")
        poll(a, lab, 1, tmp + 4, 36, "s44", tmp, vTag, 45, 2)
        a("s_lshl_b32 s44, s52, 2")
        a("s_and_b32 s45, s53, 3")
        a("s_add_u32 s44, s44, s45")
        a("s_lshl_b32 s44, s44, 17")
        a("s_lshr_b32 s45, s53, 2")
        a("s_lshl_b32 s45, s45, 14")
        a("s_lshl_b32 s46, s48, 12")
        for j in range(7):
            a("s_add_u32 s45, s45, 16384")
            a("s_cmp_ge_u32 s45, 0x20000")
            a("s_cselect_b32 s45, 16384, s45")
            a("s_add_u32 s47, s45, s46")
            a("s_mov_b32 m0, s47")
            a("s_add_u32 s47, s47, s44")
            for n in range(4):
                a(f"buffer_load_dwordx4 v2, {sr(40)}, s47 offen offset:{n*1024} sc1 lds")

    EARLY = next((int(o[5:]) for o in OPT if o.startswith("early")), None)
    if EARLY is None:
        kvrest("M_KV")
    stamp(a, 2)
    a("s_cmp_ge_u32 s56, 22")
    a("s_cbranch_scc1 M_IDLE")
    a(f"s_mul_i32 s57, s48, {512*2752}")
    a("s_lshl_b32 s58, s56, 7")
    a("s_add_u32 s57, s57, s58")
    a("s_lshl_b32 s58, s48, 19")
    a("s_lshl_b32 s59, s54, 10")
    a("s_add_u32 s58, s58, s59")
    a("s_lshl_b32 s60, s51, 6")
    a("s_lshl_b32 s61, s50, 9")
    gemm_src(a, 2752, vT0, vT1, 10, 11)
    a(f"v_xor_b32 v{vD0}, s61, v3")
    a(f"v_xor_b32 v{vD1}, 512, v{vD0}")
    g1 = Gemm(a, 32, PD, 28, 32, 57, 58, 49, 2752, 16384, True, vT0, vT1, vD0, vD1, vR0, vR1, 512, Tf, Df, acc, " sc1", 63)
    a("s_mul_i32 s61, s55, 11")
    a("s_lshl_b32 s62, s54, 2")
    a("s_add_u32 s61, s61, s62")
    a("s_and_b32 s61, s61, 31")
    if "norot" in OPT:
        a("s_mov_b32 s61, 0")
    g1.setup(61)
    gemm_rd(a, 8, vR0, vR1, 49, 60, 10, 11)
    a("s_lshl_b32 s61, s48, 9")
    a("v_lshlrev_b32 v10, 3, v1")
    poll(a, "M_HT", 1, 10, 36, "s61", tmp, vTag, 62, 2)
    if EARLY is None:
        a(f"ds_write_b32 v{vKF}, v{vKF+1}")
    stamp(a, 3)
    g1.pro_T()
    g1.pro_D()

    def hook_kv():
        stamp(a, 2)
        kvrest("M_KV1")
        g1.log.extend([("K", 0)] * 28)
        stamp(a, 4)

    def hook_kvf():
        g1.wait_for([("K", 0)])
        a(f"ds_write_b32 v{vKF}, v{vKF+1}")

    if EARLY is None:
        g1.main({16: lambda: stamp(a, 4)})
    else:
        g1.main({EARLY: hook_kv, EARLY + 3: hook_kvf})
    stamp(a, 5)
    srd(a, 28, pB1, 2752)
    srd(a, 32, pWS, SZ_U, WS_U)
    a("s_lshl_b32 s61, s56, 7")
    a("s_add_u32 s61, s61, s60")
    a("v_lshrrev_b32 v10, 5, v1")
    a("v_lshlrev_b32 v10, 3, v10")
    for g in range(4):
        a(f"buffer_load_dwordx2 {vr(Df+2*g,2)}, v10, {sr(28)}, s61 offen offset:{16*g}")
    mreduce(a, "M1", acc, 49, 0, 10, 11, tmp, Df + 16, 62)
    a("s_mov_b32 s61, 0xffff0000")
    a("s_waitcnt vmcnt(0)")
    for i in range(8):
        a(f"v_lshlrev_b32 v{acc+16+2*i}, 16, v{Df+i}")
        a(f"v_and_b32 v{acc+16+2*i+1}, s61, v{Df+i}")
    for i in range(0, 16, 2):
        a(f"v_pk_add_f32 {vr(acc+i,2)}, {vr(acc+i,2)}, {vr(acc+16+i,2)}")
    gelu(a, acc, acc + 16, acc + 32, 16, 61)
    for i in range(8):
        a(f"v_cvt_pk_bf16_f32 v{Tf+i}, v{acc+2*i}, v{acc+2*i+1}")
    a("s_lshl_b32 s61, s56, 16")
    a("s_lshl_b32 s62, s51, 15")
    a("s_add_u32 s61, s61, s62")
    a("s_add_u32 s61, s61, s59")
    a("s_add_u32 s62, s61, 16384")
    a(f"buffer_store_dwordx4 {vr(Tf,4)}, v{vD0}, {sr(32)}, s61 offen sc1")
    a(f"buffer_store_dwordx4 {vr(Tf+4,4)}, v{vD0}, {sr(32)}, s62 offen sc1")
    a("s_lshl_b32 s61, s56, 2")
    a("s_add_u32 s61, s61, s48")
    a("s_lshl_b32 s61, s61, 3")
    a("s_add_u32 s61, s61, s59")
    a(f"s_add_u32 s61, s61, {F_U}")
    publish(a, 36, 61, vTag, 10)
    srd(a, 28, pW2, 1376 * 4096)
    a("s_branch M_2")
    a("M_IDLE:")
    srd(a, 28, pW2, 1376 * 4096)
    srd(a, 32, pWO, 512 * 1024)
    if EARLY is not None:
        kvrest("M_KV2")
    a("s_waitcnt vmcnt(0)")
    a(f"ds_write_b32 v{vKF}, v{vKF+1}")
    a("s_cmp_lt_u32 s55, 3")
    a("s_cbranch_scc1 M_IDLE2")
    a("s_lshl_b32 s57, s54, 2")
    a("s_add_u32 s57, s57, s48")
    a(f"s_mul_i32 s58, s57, {43*4096}")
    a("s_lshl_b32 s59, s52, 9")
    a("s_add_u32 s58, s58, s59")
    a("v_lshrrev_b32 v10, 2, v1")
    a("v_lshlrev_b32 v10, 12, v10")
    a("v_and_b32 v11, 3, v1")
    a("v_lshl_add_u32 v10, v11, 7, v10")
    for j in range(3):
        a(f"buffer_load_dword v{Tf+j}, v10, {sr(28)}, s58 offen")
        a("s_add_u32 s58, s58, 65536")
    a("s_lshl_b32 s58, s57, 14")
    a("v_lshlrev_b32 v10, 7, v1")
    a(f"buffer_load_dword v{Tf+3}, v10, {sr(32)}, s58 offen")
    a("s_add_u32 s58, s58, 8192")
    a(f"buffer_load_dword v{Tf+4}, v10, {sr(32)}, s58 offen")
    a("s_waitcnt vmcnt(0)")
    a("M_IDLE2:")
    srd(a, 32, pWS, SZ_U, WS_U)
    a("M_2:")
    stamp(a, 6)
    a("s_lshl_b32 s56, s52, 2")
    a("s_add_u32 s56, s56, s55")
    a(f"s_mul_i32 s57, s48, {22*16*4096}")
    a("s_lshl_b32 s58, s56, 7")
    a("s_add_u32 s57, s57, s58")
    a(f"s_mul_i32 s58, s48, {22*16384}")
    a("s_lshl_b32 s59, s54, 10")
    a("s_add_u32 s58, s58, s59")
    a("s_lshl_b32 s60, s50, 6")
    a("s_lshl_b32 s61, s51, 9")
    gemm_src(a, 4096, vT0, vT1, 10, 11)
    a(f"v_xor_b32 v{vD0}, s61, v3")
    a(f"v_xor_b32 v{vD1}, 512, v{vD0}")
    g2 = Gemm(a, 22, PD, 28, 32, 57, 58, 49, 4096, 16384, False, vT0, vT1, vD0, vD1, vR0, vR1, 1024, Tf, Df, acc, " sc1", 63)
    a("s_mul_i32 s61, s55, 11")
    a("s_lshr_b32 s61, s61, 1")
    if "norot" in OPT or "norot2" in OPT:
        a("s_mov_b32 s61, 0")
    g2.setup(61)
    g2.pro_T()
    gemm_rd(a, 4, vR0, vR1, 49, 60, 10, 11)
    a("s_mul_i32 s61, s48, 11")
    a("s_lshr_b32 s61, s61, 1")
    a("s_lshl_b32 s61, s61, 5")
    a("s_add_u32 s61, s61, s59")
    a(f"s_add_u32 s61, s61, {F_U}")
    a("v_min_u32 v10, 23, v1")
    a("v_lshlrev_b32 v10, 3, v10")
    poll(a, "M_U", 1, 10, 36, "s61", tmp, vTag, 62, 6)
    stamp(a, 7)
    g2.pro_D()
    g2.main()
    stamp(a, 8)
    srd(a, 28, pB2, 4096)
    srd(a, 32, pWS, 8192, WS_G)
    a("s_lshl_b32 s61, s56, 7")
    a("s_add_u32 s61, s61, s60")
    a("s_lshl_b32 s62, s61, 1")
    a("v_and_b32 v10, 31, v1")
    a("v_lshlrev_b32 v11, 2, v10")
    a("v_lshlrev_b32 v10, 1, v10")
    a(f"buffer_load_ushort v{Df}, v10, {sr(28)}, s61 offen")
    a(f"buffer_load_dword v{Df+1}, v11, {sr(32)}, s62 offen sc1")
    mreduce(a, "M2", acc, 49, 16, 10, 11, tmp, Df + 16, 62)
    a("s_waitcnt vmcnt(0)")
    G, Y = Df + 1, acc
    a(f"v_lshlrev_b32 v{Df}, 16, v{Df}")
    a(f"v_sub_f32 v{Df+2}, 1.0, v{G}")
    for i in range(16):
        a(f"v_add_f32 v{Y+i}, v{Y+i}, v{Df}")
    for i in range(16):
        a(f"v_mul_f32 v{Y+i}, v{Y+i}, v{Df+2}")
    stamp(a, 9)

    vR, vO = 4, 5
    Wf, Of, A3 = 96, 128, 80
    a("s_lshl_b32 s60, s51, 6")
    gemm_rd(a, 4, vR, None, None, 60, 10, 11)
    a("s_lshl_b32 s60, s50, 10")
    a("s_add_u32 s60, s60, 2048")
    a(f"v_add_u32 v{vO}, s60, v2")
    a(f"v_add_u32 v6, 65536, v{vR}")
    a(f"v_add_u32 v7, 65536, v{vO}")
    srd(a, 28, pOUT, 2 * MB)
    a("v_and_b32 v9, 31, v1")
    a("v_lshlrev_b32 v9, 10, v9")
    a("v_lshrrev_b32 v10, 5, v1")
    a("v_lshl_add_u32 v9, v10, 4, v9")
    a("s_lshl_b32 s57, s56, 16")
    a("s_lshl_b32 s58, s50, 15")
    a("s_add_u32 s57, s57, s58")
    a("s_lshl_b32 s58, s54, 7")
    a("s_add_u32 s57, s57, s58")
    a("s_lshl_b32 s58, s51, 6")
    a("s_add_u32 s57, s57, s58")

    def rd3(t):
        off = (t % 16) * 4096
        r, o = (vR, vO) if t < 16 else (6, 7)
        b = t % 8
        a(f"ds_read_b64_tr_b16 {vr(Wf+4*b,2)}, v{r} offset:{off}")
        a(f"ds_read_b64_tr_b16 {vr(Wf+4*b+2,2)}, v{r} offset:{off+1024}")
        a(f"ds_read_b128 {vr(Of+4*b,4)}, v{o} offset:{off}")

    for c in range(4):
        a("s_barrier")
        if c in (0, 3):
            stamp(a, 10 + c // 3)
        for j in range(4):
            rd3(8 * c + j)
        for j in range(8):
            t = 8 * c + j
            if j + 4 < 8:
                rd3(t + 4)
            a(f"s_waitcnt lgkmcnt({3*min(4, 7-j)})")
            mfma(a, A3, Wf + 4 * j, Of + 4 * j, "0" if t == 0 else None)
    stamp(a, 12)
    for i in range(16):
        a(f"v_fmac_f32 v{Y+i}, v{A3+i}, v{G}")
    for i in range(8):
        a(f"v_cvt_pk_bf16_f32 v{Tf+i}, v{Y+2*i}, v{Y+2*i+1}")
    for p in range(2):
        a(f"v_permlane32_swap_b32 v{Tf+4*p}, v{Tf+4*p+2}")
        a(f"v_permlane32_swap_b32 v{Tf+4*p+1}, v{Tf+4*p+3}")
        a(f"buffer_store_dwordx4 {vr(Tf+4*p,4)}, v9, {sr(28)}, s57 offen offset:{32*p}")
    a("s_lshl_b32 s58, s2, 4")
    a("s_add_u32 s58, s58, s48")
    a("s_cmp_lg_u32 s58, 0")
    a("s_cbranch_scc1 M_END")
    a("v_lshlrev_b32 v10, 18, v1")
    a(f"s_mov_b32 s58, {F_E}")
    a(f"buffer_store_dwordx2 {vr(vTag,2)}, v10, {sr(36)}, s58 offen sc1")
    a("M_END:")
    endprof(a)
    a("s_endpgm")
    return dict(name=nm, vgpr=168, grid=256, block=768, lds=163840)


def build(path, verbose=False, aslist=False):
    ref = open("cdna_kernels/" + NAME + ".s.ref").read().split("\n")
    hdr = [l for l in ref if l.startswith(";") and "@launch" not in l and "Override launch" not in l and "grid=ceil" not in l]
    a = Asm()
    i = kernel(a)
    a.fix(verbose)
    s = "\n".join(hdr) + "\n"
    if aslist:
        s += f"; @launch kernel={i['name']} grid=({i['grid']},1,1) block=({i['block']},1,1) lds={i['lds']}\n"
    else:
        s += f"; @launch grid=({i['grid']},1,1) block=({i['block']},1,1) lds={i['lds']}\n"
    s += '.amdgcn_target "amdgcn-amd-amdhsa--gfx950"\n.text\n'
    s += a.text()
    s += '.section .rodata,"a"\n'
    s += f""".p2align 6
.amdhsa_kernel {i['name']}
  .amdhsa_next_free_vgpr {i['vgpr']}
  .amdhsa_next_free_sgpr {102 if PROF else 70}
  .amdhsa_accum_offset {i['vgpr']}
  .amdhsa_group_segment_fixed_size 0
  .amdhsa_kernarg_size 96
  .amdhsa_user_sgpr_count 2
  .amdhsa_user_sgpr_kernarg_segment_ptr 1
  .amdhsa_system_sgpr_workgroup_id_x 1
.end_amdhsa_kernel
"""
    open(path, "w").write(s)


if __name__ == "__main__":
    out = sys.argv[1] if len(sys.argv) > 1 and not sys.argv[1][0] in "-+" else "cdna_kernels/" + NAME + ".s"
    PROF = "-p" in sys.argv
    OPT = set(x[1:] for x in sys.argv if x.startswith("+"))
    build(out, verbose="-v" in sys.argv, aslist="-l" in sys.argv)
```

```python
import sys, math, struct
from asmlib import Asm

NAME = "gated_mix__softmax_full_mha__mixer_token_mlp__prompt"
MB = 1 << 20
WS_Q, WS_KV, WS_HT, WS_U, WS_O, WS_G, WS_F = 0, 2 * MB, 6 * MB, 8 * MB, 10 * MB, 12 * MB, 13 * MB
SZ_U = 172 * 8192
F_HT, F_E, F_QKV, F_U, F_O = 0, 8192, 131072, 262144, 524288
SZ_F = 786432
PROF = False
OPT = set()
WS_P = 16 * MB
LOG2E = math.log2(math.e)
pX, pWQKV, pWO, pW1, pB1, pW2, pB2, pGW, pOUT, pWS = 4, 6, 8, 12, 14, 16, 18, 20, 22, 26
MREG = 131072
LF = MREG + 6144 + 64
L_KVF, L_PUB, L_C0F, L_DONE, L_C1F, L_ISS, L_TAG = LF, LF + 16, LF + 32, LF + 64, LF + 96, LF + 128, LF + 144
PR1, PR0 = 4, 2
pDBG = 24


def f32(x):
    return "0x%08x" % struct.unpack("<I", struct.pack("<f", x))[0]


def srd(a, d, base, size, add=0):
    if add:
        a(f"s_add_u32 s{d}, s{base}, {hex(add)}")
        a(f"s_addc_u32 s{d+1}, s{base+1}, 0")
    else:
        a(f"s_mov_b32 s{d}, s{base}")
        a(f"s_mov_b32 s{d+1}, s{base+1}")
    a(f"s_mov_b32 s{d+2}, {hex(size)}")
    a(f"s_mov_b32 s{d+3}, 0x20000")


def vr(b, n):
    return f"v[{b}:{b+n-1}]"


def sr(b, n=4):
    return f"s[{b}:{b+n-1}]"


def mfma(a, D, A, B, C=None):
    c = vr(D, 16) if C is None else (C if isinstance(C, str) else vr(C, 16))
    a(f"v_mfma_f32_32x32x16_bf16 {vr(D,16)}, {vr(A,4)}, {vr(B,4)}, {c}")


def stamp(a, i):
    if PROF:
        a(f"s_memtime s[{72+2*i}:{73+2*i}]")


def endprof(a, n=12):
    if not PROF:
        return
    a("s_waitcnt vmcnt(0)")
    a(f"s_memtime s[{72+2*(n+1)}:{73+2*(n+1)}]")
    a("s_memrealtime s[100:101]")
    a("s_mov_b64 exec, -1")
    srd(a, 28, pWS, MB, WS_P)
    a("s_lshl_b32 s52, s2, 4")
    a("s_add_u32 s52, s52, s3")
    a("s_lshl_b32 s52, s52, 7")
    a("s_waitcnt lgkmcnt(0)")
    a("v_mov_b32 v2, 0")
    a("v_mov_b32 v3, s70")
    a("buffer_store_dword v3, v2, s[28:31], s52 offen")
    a("v_mov_b32 v3, s100")
    a("buffer_store_dword v3, v2, s[28:31], s52 offen offset:4")
    for i in range(1, n + 2):
        a(f"s_sub_u32 s53, s{72+2*i}, s72")
        a("v_mov_b32 v3, s53")
        a(f"buffer_store_dword v3, v2, s[28:31], s52 offen offset:{4+4*i}")


def gemm_src(a, strideT, vT0, vT1, t0, t1):
    a(f"v_lshrrev_b32 v{t0}, 3, v1")
    a(f"v_mul_u32_u24 v{t0}, {strideT}, v{t0}")
    a(f"v_bfe_u32 v{t1}, v1, 4, 1")
    a(f"v_lshlrev_b32 v{t1}, 2, v{t1}")
    a(f"v_xor_b32 v{t1}, v{t1}, v1")
    a(f"v_and_b32 v{t1}, 7, v{t1}")
    a(f"v_lshl_add_u32 v{vT0}, v{t1}, 4, v{t0}")
    a(f"v_add_u32 v{vT1}, {8*strideT}, v{vT0}")


def gemm_rd(a, hmul, vR0, vR1, sL, sSwap, t0, t1):
    a(f"v_lshrrev_b32 v{t0}, 5, v1")
    a(f"v_mul_u32_u24 v{t0}, {hmul}, v{t0}")
    a(f"v_bfe_u32 v{t1}, v1, 2, 2")
    a(f"v_add_u32 v{t0}, v{t0}, v{t1}")
    a(f"v_lshlrev_b32 v{t0}, 7, v{t0}")
    a(f"v_bfe_u32 v{t1}, v1, 3, 1")
    a(f"v_lshl_add_u32 v{t0}, v{t1}, 6, v{t0}")
    a(f"v_bfe_u32 v{t1}, v1, 4, 1")
    a(f"v_lshl_add_u32 v{t0}, v{t1}, 5, v{t0}")
    a(f"v_and_b32 v{t1}, 3, v1")
    a(f"v_lshl_add_u32 v{t0}, v{t1}, 3, v{t0}")
    if sL is None:
        a(f"v_xor_b32 v{vR0}, s{sSwap}, v{t0}")
        return
    a(f"v_xor_b32 v{t0}, s{sSwap}, v{t0}")
    a(f"v_add_u32 v{vR0}, s{sL}, v{t0}")
    a(f"v_xor_b32 v{t0}, 64, v{t0}")
    a(f"v_add_u32 v{vR1}, s{sL}, v{t0}")


def lds_spin(a, lab, vaddr, off, want, vt, cnt, sleep=1):
    a(f"s_mov_b32 s{cnt}, 0x100000")
    a(f"{lab}:")
    a(f"ds_read_b32 v{vt}, v{vaddr} offset:{off}")
    a("s_waitcnt lgkmcnt(0)")
    a(f"v_cmp_ne_u32 vcc, {want}, v{vt}")
    a(f"s_sub_u32 s{cnt}, s{cnt}, 1")
    a(f"s_cbranch_scc1 {lab}_X")
    a(f"s_cbranch_vccz {lab}_X")
    a(f"s_sleep {sleep}")
    a(f"s_branch {lab}")
    a(f"{lab}_X:")


def poll(a, lab, n, vaddr, sF, soff, vt, vTag, cnt, sleep, extra=None, mask=None, save=None):
    a(f"s_mov_b32 s{cnt}, 0x40000")
    a(f"{lab}:")
    if n == 1:
        a(f"buffer_load_dwordx2 {vr(vt,2)}, v{vaddr}, {sr(sF)}, {soff} offen sc1")
    else:
        a(f"buffer_load_dwordx4 {vr(vt,4)}, v{vaddr}, {sr(sF)}, {soff} offen sc1")
    if n == 4:
        a(f"buffer_load_dwordx4 {vr(vt+4,4)}, v{vaddr}, {sr(sF)}, {soff} offen offset:16 sc1")
    a("s_waitcnt vmcnt(0)")
    if extra:
        a(extra)
    for i in range(2 * n):
        a(f"v_xor_b32 v{vt+i}, v{vt+i}, v{vTag + i % 2}")
    k = 2 * n
    i = 1
    while i < k:
        if i + 1 < k:
            a(f"v_or3_b32 v{vt}, v{vt}, v{vt+i}, v{vt+i+1}")
            i += 2
        else:
            a(f"v_or_b32 v{vt}, v{vt}, v{vt+i}")
            i += 1
    a(f"v_cmp_ne_u32 vcc, 0, v{vt}")
    a(f"s_sub_u32 s{cnt}, s{cnt}, 1")
    a(f"s_cbranch_scc1 {lab}_X")
    if mask is None:
        a(f"s_cbranch_vccz {lab}_X")
    else:
        a(f"s_and_b32 s{save}, vcc_lo, {mask}")
        a(f"s_cbranch_scc0 {lab}_X")
    a(f"s_sleep {sleep}")
    a(f"s_branch {lab}")
    a(f"{lab}_X:")
    if mask is not None:
        a(f"s_mov_b32 s{save}, vcc_lo")


def spoll(a, lab, words, dst, sF, sTag, cnt, sleep):
    a(f"s_mov_b32 s{cnt}, 0x40000")
    a(f"{lab}:")
    for i, (so, imm) in enumerate(words):
        a(f"s_buffer_load_dwordx2 s[{dst+2*i}:{dst+2*i+1}], {sr(sF)}, s{so} offset:{imm} glc")
    a("s_waitcnt lgkmcnt(0)")
    for i in range(len(words)):
        a(f"s_xor_b64 s[{dst+2*i}:{dst+2*i+1}], s[{dst+2*i}:{dst+2*i+1}], s[{sTag}:{sTag+1}]")
        if i:
            a(f"s_or_b64 s[{dst}:{dst+1}], s[{dst}:{dst+1}], s[{dst+2*i}:{dst+2*i+1}]")
    a(f"s_cbranch_scc0 {lab}_X")
    a(f"s_sub_u32 s{cnt}, s{cnt}, 1")
    a(f"s_cbranch_scc1 {lab}_X")
    a(f"s_sleep {sleep}")
    a(f"s_branch {lab}")
    a(f"{lab}_X:")


def publish(a, sF, soff, vTag, vt):
    a(f"v_lshlrev_b32 v{vt}, 20, v1")
    a("s_waitcnt vmcnt(0)")
    a(f"buffer_store_dwordx2 {vr(vTag,2)}, v{vt}, {sr(sF)}, s{soff} offen sc1")


def get_tag(a, vTag, vt):
    a(f"v_mov_b32 v{vt}, {L_TAG}")
    a(f"ds_read_b64 {vr(vTag,2)}, v{vt}")


def opt(name, default):
    return next((int(o[len(name):]) for o in OPT if o.startswith(name)), default)


def lds_wait(a, lab, base, n, vA, vt, cnt, sleep=1):
    a(f"v_and_b32 v{vA}, {n-1}, v1")
    a(f"v_lshlrev_b32 v{vA}, 2, v{vA}")
    a(f"v_add_u32 v{vA}, {base}, v{vA}")
    lds_spin(a, lab, vA, 0, 1, vt, cnt, sleep)


class Gemm:
    def __init__(s, a, nsteps, P, srdT, srdD, sT, sD, sL, strideT, stepD, t_is_A, vT0, vT1, vD0, vD1, vR0, vR1, qoff,
                 Tf, Df, acc, dflags, sW, G):
        s.__dict__.update(locals())
        s.log = []

    def idx(s, i, dst, base, stride):
        a = s.a
        g0 = i // s.G * s.G
        gs = min(s.G, s.nsteps - g0)
        assert gs & (gs - 1) == 0
        a(f"s_add_u32 s{dst}, s{s.sW}, {i - g0}")
        a(f"s_and_b32 s{dst}, s{dst}, {gs - 1}")
        a(f"s_add_u32 s{dst}, s{dst}, {g0}")
        a(f"s_mul_i32 s{dst}, s{dst}, {stride}")
        a(f"s_add_u32 s{dst}, s{dst}, s{base}")

    def LD1(s, i, half):
        if i >= s.nsteps:
            return
        if "nold" in OPT and i > 3:
            s.a("s_sleep 1")
            return
        d = s.Df + 8 * (i % (s.P + 1)) + 4 * half
        if not half:
            s.idx(i, s.sW + 2, s.sD, s.stepD)
        s.a(f"buffer_load_dwordx4 {vr(d,4)}, v{(s.vD0, s.vD1)[half]}, {sr(s.srdD)}, s{s.sW+2} offen{s.dflags}")
        s.log.append(("D", i))

    def DMA1(s, i, half):
        if i >= s.nsteps:
            return
        if "nold" in OPT and i > 3:
            s.a("s_sleep 1")
            return
        a = s.a
        sl = (i % s.P) * 2048 + 1024 * half
        a(f"s_add_u32 m0, s{s.sL}, {sl}")
        if not half:
            s.idx(i, s.sW + 1, s.sT, 16 * s.strideT)
        else:
            a("s_nop 0")
        a(f"buffer_load_dwordx4 v{(s.vT0, s.vT1)[half]}, {sr(s.srdT)}, s{s.sW+1} offen lds")
        s.log.append(("T", i))

    def rd(s, i):
        sl = (i % s.P) * 2048
        t = s.Tf + 8 * (i % 2)
        for b, vR in ((0, s.vR0), (1, s.vR1)):
            for q in range(2):
                s.a(f"ds_read_b64_tr_b16 {vr(t+4*b+2*q,2)}, v{vR} offset:{sl+q*s.qoff}")

    def wait_for(s, items):
        if "nold" in OPT:
            s.a("s_waitcnt vmcnt(0)")
            return
        last = max(idx for idx, it in enumerate(s.log) if it in items)
        s.a(f"s_waitcnt vmcnt({min(63, len(s.log) - 1 - last)})")

    def pro_T(s):
        for j in range(s.P):
            s.DMA1(j, 0)
            s.DMA1(j, 1)

    def pro_D(s):
        for j in range(s.P):
            s.LD1(j, 0)
            s.LD1(j, 1)

    def main(s, hooks={}):
        a = s.a
        s.wait_for([("T", 0)])
        s.rd(0)
        a("s_waitcnt lgkmcnt(0)")
        s.DMA1(s.P, 0)
        s.DMA1(s.P, 1)
        if "mp3" not in OPT:
            a("s_setprio 0")
        n = s.nsteps
        for i in range(n):
            if i in hooks:
                hooks[i]()
            need = [("D", i)] + ([("T", i + 1)] if i + 1 < n else [])
            s.wait_for(need)
            t, d = s.Tf + 8 * (i % 2), s.Df + 8 * (i % (s.P + 1))
            for k in range(4):
                x, y = k // 2, k % 2
                C = "0" if i == 0 else None
                if "nomm" in OPT and i > 0:
                    pass
                elif s.t_is_A:
                    mfma(a, s.acc + 16 * k, t + 4 * x, d + 4 * y, C)
                else:
                    mfma(a, s.acc + 16 * k, d + 4 * x, t + 4 * y, C)
                if k == 0:
                    if i + 1 < n:
                        s.rd(i + 1)
                    s.LD1(i + s.P, 0)
                elif k == 1:
                    s.LD1(i + s.P, 1)
                elif k == 2:
                    if i + 1 < n:
                        a("s_waitcnt lgkmcnt(0)")
                    s.DMA1(i + 1 + s.P, 0)
                else:
                    s.DMA1(i + 1 + s.P, 1)
        a("s_setprio 3")


def gelu(a, X, T, U, n, s0):
    k = math.sqrt(2 / math.pi)
    a(f"v_mov_b32 v{U}, {f32(-2*k*LOG2E)}")
    a(f"v_mov_b32 v{U+1}, {f32(-2*k*LOG2E)}")
    a(f"v_mov_b32 v{U+2}, {f32(-2*k*LOG2E*0.044715)}")
    a(f"v_mov_b32 v{U+3}, {f32(-2*k*LOG2E*0.044715)}")
    a(f"v_mov_b32 v{U+4}, 1.0")
    a(f"v_mov_b32 v{U+5}, 1.0")
    for i in range(0, n, 2):
        a(f"v_pk_mul_f32 {vr(T+i,2)}, {vr(X+i,2)}, {vr(X+i,2)}")
    for i in range(0, n, 2):
        a(f"v_pk_fma_f32 {vr(T+i,2)}, {vr(T+i,2)}, {vr(U+2,2)}, {vr(U,2)}")
    for i in range(0, n, 2):
        a(f"v_pk_mul_f32 {vr(T+i,2)}, {vr(T+i,2)}, {vr(X+i,2)}")
    for i in range(n):
        a(f"v_exp_f32 v{T+i}, v{T+i}")
    for i in range(0, n, 2):
        a(f"v_pk_add_f32 {vr(T+i,2)}, {vr(T+i,2)}, {vr(U+4,2)}")
    for i in range(n):
        a(f"v_rcp_f32 v{T+i}, v{T+i}")
    for i in range(0, n, 2):
        a(f"v_pk_mul_f32 {vr(X+i,2)}, {vr(X+i,2)}, {vr(T+i,2)}")


def mreduce(a, tag, acc, sL, fl, vA, vB, vT, R, cnt):
    a(f"v_lshlrev_b32 v{vA}, 4, v1")
    a(f"v_add_u32 v{vA}, s{sL}, v{vA}")
    a(f"v_mov_b32 v{vB}, s{sL}")
    a(f"v_mov_b32 v{vT+1}, 1")
    a("s_nop 7")
    wr, rdb = {1: 0, 2: 1, 3: 3}, {1: 1, 2: 3, 3: 0}

    def add():
        for i in range(0, 16, 2):
            a(f"v_pk_add_f32 {vr(acc+i,2)}, {vr(acc+i,2)}, {vr(R+i,2)}")

    for r in (1, 2, 3):
        if wr[r]:
            a(f"v_xor_b32 v{vT+2}, {8192*wr[r]}, v{vA}")
        for i in range(4):
            a(f"ds_write_b128 v{vT+2 if wr[r] else vA}, {vr(acc+16*r+4*i,4)} offset:{1024*i}")
        a(f"v_xor_b32 v{vT+3}, {8192*r}, v{vB}")
        if r > 1:
            add()
        a("s_waitcnt lgkmcnt(0)")
        a(f"ds_write_b32 v{vB}, v{vT+1} offset:{6144+fl+4*(r-1)}")
        lds_spin(a, f"{tag}_R{r}", vT + 3, 6144 + fl + 4 * (r - 1), 1, vT, cnt)
        if rdb[r]:
            a(f"v_xor_b32 v{vT+2}, {8192*rdb[r]}, v{vA}")
        for i in range(4):
            a(f"ds_read_b128 {vr(R+4*i,4)}, v{vT+2 if rdb[r] else vA} offset:{1024*i}")
        a("s_waitcnt lgkmcnt(0)")
    add()


def kernel(a):
    global PROF
    nm = NAME + "_kernel"
    a.raw(f".globl {nm}")
    a.raw(".p2align 8")
    a.raw(f".type {nm},@function")
    a(f"{nm}:")
    if PROF:
        a("s_memrealtime s[70:71]")
        a("s_memtime s[72:73]")
    SLOT, NS = 32768, 4
    vTag = 166
    a("s_cmp_ge_u32 s2, 256")
    a("s_cbranch_scc1 END")
    a("s_load_dwordx16 s[4:19], s[0:1], 0")
    a("s_load_dwordx8 s[20:27], s[0:1], 64")
    a("v_lshrrev_b32 v2, 6, v0")
    a("v_and_b32 v1, 63, v0")
    a("v_readfirstlane_b32 s3, v2")
    a("s_and_b32 s52, s2, 7")
    a("s_lshr_b32 s53, s2, 3")
    a("s_mul_i32 s55, s53, 43")
    a("s_lshr_b32 s55, s55, 8")
    a("s_mul_i32 s56, s55, 6")
    a("s_sub_u32 s56, s53, s56")
    a("s_lshl_b32 s58, s55, 1")
    a("s_add_u32 s58, s58, s56")
    a("s_lshr_b32 s54, s52, 1")
    a("s_lshl_b32 s54, s54, 2")
    a("s_add_u32 s54, s54, s55")
    a("s_and_b32 s55, s52, 1")
    a("s_mul_i32 s55, s55, 6")
    a("s_add_u32 s55, s55, s56")
    a("s_cmp_ge_u32 s3, 8")
    a("s_cbranch_scc1 P1_M")
    a("s_cmp_ge_u32 s53, 24")
    a("s_cbranch_scc1 SVC")
    a("s_cmp_ge_u32 s3, 4")
    a("s_cbranch_scc1 P1_LOAD")

    vXA, vWA = 10, 18
    Fb = 112
    acc = 48
    a("s_and_b32 s56, s3, 1")
    a("s_lshr_b32 s57, s3, 1")
    a("s_lshl_b32 s59, s56, 13")
    a("v_and_b32 v2, 31, v1")
    a("v_lshrrev_b32 v3, 5, v1")
    a("v_bfe_u32 v9, v1, 1, 3")
    a("v_lshlrev_b32 v2, 7, v2")
    a("v_add_u32 v2, s59, v2")
    for kk in range(4):
        a(f"v_add_u32 v30, {2*kk}, v3")
        a("v_xor_b32 v30, v30, v9")
        a(f"v_lshl_add_u32 v{vXA+kk}, v30, 4, v2")
        a(f"v_add_u32 v{vXA+4+kk}, {2*SLOT}, v{vXA+kk}")
    a("s_lshl_b32 s59, s57, 13")
    a("s_add_u32 s59, s59, 16384")
    a("s_mov_b32 s60, 0")
    gemm_rd(a, 8, vWA, vWA + 1, 59, 60, 2, 9)
    a(f"v_add_u32 v{vWA+2}, {2*SLOT}, v{vWA}")
    a(f"v_add_u32 v{vWA+3}, {2*SLOT}, v{vWA+1}")
    a("s_and_b32 s59, s55, 3")
    a("s_lshl_b32 s59, s59, 1")
    a("s_add_u32 s59, s59, s57")
    a("s_lshl_b32 s60, s54, 1")
    a("s_add_u32 s60, s60, s56")
    a("s_lshr_b32 s61, s55, 2")
    a("s_lshl_b32 s62, s61, 8")
    a("s_lshl_b32 s63, s59, 5")
    a("s_add_u32 s62, s62, s63")
    a("s_add_u32 s62, s62, s60")
    a("s_lshl_b32 s62, s62, 7")
    a(f"s_add_u32 s62, s62, {F_QKV}")
    a("s_lshl_b32 s63, s59, 18")
    a("s_lshl_b32 s64, s60, 11")
    a("s_add_u32 s63, s63, s64")
    a("s_lshl_b32 s64, s63, 1")
    a(f"s_add_u32 s64, s64, {WS_KV - WS_Q}")
    a("s_cmp_eq_u32 s61, 0")
    a("s_cselect_b32 s63, s63, s64")
    a("s_cselect_b32 s65, 1, 2")
    a(f"s_cselect_b32 s66, {f32(0.25*LOG2E)}, 1.0")
    a("s_mov_b32 s67, s66")
    a("s_lshl_b32 s64, s65, 16")
    a("s_lshl_b32 s65, s65, 10")
    a("v_lshlrev_b32 v2, 4, v1")
    a("v_bfe_u32 v9, v1, 4, 1")
    a("v_lshlrev_b32 v9, 17, v9")
    a("v_lshl_add_u32 v9, v3, 8, v9")
    a("v_and_b32 v30, 15, v1")
    a("v_lshl_add_u32 v9, v30, 4, v9")
    a("s_lshl_b32 s59, s3, 2")
    a(f"s_add_u32 s59, s59, {L_PUB}")
    a("v_mov_b32 v31, s59")
    a("v_mov_b32 v30, 1")
    a("s_waitcnt lgkmcnt(0)")
    srd(a, 28, pWS, 6 * MB, WS_Q)
    srd(a, 36, pWS, SZ_F, WS_F)
    a("s_cmp_eq_u32 s61, 2")
    a("s_cbranch_scc1 P1_V")

    def reads(t):
        c, kk = t // 4, t % 4
        s = c % NS
        st, so = s // 2, (s % 2) * SLOT
        f = Fb + 16 * (t % 3)
        r = []
        for b in range(2):
            r.append(f"ds_read_b128 {vr(f+4*b,4)}, v{vXA+4*st+kk} offset:{so+b*4096}")
            for q in range(2):
                r.append(f"ds_read_b64_tr_b16 {vr(f+8+4*b+2*q,2)}, v{vWA+2*st+b} offset:{so+kk*2048+q*512}")
        return r

    def p1main(vtype):
        a("s_barrier")
        stamp(a, 1)
        for t in range(2):
            for x in reads(t):
                a(x)
        for t in range(32):
            if t % 4 == 2 and t + 2 < 32:
                a("s_barrier")
            a(f"s_waitcnt lgkmcnt({6 if t + 1 < 32 else 0})")
            rr = reads(t + 2) if t + 2 < 32 else []
            f = Fb + 16 * (t % 3)
            for j in range(4):
                cb, tb = j // 2, j % 2
                X, W = f + 4 * tb, f + 8 + 4 * cb
                if vtype:
                    mfma(a, acc + 16 * j, X, W, "0" if t == 0 else None)
                else:
                    mfma(a, acc + 16 * j, W, X, "0" if t == 0 else None)
                for x in rr[(0, 2, 4, 6)[j]:(2, 4, 6, 6)[j]]:
                    a(x)
        stamp(a, 2)
        get_tag(a, vTag, 32)
        for j in range(4):
            cb, tb = j // 2, j % 2
            if j == 0:
                a("s_mov_b32 s59, s63")
            elif j == 1:
                a("s_add_u32 s59, s63, s65")
            elif j == 2:
                a("s_lshl_b32 s60, s64, 1")
                a("s_add_u32 s63, s63, s60")
                a("s_mov_b32 s59, s63")
            else:
                a("s_add_u32 s59, s63, s65")
            a("s_add_u32 s60, s59, s64")
            for hf in range(2):
                A0, r = acc + 16 * j + 8 * hf, Fb + 8 * j + 4 * hf
                if not vtype:
                    for i in range(0, 8, 2):
                        a(f"v_pk_mul_f32 {vr(A0+i,2)}, {vr(A0+i,2)}, s[66:67]")
                for i in range(4):
                    a(f"v_cvt_pk_bf16_f32 v{r+i}, v{A0+2*i}, v{A0+2*i+1}")
                if vtype:
                    a(f"buffer_store_dwordx4 {vr(r,4)}, v9, {sr(28)}, s59 offen offset:{1024+512*hf} sc1")
                else:
                    a(f"buffer_store_dwordx4 {vr(r,4)}, v2, {sr(28)}, s{59+hf} offen sc1")

    p1main(False)
    a("s_branch P1_PUB")
    a("P1_V:")
    p1main(True)
    a("P1_PUB:")
    a(f"ds_write_b32 v31, v30 offset:{L_ISS-L_PUB}")
    a("s_waitcnt lgkmcnt(0)")
    publish(a, 36, 62, vTag, 32)
    a("ds_write_b32 v31, v30")
    stamp(a, 3)
    a("s_branch ATT")

    a("SVC:")
    raw, gwr, X, GW, SUM, DOT = 4, 36, 40, 104, 112, 120
    a("s_waitcnt lgkmcnt(0)")
    srd(a, 36, pWS, SZ_F, WS_F)
    a("s_cmp_ge_u32 s3, 4")
    a("s_cbranch_scc1 SVC_W")
    a("s_lshl_b32 s56, s52, 3")
    a("s_and_b32 s57, s53, 7")
    a("s_add_u32 s56, s56, s57")
    a("s_lshl_b32 s56, s56, 2")
    a("s_add_u32 s56, s56, s3")
    a("s_lshl_b32 s57, s56, 13")
    a("v_lshlrev_b32 v2, 4, v1")
    a("s_add_u32 s58, s57, 4096")
    srd(a, 28, pX, 2 * MB)
    srd(a, 32, pGW, 1024)
    for r in range(8):
        a(f"buffer_load_dwordx4 {vr(raw+4*r,4)}, v2, {sr(28)}, s{57 + r//4} offen offset:{(r%4)*1024}")
    a(f"buffer_load_dwordx4 {vr(gwr,4)}, v2, {sr(32)}, 0 offen")
    srd(a, 28, pWS, 2 * MB, WS_HT)
    srd(a, 32, pWS, 8192, WS_G)
    a("s_mov_b32 s59, 0xffff0000")
    a("s_waitcnt vmcnt(0)")
    a("s_barrier")
    stamp(a, 1)
    get_tag(a, vTag, 3)
    for i in range(4):
        a(f"v_lshlrev_b32 v{GW+2*i}, 16, v{gwr+i}")
        a(f"v_and_b32 v{GW+2*i+1}, s59, v{gwr+i}")
    for r in range(8):
        for i in range(4):
            a(f"v_lshlrev_b32 v{X+8*r+2*i}, 16, v{raw+4*r+i}")
            a(f"v_and_b32 v{X+8*r+2*i+1}, s59, v{raw+4*r+i}")
    T = raw
    for r in range(8):
        a(f"v_pk_add_f32 {vr(T+4*r,2)}, {vr(X+8*r,2)}, {vr(X+8*r+2,2)}")
        a(f"v_pk_mul_f32 {vr(T+4*r+2,2)}, {vr(X+8*r,2)}, {vr(GW,2)}")
    for e in (2, 4, 6):
        for r in range(8):
            if e >= 4:
                a(f"v_pk_add_f32 {vr(T+4*r,2)}, {vr(T+4*r,2)}, {vr(X+8*r+e,2)}")
            a(f"v_pk_fma_f32 {vr(T+4*r+2,2)}, {vr(X+8*r+e,2)}, {vr(GW+e,2)}, {vr(T+4*r+2,2)}")
    for r in range(8):
        a(f"v_add_f32 v{SUM+r}, v{T+4*r}, v{T+4*r+1}")
        a(f"v_add_f32 v{DOT+r}, v{T+4*r+2}, v{T+4*r+3}")

    def reduce(regs):
        for mod in ("row_shr:1 row_mask:0xf", "row_shr:2 row_mask:0xf", "row_shr:4 row_mask:0xf", "row_shr:8 row_mask:0xf",
                    "row_bcast:15 row_mask:0xa", "row_bcast:31 row_mask:0xc"):
            for r in regs:
                a(f"v_add_f32_dpp v{r}, v{r}, v{r} {mod} bank_mask:0xf")

    reduce(list(range(SUM, SUM + 8)))
    for r in range(8):
        a(f"v_mul_f32 v{SUM+r}, {f32(1/512)}, v{SUM+r}")
    for r in range(8):
        a(f"v_readlane_b32 s{40+r}, v{SUM+r}, 63")
    for e in range(8):
        for r in range(8):
            a(f"v_subrev_f32 v{X+8*r+e}, s{40+r}, v{X+8*r+e}")
    for r in range(8):
        a(f"v_pk_mul_f32 {vr(T+4*r,2)}, {vr(X+8*r,2)}, {vr(X+8*r,2)}")
    for e in (2, 4, 6):
        for r in range(8):
            a(f"v_pk_fma_f32 {vr(T+4*r,2)}, {vr(X+8*r+e,2)}, {vr(X+8*r+e,2)}, {vr(T+4*r,2)}")
    for r in range(8):
        a(f"v_add_f32 v{SUM+r}, v{T+4*r}, v{T+4*r+1}")
    reduce(list(range(SUM, SUM + 8)))
    a(f"v_mov_b32 v3, {f32(1e-5)}")
    a(f"s_mov_b32 s60, {f32(1/512)}")
    for r in range(8):
        a(f"v_fma_f32 v{SUM+r}, v{SUM+r}, s60, v3")
    for r in range(8):
        a(f"v_rsq_f32 v{SUM+r}, v{SUM+r}")
    a("s_nop 0")
    for r in range(8):
        a(f"v_readlane_b32 s{40+r}, v{SUM+r}, 63")
    a("s_lshl_b32 s60, s3, 13")
    a("s_add_u32 s60, s60, 65536")
    a("v_lshlrev_b32 v3, 7, v1")
    a(f"v_and_b32 v{GW}, 7, v1")
    a(f"v_lshl_add_u32 v3, v{GW}, 4, v3")
    a("v_add_u32 v3, s60, v3")
    a(f"v_lshrrev_b32 v{GW+1}, 3, v1")
    a(f"v_xor_b32 v{GW}, v{GW}, v{GW+1}")
    a(f"v_lshlrev_b32 v{GW+1}, 7, v{GW+1}")
    a(f"v_lshl_add_u32 v{GW}, v{GW}, 4, v{GW+1}")
    a(f"v_add_u32 v{GW}, s60, v{GW}")
    for e in range(8):
        for r in range(8):
            a(f"v_mul_f32 v{X+8*r+e}, s{40+r}, v{X+8*r+e}")
        for p in range(4):
            a(f"v_cvt_pk_bf16_f32 v{raw+4*e+p}, v{X+16*p+e}, v{X+16*p+8+e}")
        a(f"v_xor_b32 v{GW+2}, {16*e}, v3")
        a(f"ds_write_b128 v{GW+2}, {vr(raw+4*e,4)}")
    a("s_waitcnt lgkmcnt(0)")
    for j in range(8):
        a(f"ds_read_b128 {vr(raw+4*j,4)}, v{GW} offset:{j*1024}")
    for j in range(8):
        a(f"s_waitcnt lgkmcnt({7-j})")
        a(f"buffer_store_dwordx4 {vr(raw+4*j,4)}, v2, {sr(28)}, s{57 + j//4} offen offset:{(j%4)*1024} sc1")
    reduce(list(range(DOT, DOT + 8)))
    for r in range(8):
        a(f"v_mul_f32 v{DOT+r}, {f32(-LOG2E)}, v{DOT+r}")
    for r in range(8):
        a(f"v_exp_f32 v{DOT+r}, v{DOT+r}")
    for r in range(8):
        a(f"v_add_f32 v{DOT+r}, 1.0, v{DOT+r}")
    for r in range(8):
        a(f"v_rcp_f32 v{DOT+r}, v{DOT+r}")
    a("s_lshl_b32 s60, s56, 5")
    a("v_mov_b32 v3, 0")
    a("s_mov_b32 exec_lo, 0")
    a("s_mov_b32 exec_hi, 0x80000000")
    a(f"buffer_store_dwordx4 {vr(DOT,4)}, v3, {sr(32)}, s60 offen sc1")
    a(f"buffer_store_dwordx4 {vr(DOT+4,4)}, v3, {sr(32)}, s60 offen offset:16 sc1")
    a("s_mov_b64 exec, -1")
    stamp(a, 2)
    a("s_lshl_b32 s60, s56, 3")
    publish(a, 36, 60, vTag, 3)
    a("s_barrier")
    stamp(a, 3)
    a("s_branch L_TAIL")
    a("SVC_W:")
    a("s_barrier")
    a("s_barrier")
    a("s_branch L_TAIL")

    a("P1_LOAD:")
    vX0, vT0, vT1 = 4, 8, 9
    a("s_sub_u32 s59, s3, 4")
    a("v_lshrrev_b32 v2, 3, v1")
    a("v_and_b32 v3, 7, v1")
    a("v_lshrrev_b32 v20, 4, v1")
    a("v_xor_b32 v3, v3, v20")
    a("v_lshlrev_b32 v2, 10, v2")
    a(f"v_lshl_add_u32 v{vX0}, v3, 4, v2")
    a(f"v_xor_b32 v3, 4, v3")
    a(f"v_lshl_add_u32 v{vX0+1}, v3, 4, v2")
    a(f"v_add_u32 v{vX0+1}, 8192, v{vX0+1}")
    a(f"v_add_u32 v{vX0+2}, 16384, v{vX0}")
    a(f"v_add_u32 v{vX0+3}, 16384, v{vX0+1}")
    gemm_src(a, 3072, vT0, vT1, 2, 3)
    a("s_lshl_b32 s60, s54, 17")
    a("s_lshl_b32 s61, s59, 15")
    a("s_add_u32 s60, s60, s61")
    a("s_mul_i32 s61, s59, 49152")
    a("s_lshl_b32 s62, s55, 8")
    a("s_add_u32 s61, s61, s62")
    a("s_lshl_b32 s62, s59, 12")
    a("s_lshl_b32 s65, s59, 11")
    a("s_waitcnt lgkmcnt(0)")
    srd(a, 28, pX, 2 * MB)
    srd(a, 32, pWQKV, 512 * 3072)

    def dma(c):
        sl = (c % NS) * SLOT
        for t in ["s_and_b32 s58, s58, 7", "s_lshl_b32 s63, s58, 7", "s_add_u32 s63, s63, s60",
                  "s_mul_i32 s64, s58, 196608", "s_add_u32 s64, s64, s61", "s_add_u32 s58, s58, 1"]:
            a(t)
        for n in range(4):
            a(f"s_add_u32 m0, s62, {sl + n*1024}")
            a("s_nop 0")
            a(f"buffer_load_dwordx4 v{vX0+n}, {sr(28)}, s63 offen lds")
        for n, v in enumerate((vT0, vT1)):
            for hf in range(2):
                a(f"s_add_u32 m0, s65, {sl + 16384 + hf*(8192-128) + n*1024}")
                a("s_nop 0")
                a(f"buffer_load_dwordx4 v{v}, {sr(32)}, s64 offen offset:{hf*128} lds")

    dma(0)
    for c in range(8):
        if c + 1 < 8:
            dma(c + 1)
            a("s_waitcnt vmcnt(8)")
        else:
            a("s_waitcnt vmcnt(0)")
        if "p1st" in OPT and c >= 1:
            stamp(a, 5 + c)
        a("s_barrier")
        if c == 0:
            stamp(a, 1)
    stamp(a, 2)
    if "p1st" in OPT:
        PROF = False
    a("L_TAIL:")
    get_tag(a, vTag, 2)
    srd(a, 28, pWS, 6 * MB, WS_Q)
    srd(a, 36, pWS, SZ_F, WS_F)
    lds_wait(a, "L_ISSW", L_PUB, 4, 3, 4, 62, 2)

    a("ATT:")
    Q, C, S, P, O, Kb, Vb = 4, 8, 24, 56, 64, 80, 88
    vL16, vLV, vK, vV, vOne, vF = 2, 3, 104, 105, 106, 107
    a("s_lshl_b32 s54, s52, 2")
    a("s_and_b32 s55, s53, 3")
    a("s_add_u32 s54, s54, s55")
    a("s_lshr_b32 s55, s53, 2")
    a("s_lshl_b32 s56, s55, 3")
    a("s_add_u32 s56, s56, s3")
    a("s_lshl_b32 s57, s54, 16")
    a("s_lshl_b32 s58, s56, 10")
    a("s_add_u32 s57, s57, s58")
    a("s_lshl_b32 s58, s3, 11")
    a("s_lshl_b32 s59, s54, 17")
    a("s_add_u32 s59, s59, s58")
    a(f"s_add_u32 s59, s59, {WS_KV - WS_Q}")
    a("s_lshl_b32 s60, s52, 5")
    a("s_lshr_b32 s61, s3, 1")
    a("s_add_u32 s60, s60, s61")
    a("s_lshl_b32 s60, s60, 7")
    a(f"s_add_u32 s60, s60, {F_QKV}")
    a("s_lshl_b32 s61, s55, 9")
    a("v_and_b32 v110, 1, v1")
    a("v_add_u32 v110, 1, v110")
    a("v_lshlrev_b32 v110, 15, v110")
    a("v_bfe_u32 v109, v1, 1, 2")
    a("v_lshl_add_u32 v112, v109, 9, v110")
    a("v_mov_b32 v110, s61")
    a("v_cmp_eq_u32 vcc, 3, v109")
    a("s_nop 0")
    a("v_cndmask_b32 v112, v112, v110, vcc")
    a("v_lshrrev_b32 v3, 5, v1")
    a(f"v_lshlrev_b32 v{vL16}, 4, v1")
    a("v_lshlrev_b32 v3, 8, v3")
    a("v_and_b32 v104, 15, v1")
    a("v_lshl_add_u32 v3, v104, 4, v3")
    a(f"v_add_u32 v{vLV}, 1024, v3")
    a(f"v_mov_b32 v{vK}, v{vL16}")
    a(f"v_mov_b32 v{vV}, v{vLV}")
    a("s_mov_b32 s40, 0x0000ffff")
    a("s_mov_b32 s41, 0x0000ffff")
    a("s_mov_b32 s42, 0")
    a(f"v_and_b32 v{vOne}, 27, v1")
    a(f"v_cmp_eq_u32 vcc, 16, v{vOne}")
    a(f"v_mov_b32 v{vOne}, 0x3f803f80")
    a(f"v_cndmask_b32 v{vOne}, 0, v{vOne}, vcc")
    for i in range(16):
        a(f"v_mov_b32 v{Vb+i}, v{vOne}")
    for i in range(16):
        a(f"v_mov_b32 v{O+i}, 0")
    for i in range(4):
        a(f"v_mov_b32 v{P+4+i}, 0")
    a("s_lshl_b32 s63, s3, 2")
    a(f"s_add_u32 s63, s63, {L_C0F}")
    a("v_mov_b32 v108, s63")
    a("v_mov_b32 v109, 1")
    a(f"v_and_b32 v{vF}, 7, v1")
    a(f"v_lshlrev_b32 v{vF}, 2, v{vF}")
    a(f"v_add_u32 v{vF}, {L_C0F}, v{vF}")
    a("v_and_b32 v111, 3, v1")
    a("v_lshlrev_b32 v111, 2, v111")
    a(f"v_add_u32 v111, {L_KVF}, v111")
    KW, VW = 32768, 65536
    poll(a, "A_POLL", 1, 112, 36, "s60", S, vTag, 62, opt("as", 2), mask=0xc3, save=61)
    stamp(a, 4)
    a("s_mov_b32 m0, s58")
    a("s_setprio 2")
    a(f"buffer_load_dwordx4 v{vL16}, {sr(28)}, s59 offen sc1 lds")
    a(f"buffer_load_dwordx4 {vr(Q,4)}, v{vL16}, {sr(28)}, s57 offen sc1")
    a(f"buffer_load_dwordx4 v{vL16}, {sr(28)}, s59 offen offset:1024 sc1 lds")
    def c12():
        for c in (1, 2):
            a(f"s_add_u32 m0, s58, {16384*c}")
            a("s_add_u32 s59, s59, 16384")
            a(f"buffer_load_dwordx4 v{vL16}, {sr(28)}, s59 offen sc1 lds")
            a(f"buffer_load_dwordx4 v{vL16}, {sr(28)}, s59 offen offset:1024 sc1 lds")

    if "c12late" not in OPT:
        a("s_cmp_eq_u32 s61, 0")
        a("s_cbranch_scc0 A_LATE")
        c12()
        a("s_waitcnt vmcnt(4)")
        a("s_branch A_LATE2")
        a("A_LATE:")
    a("s_waitcnt vmcnt(0)")
    a("A_LATE2:")
    a("ds_write_b32 v108, v109")
    lds_spin(a, "A_C0", vF, 0, 1, 110, 62)
    stamp(a, 5)

    def rdK(buf, off):
        a(f"ds_read_b128 {vr(Kb+4*buf,4)}, v{vK} offset:{off}")

    def rdV(buf, off):
        a("s_mov_b64 exec, s[40:41]")
        a(f"ds_read_b128 {vr(Vb+8*buf,4)}, v{vV} offset:{off}")
        a(f"ds_read_b128 {vr(Vb+8*buf+4,4)}, v{vV} offset:{off+512}")
        a("s_mov_b64 exec, -1")

    def setC(src):
        a(f"v_mov_b32 v{src+1}, v{src}")
        a(f"v_permlane32_swap_b32 v{src}, v{src+1}")
        a(f"v_max_f32 v{src}, v{src}, v{src+1}")
        a(f"v_sub_f32 v{C}, 0, v{src}")
        for i in range(1, 16):
            a(f"v_mov_b32 v{C+i}, v{C}")

    a("s_cmp_eq_u32 s61, 0")
    a("s_cbranch_scc1 A_POLL2_X" if "c12late" in OPT else "s_cbranch_scc1 A_C12")
    poll(a, "A_POLL2", 1, 112, 36, "s60", S, vTag, 62, 2)
    c12()
    a("A_C12:")
    srd(a, 28, pWS, 2 * MB, WS_O)
    rdK(0, 0)
    rdK(1, 2048)
    rdV(0, 0)
    a("s_waitcnt lgkmcnt(3)")
    mfma(a, S, Kb, Q, "0")
    a(f"v_max3_f32 v{S}, v{S}, v{S+1}, v{S+2}")
    for i in range(3, 15, 2):
        a(f"v_max3_f32 v{S}, v{S}, v{S+i}, v{S+i+1}")
    a(f"v_max_f32 v{S}, v{S}, v{S+15}")
    setC(S)
    mfma(a, S, Kb, Q, C)
    a("s_mov_b32 s43, 16384")
    a("s_mov_b32 s44, 8")
    a(f"s_mov_b32 s45, {(1<<8)|(1<<6)|(1<<PR1)|(1<<PR0)}")

    def tile(i):
        b = i % 2
        Sc, Sn = S + 16 * b, S + 16 * (1 - b)
        e = lambda k: a(f"v_exp_f32 v{Sc+k}, v{Sc+k}")
        c = lambda k: a(f"v_cvt_pk_bf16_f32 v{P+k}, v{Sc+2*k}, v{Sc+2*k+1}")
        e(0); e(1)
        mfma(a, O, Vb + 8 * (1 - b) + 4, P + 4)
        for k in range(2, 8):
            e(k)
        a("s_waitcnt lgkmcnt(2)")
        mfma(a, Sn, Kb + 4 * (1 - b), Q, C)
        if i == 6:
            a("s_bitcmp1_b32 s45, s44")
            a(f"v_add_u32 v{vK}, s43, v{vL16}")
            a("s_cbranch_scc1 A_EVENT")
            a("A_BACK:")
        rdK(b, ((i + 2) % 8) * 2048)
        for k in range(4):
            c(k)
        for k in range(8, 12):
            e(k)
        a("s_waitcnt lgkmcnt(1)")
        mfma(a, O, Vb + 8 * b, P)
        if i == 7:
            a(f"v_add_u32 v{vV}, s43, v{vLV}")
            a("s_add_u32 s43, s43, 16384")
            a("s_and_b32 s43, s43, 0x1ffff")
        rdV(1 - b, ((i + 1) % 8) * 2048)
        for k in range(12, 16):
            e(k)
        if i == 7:
            a("s_sub_u32 s44, s44, 1")
            a("s_cmp_lg_u32 s44, 0")
        for k in range(4, 8):
            c(k)

    a("s_nop 7")
    a.raw(".p2align 6")
    a("A_LOOP:")
    for i in range(8):
        tile(i)
    a("s_cbranch_scc1 A_LOOP")
    stamp(a, 7)
    a("s_nop 1")
    mfma(a, O, Vb + 8 + 4, P + 4)
    a("s_waitcnt lgkmcnt(0)")
    a(f"v_mov_b32 v{S+2}, {f32(2.0**30)}")
    a(f"v_mov_b32 v{S+3}, {f32(2.0**120)}")
    a("s_lshr_b32 s59, s56, 1")
    a("s_lshl_b32 s59, s59, 2")
    a("s_and_b32 s60, s53, 3")
    a("s_add_u32 s59, s59, s60")
    a("s_lshl_b32 s59, s59, 3")
    a("s_add_u32 s59, s59, s52")
    a("s_lshl_b32 s59, s59, 1")
    a("s_and_b32 s60, s3, 1")
    a("s_add_u32 s59, s59, s60")
    a("s_lshl_b32 s59, s59, 7")
    a(f"s_add_u32 s59, s59, {F_O}")
    a(f"v_rcp_f32 v{S}, v{O+8}")
    a(f"v_max3_f32 v{S+1}, |v{O}|, |v{O+1}|, |v{O+2}|")
    a(f"v_max3_f32 v{S+1}, v{S+1}, |v{O+3}|, |v{O+4}|")
    a(f"v_max3_f32 v{S+1}, v{S+1}, |v{O+5}|, |v{O+6}|")
    a(f"v_max_f32 v{S+1}, v{S+1}, |v{O+7}|")
    a(f"v_cmp_nle_f32 vcc, v{O+8}, v{S+2}")
    a(f"v_cmp_nle_f32 s[46:47], v{S+1}, v{S+3}")
    a("s_or_b64 vcc, vcc, s[46:47]")
    a("s_cmp_lg_u32 s42, 0")
    a("s_cbranch_scc1 A_OUT")
    a("s_cbranch_vccnz A_SLOW")
    a("A_OUT:")
    a(f"ds_write_b32 v108, v109 offset:{L_DONE-L_C0F}")
    for i in range(8):
        a(f"v_mul_f32 v{O+i}, v{O+i}, v{S}")
    for i in range(4):
        a(f"v_cvt_pk_bf16_f32 v{P+i}, v{O+2*i}, v{O+2*i+1}")
    a(f"buffer_store_dwordx4 {vr(P,4)}, v{vL16}, {sr(28)}, s57 offen sc1")
    publish(a, 36, 59, vTag, 110)
    stamp(a, 8)
    if "p1st" in OPT:
        PROF = True
    a("s_cmp_lt_u32 s3, 4")
    a("s_cbranch_scc1 P3_LOAD")
    endprof(a)
    a("END:")
    a("s_endpgm")
    a("A_EVENT:")
    a("s_cmp_eq_u32 s44, 8")
    a("s_cbranch_scc0 A_EV1")
    a("s_waitcnt vmcnt(0)")
    a(f"ds_write_b32 v108, v109 offset:{L_C1F-L_C0F}")
    lds_spin(a, "A_KVW1", vF, L_C1F - L_C0F, 1, 110, 62, 2)
    a("s_branch A_BACK")
    a("A_EV1:")
    a("s_cmp_eq_u32 s44, 6")
    a("s_cbranch_scc0 A_EV2")
    lds_spin(a, "A_KVW2", 111, 0, 1, 110, 62, 2)
    if "p1st" not in OPT:
        stamp(a, 6)
    a("s_branch A_BACK")
    a("A_EV2:")
    a("s_setprio 1")
    a(f"s_cmp_eq_u32 s44, {PR1}")
    a("s_cbranch_scc1 A_BACK")
    a("s_setprio 0")
    a("s_branch A_BACK")
    a("A_SLOW:")
    a("s_mov_b32 s42, 1")
    a("s_mov_b32 s45, 0")
    a(f"v_mov_b32 v{vK}, v{vL16}")
    a(f"v_mov_b32 v{P}, 0xff800000")
    a("s_mov_b32 s44, 64")
    a("A_SLOWL:")
    rdK(0, 0)
    a("s_waitcnt lgkmcnt(0)")
    mfma(a, S, Kb, Q, "0")
    a(f"v_add_u32 v{vK}, 2048, v{vK}")
    a("s_nop 15")
    for i in range(0, 16, 2):
        a(f"v_max3_f32 v{P}, v{P}, v{S+i}, v{S+i+1}")
    a("s_sub_u32 s44, s44, 1")
    a("s_cmp_lg_u32 s44, 0")
    a("s_cbranch_scc1 A_SLOWL")
    setC(P)
    a(f"v_mov_b32 v{vK}, v{vL16}")
    a(f"v_mov_b32 v{vV}, v{vLV}")
    for i in range(16):
        a(f"v_mov_b32 v{O+i}, 0")
    for i in range(4):
        a(f"v_mov_b32 v{P+4+i}, 0")
    for i in range(8):
        a(f"v_mov_b32 v{Vb+8+i}, v{vOne}")
    rdK(0, 0)
    rdK(1, 2048)
    rdV(0, 0)
    a("s_waitcnt lgkmcnt(3)")
    mfma(a, S, Kb, Q, C)
    a("s_mov_b32 s43, 16384")
    a("s_mov_b32 s44, 8")
    a("s_nop 15")
    a("s_branch A_LOOP")

    a("P3_LOAD:")
    vT0, vT1 = 4, 5
    gemm_src(a, 1024, vT0, vT1, 6, 7)
    a("s_lshl_b32 s54, s52, 2")
    a("s_lshr_b32 s55, s53, 3")
    a("s_add_u32 s54, s54, s55")
    a("s_and_b32 s56, s53, 7")
    a("s_lshl_b32 s57, s55, 1")
    a("s_add_u32 s57, s57, s56")
    a("s_lshl_b32 s58, s3, 14")
    a("s_lshl_b32 s59, s56, 7")
    a("s_add_u32 s58, s58, s59")
    a("s_lshl_b32 s59, s3, 16")
    a("s_lshl_b32 s60, s54, 11")
    a("s_add_u32 s59, s59, s60")
    a("s_lshl_b32 s60, s3, 12")
    srd(a, 32, pWO, 512 * 1024)
    a("s_lshl_b32 s61, s54, 2")
    a("s_add_u32 s61, s61, s3")
    a("s_lshl_b32 s61, s61, 11")
    a(f"s_add_u32 s61, s61, {F_O}")
    lds_spin(a, "P3_DONE", vF, L_DONE - L_C0F, 1, 110, 62, 2)
    stamp(a, 9)
    for c in range(8):
        a(f"s_add_u32 s63, s57, {c}")
        a("s_and_b32 s63, s63, 7")
        a("s_lshl_b32 s63, s63, 16")
        a(f"s_add_u32 m0, s60, {c*16384}")
        a("s_add_u32 s63, s63, s58")
        a(f"buffer_load_dwordx4 v{vT0}, {sr(32)}, s63 offen lds")
        a(f"s_add_u32 m0, s60, {c*16384 + 1024}")
        a("s_nop 0")
        a(f"buffer_load_dwordx4 v{vT1}, {sr(32)}, s63 offen lds")
    a("v_and_b32 v6, 15, v1")
    a("v_lshlrev_b32 v6, 7, v6")
    poll(a, "P3_POLL", 1, 6, 36, "s61", 8, vTag, 62, 2)
    stamp(a, 10)
    for c in range(8):
        a(f"s_add_u32 s63, s57, {c}")
        a("s_and_b32 s63, s63, 7")
        a("s_lshl_b32 s63, s63, 18")
        a(f"s_add_u32 m0, s60, {c*16384 + 2048}")
        a("s_add_u32 s63, s63, s59")
        a(f"buffer_load_dwordx4 v{vL16}, {sr(28)}, s63 offen sc1 lds")
        a(f"buffer_load_dwordx4 v{vL16}, {sr(28)}, s63 offen offset:1024 sc1 lds")
        if c >= 3 and c % 2 == 1:
            a("s_waitcnt vmcnt(4)")
            a("s_barrier")
    a("s_waitcnt vmcnt(0)")
    a("s_barrier")
    stamp(a, 11)
    endprof(a)
    a("s_endpgm")

    a("P1_M:")
    PD = 3
    vT0, vT1, vD0, vD1, vR0, vR1 = 4, 5, 6, 7, 8, 9
    Tf, Df, acc, tmp = 12, 28, 64, 128
    vKF = 136
    a("s_sub_u32 s48, s3, 8")
    a("s_lshl_b32 s49, s48, 13")
    a(f"s_add_u32 s49, s49, {MREG}")
    a("v_mov_b32 v10, s49")
    a("v_mov_b32 v4, 0")
    a("v_mov_b32 v5, 0")
    for i in range(4):
        a(f"v_mov_b32 v{12+i}, 0")
    a("ds_write_b128 v10, v[12:15] offset:6144")
    a("ds_write_b128 v10, v[12:15] offset:6160")
    a("v_min_u32 v3, 35, v1")
    a("v_lshlrev_b32 v3, 2, v3")
    a(f"v_add_u32 v3, {LF}, v3")
    a("ds_write_b32 v3, v12")
    a(f"v_mov_b32 v3, {F_E}")
    a("s_mov_b32 s60, 0x9e3779b1")
    a(f"v_mov_b32 v6, {L_TAG}")
    a("s_waitcnt lgkmcnt(0)")
    srd(a, 36, pWS, SZ_F, WS_F)
    a(f"buffer_load_dwordx2 {vr(vTag,2)}, v3, {sr(36)}, 0 offen sc1")
    a("s_and_b32 s54, s52, 1")
    a("s_lshl_b32 s54, s54, 2")
    a("s_and_b32 s55, s53, 3")
    a("s_add_u32 s54, s54, s55")
    a("s_lshr_b32 s55, s53, 2")
    a("s_lshr_b32 s56, s52, 1")
    a("s_mul_i32 s56, s56, 11")
    a("s_add_u32 s68, s56, 12")
    a("s_lshr_b32 s68, s68, 1")
    a("s_add_u32 s56, s56, 1")
    a("s_lshr_b32 s56, s56, 1")
    a("s_add_u32 s56, s56, s55")
    a("s_and_b32 s50, s48, 1")
    a("s_lshr_b32 s51, s48, 1")
    a("v_lshlrev_b32 v2, 4, v1")
    a("v_lshrrev_b32 v10, 5, v1")
    a("v_and_b32 v11, 31, v1")
    a("v_lshlrev_b32 v11, 4, v11")
    a("v_lshl_add_u32 v3, v10, 13, v11")
    a("s_lshl_b32 s57, s48, 2")
    a(f"s_add_u32 s57, s57, {L_KVF}")
    a(f"v_mov_b32 v{vKF}, s57")
    a(f"v_mov_b32 v{vKF+1}, 1")
    srd(a, 28, pW1, 2048 * 2752)
    srd(a, 32, pWS, 2 * MB, WS_HT)
    srd(a, 40, pWS, 4 * MB, WS_KV)
    a("s_waitcnt vmcnt(0)")
    a(f"v_mul_lo_u32 v{vTag}, v{vTag}, s60")
    a(f"v_add_u32 v{vTag+1}, 0x7f4a7c15, v{vTag+1}")
    a(f"v_add_u32 v{vTag}, 1, v{vTag}")
    a(f"ds_write_b64 v6, {vr(vTag,2)}")
    a("s_waitcnt lgkmcnt(0)")
    a("s_barrier")
    a("s_setprio 3")
    a("s_cmp_ge_u32 s53, 24")
    a("s_cbranch_scc1 M_SVC")
    for c in range(7):
        a("s_barrier")
    stamp(a, 1)

    def htpoll(lab):
        a("s_lshl_b32 s61, s48, 9")
        a("v_lshlrev_b32 v10, 3, v1")
        poll(a, lab, 1, 10, 36, "s61", tmp, vTag, 62, 16)

    def kvrest(lab):
        lds_wait(a, lab + "D", L_C0F, 8, tmp + 4, tmp, 62, 2)
        a("s_lshl_b32 s44, s52, 5")
        a("s_add_u32 s44, s44, s48")
        a("s_lshl_b32 s44, s44, 7")
        a(f"s_add_u32 s44, s44, {F_QKV + 32768}")
        a(f"v_and_b32 v{tmp+4}, 7, v1")
        a(f"v_lshlrev_b32 v{tmp+4}, 9, v{tmp+4}")
        a(f"v_bfe_u32 v{tmp+5}, v1, 3, 1")
        a(f"v_lshl_add_u32 v{tmp+4}, v{tmp+5}, 15, v{tmp+4}")
        poll(a, lab + "C", 1, tmp + 4, 36, "s44", tmp, vTag, 62, 2)
        a("s_lshl_b32 s44, s52, 2")
        a("s_and_b32 s45, s53, 3")
        a("s_add_u32 s44, s44, s45")
        a("s_lshl_b32 s44, s44, 17")
        a("s_lshl_b32 s46, s48, 12")
        a("s_lshr_b32 s45, s53, 2")
        a("s_min_u32 s45, s45, 4")
        a("s_add_u32 s45, s45, 2")
        a("s_lshl_b32 s45, s45, 14")
        for j in range(5):
            a("s_add_u32 s45, s45, 16384")
            a("s_cmp_ge_u32 s45, 0x20000")
            a("s_cselect_b32 s45, 49152, s45")
            a("s_add_u32 s47, s45, s46")
            a("s_mov_b32 m0, s47")
            a("s_add_u32 s47, s47, s44")
            for n in range(4):
                a(f"buffer_load_dwordx4 v2, {sr(40)}, s47 offen offset:{n*1024} sc1 lds")

    a("s_cmp_ge_u32 s56, s68")
    a("s_cbranch_scc1 M_IDLE")
    a(f"s_mul_i32 s57, s48, {512*2752}")
    a("s_lshl_b32 s58, s56, 7")
    a("s_add_u32 s57, s57, s58")
    a("s_lshl_b32 s58, s48, 19")
    a("s_lshl_b32 s59, s54, 10")
    a("s_add_u32 s58, s58, s59")
    a("s_lshl_b32 s60, s51, 6")
    a("s_lshl_b32 s61, s50, 9")
    gemm_src(a, 2752, vT0, vT1, 10, 11)
    a(f"v_xor_b32 v{vD0}, s61, v3")
    a(f"v_xor_b32 v{vD1}, 512, v{vD0}")
    G1 = opt("g1_", 8)
    g1 = Gemm(a, 32, PD, 28, 32, 57, 58, 49, 2752, 16384, True, vT0, vT1, vD0, vD1, vR0, vR1, 512, Tf, Df, acc, " sc1", 63, G1)
    a("s_and_b32 s63, s53, 3")
    a(f"s_mul_i32 s63, s63, {max(1, G1//4)}")
    a(f"s_mul_i32 s62, s55, {max(1, G1//6)}")
    a("s_add_u32 s63, s63, s62")
    gemm_rd(a, 8, vR0, vR1, 49, 60, 10, 11)
    GATE = opt("gate", 3)
    if GATE:
        lds_wait(a, "M_GATE", (L_ISS, L_PUB, L_C0F)[GATE - 1], 4 if GATE < 3 else 8, 10, 11, 62, 2)
    htpoll("M_HT")
    stamp(a, 2)
    g1.pro_T()
    g1.pro_D()
    KVS = opt("kvs", 0)

    def hook_kv():
        stamp(a, 3)
        a("s_setprio 3")
        kvrest("M_KV1")
        a("s_setprio 0")
        g1.log.extend([("K", 0)] * 20)
        stamp(a, 4)

    def hook_kvf():
        g1.wait_for([("K", 0)])
        a(f"ds_write_b32 v{vKF}, v{vKF+1}")

    g1.main({KVS: hook_kv, KVS + 3: hook_kvf})
    stamp(a, 5)
    srd(a, 28, pB1, 2752)
    srd(a, 32, pWS, SZ_U, WS_U)
    a("s_lshl_b32 s61, s56, 7")
    a("s_add_u32 s61, s61, s60")
    a("v_lshrrev_b32 v10, 5, v1")
    a("v_lshlrev_b32 v10, 3, v10")
    for g in range(4):
        a(f"buffer_load_dwordx2 {vr(Df+2*g,2)}, v10, {sr(28)}, s61 offen offset:{16*g}")
    mreduce(a, "M1", acc, 49, 0, 10, 11, tmp, Df + 16, 62)
    a("s_mov_b32 s61, 0xffff0000")
    a("s_waitcnt vmcnt(0)")
    for i in range(8):
        a(f"v_lshlrev_b32 v{acc+16+2*i}, 16, v{Df+i}")
        a(f"v_and_b32 v{acc+16+2*i+1}, s61, v{Df+i}")
    for i in range(0, 16, 2):
        a(f"v_pk_add_f32 {vr(acc+i,2)}, {vr(acc+i,2)}, {vr(acc+16+i,2)}")
    gelu(a, acc, acc + 16, acc + 32, 16, 61)
    for i in range(8):
        a(f"v_cvt_pk_bf16_f32 v{Tf+i}, v{acc+2*i}, v{acc+2*i+1}")
    a("s_lshl_b32 s61, s56, 16")
    a("s_lshl_b32 s62, s51, 15")
    a("s_add_u32 s61, s61, s62")
    a("s_add_u32 s61, s61, s59")
    a("s_add_u32 s62, s61, 16384")
    a(f"buffer_store_dwordx4 {vr(Tf,4)}, v{vD0}, {sr(32)}, s61 offen sc1")
    a(f"buffer_store_dwordx4 {vr(Tf+4,4)}, v{vD0}, {sr(32)}, s62 offen sc1")
    a("s_lshl_b32 s61, s56, 2")
    a("s_add_u32 s61, s61, s48")
    a("s_lshl_b32 s61, s61, 3")
    a("s_add_u32 s61, s61, s59")
    a("s_lshl_b32 s61, s61, 4")
    a(f"s_add_u32 s61, s61, {F_U}")
    publish(a, 36, 61, vTag, 10)
    a("s_branch M_2")

    a("M_SVC:")
    stamp(a, 1)
    a("s_and_b32 s57, s53, 7")
    a("s_lshl_b32 s58, s48, 5")
    a("s_add_u32 s57, s57, s58")
    a("s_sub_u32 s58, s56, s55")
    a("s_lshl_b32 s58, s58, 7")
    a(f"s_mul_i32 s59, s57, {16*2752}")
    a("s_add_u32 s58, s58, s59")
    a("s_lshl_b32 s59, s57, 14")
    a("s_and_b32 s60, s52, 1")
    a("s_lshl_b32 s60, s60, 12")
    a("s_add_u32 s59, s59, s60")
    a("v_lshrrev_b32 v4, 3, v1")
    a("v_mul_u32_u24 v4, 2752, v4")
    a("v_and_b32 v5, 7, v1")
    a("v_min_u32 v5, 6, v5")
    a("v_lshl_add_u32 v4, v5, 7, v4")
    a(f"v_add_u32 v5, {8*2752}, v4")
    a("v_lshrrev_b32 v6, 5, v1")
    a("v_lshlrev_b32 v6, 13, v6")
    a("v_and_b32 v7, 31, v1")
    a("v_lshl_add_u32 v6, v7, 7, v6")

    def tw(g):
        a(f"buffer_load_dword v{Tf+3*g}, v4, {sr(28)}, s58 offen")
        a(f"buffer_load_dword v{Tf+3*g+1}, v5, {sr(28)}, s58 offen")
        a(f"s_add_u32 s58, s58, {128*2752}")

    def th(g):
        a(f"buffer_load_dword v{Tf+3*g+2}, v6, {sr(32)}, s59 offen sc1")
        a(f"s_add_u32 s59, s59, {8*16384}")

    NE, NW = opt("ne", 1), opt("nw", 2)
    for g in range(NE):
        tw(g)
    a("s_barrier")
    stamp(a, 2)
    for g in range(NE, NW):
        tw(g)
    a("s_waitcnt vmcnt(0)")
    a(f"ds_write_b32 v{vKF}, v{vKF+1} offset:{L_PUB-L_KVF}")
    stamp(a, 3)
    a("M_IDLE:")
    kvrest("M_KV2")
    a("s_waitcnt vmcnt(0)")
    a(f"ds_write_b32 v{vKF}, v{vKF+1}")
    stamp(a, 4)
    a("s_cmp_lt_u32 s53, 24")
    a("s_cbranch_scc1 M_IDLE2")
    htpoll("M_HT2")
    for g in range(4):
        th(g)
        if g + NW < 4:
            tw(g + NW)
    stamp(a, 5)
    srd(a, 28, pW2, 1376 * 4096)
    a("s_and_b32 s57, s53, 7")
    a("s_lshl_b32 s57, s57, 2")
    a("s_add_u32 s57, s57, s48")
    a(f"s_mul_i32 s58, s57, {43*4096}")
    a("s_lshl_b32 s59, s52, 9")
    a("s_add_u32 s58, s58, s59")
    a("v_lshrrev_b32 v10, 2, v1")
    a("v_lshlrev_b32 v10, 12, v10")
    a("v_and_b32 v11, 3, v1")
    a("v_lshl_add_u32 v10, v11, 7, v10")
    for j in range(3):
        a(f"buffer_load_dword v{Tf+12+j}, v10, {sr(28)}, s58 offen")
        a("s_add_u32 s58, s58, 65536")
    a("s_waitcnt vmcnt(0)")
    a("M_IDLE2:")
    srd(a, 32, pWS, SZ_U, WS_U)
    a("M_2:")
    stamp(a, 6)
    srd(a, 28, pW2, 1376 * 4096)
    a("s_and_b32 s54, s53, 7")
    a("s_lshr_b32 s55, s53, 3")
    a("s_lshl_b32 s56, s52, 2")
    a("s_add_u32 s56, s56, s55")
    a(f"s_mul_i32 s57, s48, {22*16*4096}")
    a("s_lshl_b32 s58, s56, 7")
    a("s_add_u32 s57, s57, s58")
    a(f"s_mul_i32 s58, s48, {22*16384}")
    a("s_lshl_b32 s59, s54, 10")
    a("s_add_u32 s58, s58, s59")
    a("s_lshl_b32 s60, s50, 6")
    a("s_lshl_b32 s61, s51, 9")
    gemm_src(a, 4096, vT0, vT1, 10, 11)
    a(f"v_xor_b32 v{vD0}, s61, v3")
    a(f"v_xor_b32 v{vD1}, 512, v{vD0}")
    g2 = Gemm(a, 22, PD, 28, 32, 57, 58, 49, 4096, 16384, False, vT0, vT1, vD0, vD1, vR0, vR1, 1024, Tf, Df, acc, " sc1", 63, opt("g2_", 4))
    a("s_add_u32 s63, s55, s54")
    g2.pro_T()
    gemm_rd(a, 4, vR0, vR1, 49, 60, 10, 11)
    a("s_mul_i32 s61, s48, 11")
    a("s_lshr_b32 s61, s61, 1")
    a("s_lshl_b32 s61, s61, 5")
    a("s_add_u32 s61, s61, s59")
    a("s_lshl_b32 s61, s61, 4")
    a(f"s_add_u32 s61, s61, {F_U}")
    a("v_min_u32 v10, 23, v1")
    a("v_lshlrev_b32 v10, 7, v10")
    poll(a, "M_U", 1, 10, 36, "s61", tmp, vTag, 62, 8)
    stamp(a, 7)
    g2.pro_D()
    g2.main()
    stamp(a, 8)
    srd(a, 28, pWO, 512 * 1024)
    a("s_lshl_b32 s61, s53, 2")
    a("s_add_u32 s61, s61, s48")
    a("s_lshl_b32 s61, s61, 12")
    a("v_lshlrev_b32 v10, 6, v1")
    a(f"buffer_load_dword v{Df+3}, v10, {sr(28)}, s61 offen")
    srd(a, 28, pB2, 4096)
    srd(a, 32, pWS, 8192, WS_G)
    a("s_lshl_b32 s61, s56, 7")
    a("s_add_u32 s61, s61, s60")
    a("s_lshl_b32 s62, s61, 1")
    a("v_and_b32 v10, 31, v1")
    a("v_lshlrev_b32 v11, 2, v10")
    a("v_lshlrev_b32 v10, 1, v10")
    a(f"buffer_load_ushort v{Df}, v10, {sr(28)}, s61 offen")
    a(f"buffer_load_dword v{Df+1}, v11, {sr(32)}, s62 offen sc1")
    mreduce(a, "M2", acc, 49, 16, 10, 11, tmp, Df + 16, 62)
    a("s_waitcnt vmcnt(0)")
    G, Y = Df + 1, acc
    a(f"v_lshlrev_b32 v{Df}, 16, v{Df}")
    a(f"v_sub_f32 v{Df+2}, 1.0, v{G}")
    a(f"v_mul_f32 v{Df}, v{Df}, v{Df+2}")
    for i in range(16):
        a(f"v_fma_f32 v{Y+i}, v{Y+i}, v{Df+2}, v{Df}")
    stamp(a, 9)

    vR, vO = 4, 5
    Wf, Of, A3 = 96, 128, 80
    a("s_lshl_b32 s60, s51, 6")
    gemm_rd(a, 4, vR, None, None, 60, 10, 11)
    a("s_lshl_b32 s60, s50, 10")
    a("s_add_u32 s60, s60, 2048")
    a(f"v_add_u32 v{vO}, s60, v2")
    a(f"v_add_u32 v6, 65536, v{vR}")
    a(f"v_add_u32 v7, 65536, v{vO}")
    srd(a, 28, pOUT, 2 * MB)
    a("v_and_b32 v9, 31, v1")
    a("v_lshlrev_b32 v9, 10, v9")
    a("v_lshrrev_b32 v10, 5, v1")
    a("v_lshl_add_u32 v9, v10, 4, v9")
    a("s_lshl_b32 s57, s56, 16")
    a("s_lshl_b32 s58, s50, 15")
    a("s_add_u32 s57, s57, s58")
    a("s_lshl_b32 s58, s54, 7")
    a("s_add_u32 s57, s57, s58")
    a("s_lshl_b32 s58, s51, 6")
    a("s_add_u32 s57, s57, s58")
    a("s_lshl_b32 s58, s2, 4")
    a("s_add_u32 s58, s58, s48")
    a("s_cmp_lg_u32 s58, 0")
    a("s_cbranch_scc1 M_NOE")
    a("v_lshrrev_b32 v10, 4, v1")
    a("v_lshlrev_b32 v10, 13, v10")
    a("v_and_b32 v11, 15, v1")
    a("v_lshl_add_u32 v10, v11, 8, v10")
    for t in range(3):
        a(f"s_mov_b32 s58, {F_QKV + 32768*t}")
        poll(a, f"M_E{t}", 1, 10, 36, "s58", tmp, vTag, 62, 8)
    a("v_lshlrev_b32 v10, 5, v1")
    poll(a, "M_E3", 1, 10, 36, "0", tmp, vTag, 62, 8)
    a("v_lshlrev_b32 v10, 20, v1")
    a(f"s_mov_b32 s58, {F_E}")
    a(f"buffer_store_dwordx2 {vr(vTag,2)}, v10, {sr(36)}, s58 offen sc1")
    a("M_NOE:")

    def rd3(t):
        off = (t % 16) * 4096
        r, o = (vR, vO) if t < 16 else (6, 7)
        b = t % 8
        a(f"ds_read_b64_tr_b16 {vr(Wf+4*b,2)}, v{r} offset:{off}")
        a(f"ds_read_b64_tr_b16 {vr(Wf+4*b+2,2)}, v{r} offset:{off+1024}")
        a(f"ds_read_b128 {vr(Of+4*b,4)}, v{o} offset:{off}")

    for c in range(4):
        a("s_barrier")
        if c in (0, 3):
            stamp(a, 10 + c // 3)
        for j in range(4):
            rd3(8 * c + j)
        for j in range(8):
            t = 8 * c + j
            if j + 4 < 8:
                rd3(t + 4)
            a(f"s_waitcnt lgkmcnt({3*min(4, 7-j)})")
            mfma(a, A3, Wf + 4 * j, Of + 4 * j, "0" if t == 0 else None)
    stamp(a, 12)
    for i in range(16):
        a(f"v_fmac_f32 v{Y+i}, v{A3+i}, v{G}")
    for i in range(8):
        a(f"v_cvt_pk_bf16_f32 v{Tf+i}, v{Y+2*i}, v{Y+2*i+1}")
    for p in range(2):
        a(f"v_permlane32_swap_b32 v{Tf+4*p}, v{Tf+4*p+2}")
        a(f"v_permlane32_swap_b32 v{Tf+4*p+1}, v{Tf+4*p+3}")
        a(f"buffer_store_dwordx4 {vr(Tf+4*p,4)}, v9, {sr(28)}, s57 offen offset:{32*p}")
    endprof(a)
    a("s_endpgm")
    return dict(name=nm, vgpr=168, grid=256, block=768, lds=163840)


def build(path, verbose=False, aslist=False):
    ref = open("cdna_kernels/" + NAME + ".s.ref").read().split("\n")
    hdr = [l for l in ref if l.startswith(";") and "@launch" not in l and "Override launch" not in l and "grid=ceil" not in l]
    a = Asm()
    i = kernel(a)
    a.fix(verbose)
    s = "\n".join(hdr) + "\n"
    if aslist:
        s += f"; @launch kernel={i['name']} grid=({i['grid']},1,1) block=({i['block']},1,1) lds={i['lds']}\n"
    else:
        s += f"; @launch grid=({i['grid']},1,1) block=({i['block']},1,1) lds={i['lds']}\n"
    s += '.amdgcn_target "amdgcn-amd-amdhsa--gfx950"\n.text\n'
    s += a.text()
    s += '.section .rodata,"a"\n'
    s += f""".p2align 6
.amdhsa_kernel {i['name']}
  .amdhsa_next_free_vgpr {i['vgpr']}
  .amdhsa_next_free_sgpr {102 if PROF else 70}
  .amdhsa_accum_offset {i['vgpr']}
  .amdhsa_group_segment_fixed_size 0
  .amdhsa_kernarg_size 96
  .amdhsa_user_sgpr_count 2
  .amdhsa_user_sgpr_kernarg_segment_ptr 1
  .amdhsa_system_sgpr_workgroup_id_x 1
.end_amdhsa_kernel
"""
    open(path, "w").write(s)


if __name__ == "__main__":
    out = sys.argv[1] if len(sys.argv) > 1 and not sys.argv[1][0] in "-+" else "cdna_kernels/" + NAME + ".s"
    PROF = "-p" in sys.argv
    OPT = set(x[1:] for x in sys.argv if x.startswith("+"))
    build(out, verbose="-v" in sys.argv, aslist="-l" in sys.argv)
```

```python
import sys, math, struct
from asmlib import Asm

NAME = "gated_mix__softmax_full_mha__mixer_token_mlp__prompt"
MB = 1 << 20
WS_Q, WS_KV, WS_HT, WS_U, WS_O, WS_G, WS_F = 0, 2 * MB, 6 * MB, 8 * MB, 10 * MB, 14 * MB, 15 * MB
SZ_U = 172 * 8192
F_HT, F_E, F_QKV, F_U, F_O = 0, 8192, 131072, 262144, 524288
SZ_F = 786432
PROF = False
OPT = set()
WS_P = 16 * MB
LOG2E = math.log2(math.e)
pX, pWQKV, pWO, pW1, pB1, pW2, pB2, pGW, pOUT, pWS = 4, 6, 8, 12, 14, 16, 18, 20, 22, 26
MREG = 131072
LF = MREG + 6144 + 64
L_KVF, L_PUB, L_C0F, L_DONE, L_C1F, L_ISS, L_TAG = LF, LF + 16, LF + 32, LF + 64, LF + 96, LF + 128, LF + 144
PR1, PR0 = 4, 2
pDBG = 24


def f32(x):
    return "0x%08x" % struct.unpack("<I", struct.pack("<f", x))[0]


def srd(a, d, base, size, add=0):
    if add:
        a(f"s_add_u32 s{d}, s{base}, {hex(add)}")
        a(f"s_addc_u32 s{d+1}, s{base+1}, 0")
    else:
        a(f"s_mov_b32 s{d}, s{base}")
        a(f"s_mov_b32 s{d+1}, s{base+1}")
    a(f"s_mov_b32 s{d+2}, {hex(size)}")
    a(f"s_mov_b32 s{d+3}, 0x20000")


def vr(b, n):
    return f"v[{b}:{b+n-1}]"


def sr(b, n=4):
    return f"s[{b}:{b+n-1}]"


def mfma(a, D, A, B, C=None):
    c = vr(D, 16) if C is None else (C if isinstance(C, str) else vr(C, 16))
    a(f"v_mfma_f32_32x32x16_bf16 {vr(D,16)}, {vr(A,4)}, {vr(B,4)}, {c}")


def stamp(a, i):
    if opt("cal", -1) == i:
        a("s_memrealtime s[70:71]")
    if PROF:
        a(f"s_memtime s[{72+2*i}:{73+2*i}]")


_cal = [0]


def endprof(a, n=12):
    if opt("cal", -1) >= 0:
        _cal[0] += 1
        L = f"CAL{_cal[0]}"
        if opt("cal", -1) == 13:
            a("s_memrealtime s[70:71]")
        a("s_cmp_lg_u32 s2, 3")
        a(f"s_cbranch_scc1 {L}_X")
        a(f"s_cmp_lg_u32 s3, {opt('cw', 0)}")
        a(f"s_cbranch_scc1 {L}_X")
        a("s_mov_b32 s74, 400000")
        a(f"{L}:")
        a("s_memrealtime s[72:73]")
        a("s_waitcnt lgkmcnt(0)")
        a("s_sub_u32 s74, s74, 1")
        a(f"s_cbranch_scc1 {L}_X")
        a("s_sub_u32 s72, s72, s70")
        a("s_cmp_lt_u32 s72, 10000")
        a(f"s_cbranch_scc1 {L}")
        a(f"{L}_X:")
    if not PROF:
        return
    a("s_waitcnt vmcnt(0)")
    a(f"s_memtime s[{72+2*(n+1)}:{73+2*(n+1)}]")
    a("s_memrealtime s[100:101]")
    a("s_mov_b64 exec, -1")
    srd(a, 28, pWS, MB, WS_P)
    a("s_lshl_b32 s52, s2, 4")
    a("s_add_u32 s52, s52, s3")
    a("s_lshl_b32 s52, s52, 7")
    a("s_waitcnt lgkmcnt(0)")
    a("v_mov_b32 v2, 0")
    a("v_mov_b32 v3, s70")
    a("buffer_store_dword v3, v2, s[28:31], s52 offen")
    a("v_mov_b32 v3, s100")
    a("buffer_store_dword v3, v2, s[28:31], s52 offen offset:4")
    for i in range(1, n + 2):
        a(f"s_sub_u32 s53, s{72+2*i}, s72")
        a("v_mov_b32 v3, s53")
        a(f"buffer_store_dword v3, v2, s[28:31], s52 offen offset:{4+4*i}")


def gemm_src(a, strideT, vT0, vT1, t0, t1):
    a(f"v_lshrrev_b32 v{t0}, 3, v1")
    a(f"v_mul_u32_u24 v{t0}, {strideT}, v{t0}")
    a(f"v_bfe_u32 v{t1}, v1, 4, 1")
    a(f"v_lshlrev_b32 v{t1}, 2, v{t1}")
    a(f"v_xor_b32 v{t1}, v{t1}, v1")
    a(f"v_and_b32 v{t1}, 7, v{t1}")
    a(f"v_lshl_add_u32 v{vT0}, v{t1}, 4, v{t0}")
    a(f"v_add_u32 v{vT1}, {8*strideT}, v{vT0}")


def gemm_rd(a, hmul, vR0, vR1, sL, sSwap, t0, t1):
    a(f"v_lshrrev_b32 v{t0}, 5, v1")
    a(f"v_mul_u32_u24 v{t0}, {hmul}, v{t0}")
    a(f"v_bfe_u32 v{t1}, v1, 2, 2")
    a(f"v_add_u32 v{t0}, v{t0}, v{t1}")
    a(f"v_lshlrev_b32 v{t0}, 7, v{t0}")
    a(f"v_bfe_u32 v{t1}, v1, 3, 1")
    a(f"v_lshl_add_u32 v{t0}, v{t1}, 6, v{t0}")
    a(f"v_bfe_u32 v{t1}, v1, 4, 1")
    a(f"v_lshl_add_u32 v{t0}, v{t1}, 5, v{t0}")
    a(f"v_and_b32 v{t1}, 3, v1")
    a(f"v_lshl_add_u32 v{t0}, v{t1}, 3, v{t0}")
    if sL is None:
        a(f"v_xor_b32 v{vR0}, s{sSwap}, v{t0}")
        return
    a(f"v_xor_b32 v{t0}, s{sSwap}, v{t0}")
    a(f"v_add_u32 v{vR0}, s{sL}, v{t0}")
    a(f"v_xor_b32 v{t0}, 64, v{t0}")
    a(f"v_add_u32 v{vR1}, s{sL}, v{t0}")


def lds_spin(a, lab, vaddr, off, want, vt, cnt, sleep=1):
    a(f"s_mov_b32 s{cnt}, 0x100000")
    a(f"{lab}:")
    a(f"ds_read_b32 v{vt}, v{vaddr} offset:{off}")
    a("s_waitcnt lgkmcnt(0)")
    a(f"v_cmp_ne_u32 vcc, {want}, v{vt}")
    a(f"s_sub_u32 s{cnt}, s{cnt}, 1")
    a(f"s_cbranch_scc1 {lab}_X")
    a(f"s_cbranch_vccz {lab}_X")
    a(f"s_sleep {sleep}")
    a(f"s_branch {lab}")
    a(f"{lab}_X:")


def poll(a, lab, n, vaddr, sF, soff, vt, vTag, cnt, sleep, extra=None, mask=None, save=None):
    a(f"s_mov_b32 s{cnt}, 0x40000")
    a(f"{lab}:")
    if n == 1:
        a(f"buffer_load_dwordx2 {vr(vt,2)}, v{vaddr}, {sr(sF)}, {soff} offen sc1")
    else:
        a(f"buffer_load_dwordx4 {vr(vt,4)}, v{vaddr}, {sr(sF)}, {soff} offen sc1")
    if n == 4:
        a(f"buffer_load_dwordx4 {vr(vt+4,4)}, v{vaddr}, {sr(sF)}, {soff} offen offset:16 sc1")
    a("s_waitcnt vmcnt(0)")
    if extra:
        a(extra)
    for i in range(2 * n):
        a(f"v_xor_b32 v{vt+i}, v{vt+i}, v{vTag + i % 2}")
    k = 2 * n
    i = 1
    while i < k:
        if i + 1 < k:
            a(f"v_or3_b32 v{vt}, v{vt}, v{vt+i}, v{vt+i+1}")
            i += 2
        else:
            a(f"v_or_b32 v{vt}, v{vt}, v{vt+i}")
            i += 1
    a(f"v_cmp_ne_u32 vcc, 0, v{vt}")
    a(f"s_sub_u32 s{cnt}, s{cnt}, 1")
    a(f"s_cbranch_scc1 {lab}_X")
    if mask is None:
        a(f"s_cbranch_vccz {lab}_X")
    else:
        a(f"s_and_b32 s{save}, vcc_lo, {mask}")
        a(f"s_cbranch_scc0 {lab}_X")
    a(f"s_sleep {sleep}")
    a(f"s_branch {lab}")
    a(f"{lab}_X:")
    if mask is not None:
        a(f"s_mov_b32 s{save}, vcc_lo")


def spoll(a, lab, words, dst, sF, sTag, cnt, sleep):
    a(f"s_mov_b32 s{cnt}, 0x40000")
    a(f"{lab}:")
    for i, (so, imm) in enumerate(words):
        a(f"s_buffer_load_dwordx2 s[{dst+2*i}:{dst+2*i+1}], {sr(sF)}, s{so} offset:{imm} glc")
    a("s_waitcnt lgkmcnt(0)")
    for i in range(len(words)):
        a(f"s_xor_b64 s[{dst+2*i}:{dst+2*i+1}], s[{dst+2*i}:{dst+2*i+1}], s[{sTag}:{sTag+1}]")
        if i:
            a(f"s_or_b64 s[{dst}:{dst+1}], s[{dst}:{dst+1}], s[{dst+2*i}:{dst+2*i+1}]")
    a(f"s_cbranch_scc0 {lab}_X")
    a(f"s_sub_u32 s{cnt}, s{cnt}, 1")
    a(f"s_cbranch_scc1 {lab}_X")
    a(f"s_sleep {sleep}")
    a(f"s_branch {lab}")
    a(f"{lab}_X:")


def publish(a, sF, soff, vTag, vt):
    a(f"v_lshlrev_b32 v{vt}, 20, v1")
    a("s_waitcnt vmcnt(0)")
    a(f"buffer_store_dwordx2 {vr(vTag,2)}, v{vt}, {sr(sF)}, s{soff} offen sc1")


def get_tag(a, vTag, vt):
    a(f"v_mov_b32 v{vt}, {L_TAG}")
    a(f"ds_read_b64 {vr(vTag,2)}, v{vt}")


def opt(name, default):
    return next((int(o[len(name):]) for o in OPT if o.startswith(name)), default)


def lds_wait(a, lab, base, n, vA, vt, cnt, sleep=1):
    a(f"v_and_b32 v{vA}, {n-1}, v1")
    a(f"v_lshlrev_b32 v{vA}, 2, v{vA}")
    a(f"v_add_u32 v{vA}, {base}, v{vA}")
    lds_spin(a, lab, vA, 0, 1, vt, cnt, sleep)


class Gemm:
    def __init__(s, a, nsteps, P, srdT, srdD, sT, sD, sL, strideT, stepD, t_is_A, vT0, vT1, vD0, vD1, vR0, vR1, qoff,
                 Tf, Df, acc, dflags, sW, G):
        s.__dict__.update(locals())
        s.log = []

    def idx(s, i, dst, base, stride):
        a = s.a
        g0 = i // s.G * s.G
        gs = min(s.G, s.nsteps - g0)
        assert gs & (gs - 1) == 0
        a(f"s_add_u32 s{dst}, s{s.sW}, {i - g0}")
        a(f"s_and_b32 s{dst}, s{dst}, {gs - 1}")
        a(f"s_add_u32 s{dst}, s{dst}, {g0}")
        a(f"s_mul_i32 s{dst}, s{dst}, {stride}")
        a(f"s_add_u32 s{dst}, s{dst}, s{base}")

    def LD1(s, i, half):
        if i >= s.nsteps:
            return
        if "nold" in OPT and i > 3:
            s.a("s_sleep 1")
            return
        d = s.Df + 8 * (i % (s.P + 1)) + 4 * half
        if not half:
            s.idx(i, s.sW + 2, s.sD, s.stepD)
        s.a(f"buffer_load_dwordx4 {vr(d,4)}, v{(s.vD0, s.vD1)[half]}, {sr(s.srdD)}, s{s.sW+2} offen{s.dflags}")
        s.log.append(("D", i))

    def DMA1(s, i, half):
        if i >= s.nsteps:
            return
        if "nold" in OPT and i > 3:
            s.a("s_sleep 1")
            return
        a = s.a
        sl = (i % s.P) * 2048 + 1024 * half
        a(f"s_add_u32 m0, s{s.sL}, {sl}")
        if not half:
            s.idx(i, s.sW + 1, s.sT, 16 * s.strideT)
        else:
            a("s_nop 0")
        a(f"buffer_load_dwordx4 v{(s.vT0, s.vT1)[half]}, {sr(s.srdT)}, s{s.sW+1} offen lds")
        s.log.append(("T", i))

    def rd(s, i):
        sl = (i % s.P) * 2048
        t = s.Tf + 8 * (i % 2)
        for b, vR in ((0, s.vR0), (1, s.vR1)):
            for q in range(2):
                s.a(f"ds_read_b64_tr_b16 {vr(t+4*b+2*q,2)}, v{vR} offset:{sl+q*s.qoff}")

    def wait_for(s, items):
        if "nold" in OPT:
            s.a("s_waitcnt vmcnt(0)")
            return
        last = max(idx for idx, it in enumerate(s.log) if it in items)
        s.a(f"s_waitcnt vmcnt({min(63, len(s.log) - 1 - last)})")

    def pro_T(s):
        for j in range(s.P):
            s.DMA1(j, 0)
            s.DMA1(j, 1)

    def pro_D(s):
        for j in range(s.P):
            s.LD1(j, 0)
            s.LD1(j, 1)

    def main(s, hooks={}):
        a = s.a
        s.wait_for([("T", 0)])
        s.rd(0)
        a("s_waitcnt lgkmcnt(0)")
        s.DMA1(s.P, 0)
        s.DMA1(s.P, 1)
        if "mp3" not in OPT:
            a("s_setprio 0")
        n = s.nsteps
        for i in range(n):
            if i in hooks:
                hooks[i]()
            need = [("D", i)] + ([("T", i + 1)] if i + 1 < n else [])
            s.wait_for(need)
            t, d = s.Tf + 8 * (i % 2), s.Df + 8 * (i % (s.P + 1))
            for k in range(4):
                x, y = k // 2, k % 2
                C = "0" if i == 0 else None
                if "nomm" in OPT and i > 0:
                    pass
                elif s.t_is_A:
                    mfma(a, s.acc + 16 * k, t + 4 * x, d + 4 * y, C)
                else:
                    mfma(a, s.acc + 16 * k, d + 4 * x, t + 4 * y, C)
                if k == 0:
                    if i + 1 < n:
                        s.rd(i + 1)
                    s.LD1(i + s.P, 0)
                elif k == 1:
                    s.LD1(i + s.P, 1)
                elif k == 2:
                    if i + 1 < n:
                        a("s_waitcnt lgkmcnt(0)")
                    s.DMA1(i + 1 + s.P, 0)
                else:
                    s.DMA1(i + 1 + s.P, 1)
        a("s_setprio 3")


def gelu(a, X, T, U, n, s0):
    k = math.sqrt(2 / math.pi)
    a(f"v_mov_b32 v{U}, {f32(-2*k*LOG2E)}")
    a(f"v_mov_b32 v{U+1}, {f32(-2*k*LOG2E)}")
    a(f"v_mov_b32 v{U+2}, {f32(-2*k*LOG2E*0.044715)}")
    a(f"v_mov_b32 v{U+3}, {f32(-2*k*LOG2E*0.044715)}")
    a(f"v_mov_b32 v{U+4}, 1.0")
    a(f"v_mov_b32 v{U+5}, 1.0")
    for i in range(0, n, 2):
        a(f"v_pk_mul_f32 {vr(T+i,2)}, {vr(X+i,2)}, {vr(X+i,2)}")
    for i in range(0, n, 2):
        a(f"v_pk_fma_f32 {vr(T+i,2)}, {vr(T+i,2)}, {vr(U+2,2)}, {vr(U,2)}")
    for i in range(0, n, 2):
        a(f"v_pk_mul_f32 {vr(T+i,2)}, {vr(T+i,2)}, {vr(X+i,2)}")
    for i in range(n):
        a(f"v_exp_f32 v{T+i}, v{T+i}")
    for i in range(0, n, 2):
        a(f"v_pk_add_f32 {vr(T+i,2)}, {vr(T+i,2)}, {vr(U+4,2)}")
    for i in range(n):
        a(f"v_rcp_f32 v{T+i}, v{T+i}")
    for i in range(0, n, 2):
        a(f"v_pk_mul_f32 {vr(X+i,2)}, {vr(X+i,2)}, {vr(T+i,2)}")


def mreduce(a, tag, acc, sL, fl, vA, vB, vT, R, cnt):
    a(f"v_lshlrev_b32 v{vA}, 4, v1")
    a(f"v_add_u32 v{vA}, s{sL}, v{vA}")
    a(f"v_mov_b32 v{vB}, s{sL}")
    a(f"v_mov_b32 v{vT+1}, 1")
    a("s_nop 7")
    wr, rdb = {1: 0, 2: 1, 3: 3}, {1: 1, 2: 3, 3: 0}

    def add():
        for i in range(0, 16, 2):
            a(f"v_pk_add_f32 {vr(acc+i,2)}, {vr(acc+i,2)}, {vr(R+i,2)}")

    for r in (1, 2, 3):
        if wr[r]:
            a(f"v_xor_b32 v{vT+2}, {8192*wr[r]}, v{vA}")
        for i in range(4):
            a(f"ds_write_b128 v{vT+2 if wr[r] else vA}, {vr(acc+16*r+4*i,4)} offset:{1024*i}")
        a(f"v_xor_b32 v{vT+3}, {8192*r}, v{vB}")
        if r > 1:
            add()
        a("s_waitcnt lgkmcnt(0)")
        a(f"ds_write_b32 v{vB}, v{vT+1} offset:{6144+fl+4*(r-1)}")
        lds_spin(a, f"{tag}_R{r}", vT + 3, 6144 + fl + 4 * (r - 1), 1, vT, cnt)
        if rdb[r]:
            a(f"v_xor_b32 v{vT+2}, {8192*rdb[r]}, v{vA}")
        for i in range(4):
            a(f"ds_read_b128 {vr(R+4*i,4)}, v{vT+2 if rdb[r] else vA} offset:{1024*i}")
        a("s_waitcnt lgkmcnt(0)")
    add()


def kernel(a):
    global PROF
    nm = NAME + "_kernel"
    a.raw(f".globl {nm}")
    a.raw(".p2align 8")
    a.raw(f".type {nm},@function")
    a(f"{nm}:")
    if PROF:
        a("s_memrealtime s[70:71]")
        a("s_memtime s[72:73]")
    stamp(a, 0) if not PROF else None
    SLOT, NS = 32768, 4
    vTag = 166
    a("s_cmp_ge_u32 s2, 256")
    a("s_cbranch_scc1 END")
    a("s_load_dwordx16 s[4:19], s[0:1], 0")
    a("s_load_dwordx8 s[20:27], s[0:1], 64")
    a("v_lshrrev_b32 v2, 6, v0")
    a("v_and_b32 v1, 63, v0")
    a("v_readfirstlane_b32 s3, v2")
    a("s_and_b32 s52, s2, 7")
    a("s_lshr_b32 s53, s2, 3")
    a("s_mul_i32 s55, s53, 43")
    a("s_lshr_b32 s55, s55, 8")
    a("s_mul_i32 s56, s55, 6")
    a("s_sub_u32 s56, s53, s56")
    a("s_lshl_b32 s58, s55, 1")
    a("s_add_u32 s58, s58, s56")
    a("s_lshr_b32 s54, s52, 1")
    a("s_lshl_b32 s54, s54, 2")
    a("s_add_u32 s54, s54, s55")
    a("s_and_b32 s55, s52, 1")
    a("s_mul_i32 s55, s55, 6")
    a("s_add_u32 s55, s55, s56")
    a("s_cmp_ge_u32 s3, 8")
    a("s_cbranch_scc1 P1_M")
    a("s_cmp_ge_u32 s53, 24")
    a("s_cbranch_scc1 SVC")
    a("s_cmp_ge_u32 s3, 4")
    a("s_cbranch_scc1 P1_LOAD")

    vXA, vWA = 10, 18
    Fb = 112
    acc = 48
    a("s_and_b32 s56, s3, 1")
    a("s_lshr_b32 s57, s3, 1")
    a("s_lshl_b32 s59, s56, 13")
    a("v_and_b32 v2, 31, v1")
    a("v_lshrrev_b32 v3, 5, v1")
    a("v_bfe_u32 v9, v1, 1, 3")
    a("v_lshlrev_b32 v2, 7, v2")
    a("v_add_u32 v2, s59, v2")
    for kk in range(4):
        a(f"v_add_u32 v30, {2*kk}, v3")
        a("v_xor_b32 v30, v30, v9")
        a(f"v_lshl_add_u32 v{vXA+kk}, v30, 4, v2")
        a(f"v_add_u32 v{vXA+4+kk}, {2*SLOT}, v{vXA+kk}")
    a("s_lshl_b32 s59, s57, 13")
    a("s_add_u32 s59, s59, 16384")
    a("s_mov_b32 s60, 0")
    gemm_rd(a, 8, vWA, vWA + 1, 59, 60, 2, 9)
    a(f"v_add_u32 v{vWA+2}, {2*SLOT}, v{vWA}")
    a(f"v_add_u32 v{vWA+3}, {2*SLOT}, v{vWA+1}")
    a("s_and_b32 s59, s55, 3")
    a("s_lshl_b32 s59, s59, 1")
    a("s_add_u32 s59, s59, s57")
    a("s_lshl_b32 s60, s54, 1")
    a("s_add_u32 s60, s60, s56")
    a("s_lshr_b32 s61, s55, 2")
    a("s_lshl_b32 s62, s61, 8")
    a("s_lshl_b32 s63, s59, 5")
    a("s_add_u32 s62, s62, s63")
    a("s_add_u32 s62, s62, s60")
    a("s_lshl_b32 s62, s62, 7")
    a(f"s_add_u32 s62, s62, {F_QKV}")
    a("s_lshl_b32 s63, s59, 18")
    a("s_lshl_b32 s64, s60, 11")
    a("s_add_u32 s63, s63, s64")
    a("s_lshl_b32 s64, s63, 1")
    a(f"s_add_u32 s64, s64, {WS_KV - WS_Q}")
    a("s_cmp_eq_u32 s61, 0")
    a("s_cselect_b32 s63, s63, s64")
    a("s_cselect_b32 s65, 1, 2")
    a(f"s_cselect_b32 s66, {f32(0.25*LOG2E)}, 1.0")
    a("s_mov_b32 s67, s66")
    a("s_lshl_b32 s64, s65, 16")
    a("s_lshl_b32 s65, s65, 10")
    a("v_lshlrev_b32 v2, 4, v1")
    a("v_bfe_u32 v9, v1, 4, 1")
    a("v_lshlrev_b32 v9, 17, v9")
    a("v_lshl_add_u32 v9, v3, 8, v9")
    a("v_and_b32 v30, 15, v1")
    a("v_lshl_add_u32 v9, v30, 4, v9")
    a("s_lshl_b32 s59, s3, 2")
    a(f"s_add_u32 s59, s59, {L_PUB}")
    a("v_mov_b32 v31, s59")
    a("v_mov_b32 v30, 1")
    a("s_waitcnt lgkmcnt(0)")
    srd(a, 28, pWS, 6 * MB, WS_Q)
    srd(a, 36, pWS, SZ_F, WS_F)
    a("s_cmp_eq_u32 s61, 2")
    a("s_cbranch_scc1 P1_V")

    def reads(t):
        c, kk = t // 4, t % 4
        s = c % NS
        st, so = s // 2, (s % 2) * SLOT
        f = Fb + 16 * (t % 3)
        r = []
        for b in range(2):
            r.append(f"ds_read_b128 {vr(f+4*b,4)}, v{vXA+4*st+kk} offset:{so+b*4096}")
            for q in range(2):
                r.append(f"ds_read_b64_tr_b16 {vr(f+8+4*b+2*q,2)}, v{vWA+2*st+b} offset:{so+kk*2048+q*512}")
        return r

    def p1main(vtype):
        a("s_barrier")
        stamp(a, 1)
        for t in range(2):
            for x in reads(t):
                a(x)
        for t in range(32):
            if t % 4 == 2 and t + 2 < 32:
                a("s_barrier")
            a(f"s_waitcnt lgkmcnt({6 if t + 1 < 32 else 0})")
            rr = reads(t + 2) if t + 2 < 32 else []
            f = Fb + 16 * (t % 3)
            for j in range(4):
                cb, tb = j // 2, j % 2
                X, W = f + 4 * tb, f + 8 + 4 * cb
                if vtype:
                    mfma(a, acc + 16 * j, X, W, "0" if t == 0 else None)
                else:
                    mfma(a, acc + 16 * j, W, X, "0" if t == 0 else None)
                for x in rr[(0, 2, 4, 6)[j]:(2, 4, 6, 6)[j]]:
                    a(x)
        stamp(a, 2)
        get_tag(a, vTag, 32)
        for j in range(4):
            cb, tb = j // 2, j % 2
            if j == 0:
                a("s_mov_b32 s59, s63")
            elif j == 1:
                a("s_add_u32 s59, s63, s65")
            elif j == 2:
                a("s_lshl_b32 s60, s64, 1")
                a("s_add_u32 s63, s63, s60")
                a("s_mov_b32 s59, s63")
            else:
                a("s_add_u32 s59, s63, s65")
            a("s_add_u32 s60, s59, s64")
            for hf in range(2):
                A0, r = acc + 16 * j + 8 * hf, Fb + 8 * j + 4 * hf
                if not vtype:
                    for i in range(0, 8, 2):
                        a(f"v_pk_mul_f32 {vr(A0+i,2)}, {vr(A0+i,2)}, s[66:67]")
                for i in range(4):
                    a(f"v_cvt_pk_bf16_f32 v{r+i}, v{A0+2*i}, v{A0+2*i+1}")
                if vtype:
                    a(f"buffer_store_dwordx4 {vr(r,4)}, v9, {sr(28)}, s59 offen offset:{1024+512*hf} sc1")
                else:
                    a(f"buffer_store_dwordx4 {vr(r,4)}, v2, {sr(28)}, s{59+hf} offen sc1")

    p1main(False)
    a("s_branch P1_PUB")
    a("P1_V:")
    p1main(True)
    a("P1_PUB:")
    a(f"ds_write_b32 v31, v30 offset:{L_ISS-L_PUB}")
    a("s_waitcnt lgkmcnt(0)")
    publish(a, 36, 62, vTag, 32)
    a("ds_write_b32 v31, v30")
    stamp(a, 3)
    a("s_branch ATT")

    a("SVC:")
    raw, gwr, X, GW, SUM, DOT = 4, 36, 40, 104, 112, 120
    a("s_waitcnt lgkmcnt(0)")
    srd(a, 36, pWS, SZ_F, WS_F)
    a("s_cmp_ge_u32 s3, 4")
    a("s_cbranch_scc1 SVC_W")
    a("s_lshl_b32 s56, s52, 3")
    a("s_and_b32 s57, s53, 7")
    a("s_add_u32 s56, s56, s57")
    a("s_lshl_b32 s56, s56, 2")
    a("s_add_u32 s56, s56, s3")
    a("s_lshl_b32 s57, s56, 13")
    a("v_lshlrev_b32 v2, 4, v1")
    a("s_add_u32 s58, s57, 4096")
    srd(a, 28, pX, 2 * MB)
    srd(a, 32, pGW, 1024)
    for r in range(8):
        a(f"buffer_load_dwordx4 {vr(raw+4*r,4)}, v2, {sr(28)}, s{57 + r//4} offen offset:{(r%4)*1024}")
    a(f"buffer_load_dwordx4 {vr(gwr,4)}, v2, {sr(32)}, 0 offen")
    srd(a, 28, pWS, 2 * MB, WS_HT)
    srd(a, 32, pWS, 8192, WS_G)
    a("s_mov_b32 s59, 0xffff0000")
    a("s_waitcnt vmcnt(0)")
    a("s_barrier")
    stamp(a, 1)
    get_tag(a, vTag, 3)
    for i in range(4):
        a(f"v_lshlrev_b32 v{GW+2*i}, 16, v{gwr+i}")
        a(f"v_and_b32 v{GW+2*i+1}, s59, v{gwr+i}")
    for r in range(8):
        for i in range(4):
            a(f"v_lshlrev_b32 v{X+8*r+2*i}, 16, v{raw+4*r+i}")
            a(f"v_and_b32 v{X+8*r+2*i+1}, s59, v{raw+4*r+i}")
    T = raw
    for r in range(8):
        a(f"v_pk_add_f32 {vr(T+4*r,2)}, {vr(X+8*r,2)}, {vr(X+8*r+2,2)}")
        a(f"v_pk_mul_f32 {vr(T+4*r+2,2)}, {vr(X+8*r,2)}, {vr(GW,2)}")
    for e in (2, 4, 6):
        for r in range(8):
            if e >= 4:
                a(f"v_pk_add_f32 {vr(T+4*r,2)}, {vr(T+4*r,2)}, {vr(X+8*r+e,2)}")
            a(f"v_pk_fma_f32 {vr(T+4*r+2,2)}, {vr(X+8*r+e,2)}, {vr(GW+e,2)}, {vr(T+4*r+2,2)}")
    for r in range(8):
        a(f"v_add_f32 v{SUM+r}, v{T+4*r}, v{T+4*r+1}")
        a(f"v_add_f32 v{DOT+r}, v{T+4*r+2}, v{T+4*r+3}")

    def reduce(regs):
        for mod in ("row_shr:1 row_mask:0xf", "row_shr:2 row_mask:0xf", "row_shr:4 row_mask:0xf", "row_shr:8 row_mask:0xf",
                    "row_bcast:15 row_mask:0xa", "row_bcast:31 row_mask:0xc"):
            for r in regs:
                a(f"v_add_f32_dpp v{r}, v{r}, v{r} {mod} bank_mask:0xf")

    reduce(list(range(SUM, SUM + 8)))
    for r in range(8):
        a(f"v_mul_f32 v{SUM+r}, {f32(1/512)}, v{SUM+r}")
    for r in range(8):
        a(f"v_readlane_b32 s{40+r}, v{SUM+r}, 63")
    for e in range(8):
        for r in range(8):
            a(f"v_subrev_f32 v{X+8*r+e}, s{40+r}, v{X+8*r+e}")
    for r in range(8):
        a(f"v_pk_mul_f32 {vr(T+4*r,2)}, {vr(X+8*r,2)}, {vr(X+8*r,2)}")
    for e in (2, 4, 6):
        for r in range(8):
            a(f"v_pk_fma_f32 {vr(T+4*r,2)}, {vr(X+8*r+e,2)}, {vr(X+8*r+e,2)}, {vr(T+4*r,2)}")
    for r in range(8):
        a(f"v_add_f32 v{SUM+r}, v{T+4*r}, v{T+4*r+1}")
    reduce(list(range(SUM, SUM + 8)))
    a(f"v_mov_b32 v3, {f32(1e-5)}")
    a(f"s_mov_b32 s60, {f32(1/512)}")
    for r in range(8):
        a(f"v_fma_f32 v{SUM+r}, v{SUM+r}, s60, v3")
    for r in range(8):
        a(f"v_rsq_f32 v{SUM+r}, v{SUM+r}")
    a("s_nop 0")
    for r in range(8):
        a(f"v_readlane_b32 s{40+r}, v{SUM+r}, 63")
    a("s_lshl_b32 s60, s3, 13")
    a("s_add_u32 s60, s60, 65536")
    a("v_lshlrev_b32 v3, 7, v1")
    a(f"v_and_b32 v{GW}, 7, v1")
    a(f"v_lshl_add_u32 v3, v{GW}, 4, v3")
    a("v_add_u32 v3, s60, v3")
    a(f"v_lshrrev_b32 v{GW+1}, 3, v1")
    a(f"v_xor_b32 v{GW}, v{GW}, v{GW+1}")
    a(f"v_lshlrev_b32 v{GW+1}, 7, v{GW+1}")
    a(f"v_lshl_add_u32 v{GW}, v{GW}, 4, v{GW+1}")
    a(f"v_add_u32 v{GW}, s60, v{GW}")
    for e in range(8):
        for r in range(8):
            a(f"v_mul_f32 v{X+8*r+e}, s{40+r}, v{X+8*r+e}")
        for p in range(4):
            a(f"v_cvt_pk_bf16_f32 v{raw+4*e+p}, v{X+16*p+e}, v{X+16*p+8+e}")
        a(f"v_xor_b32 v{GW+2}, {16*e}, v3")
        a(f"ds_write_b128 v{GW+2}, {vr(raw+4*e,4)}")
    a("s_waitcnt lgkmcnt(0)")
    for j in range(8):
        a(f"ds_read_b128 {vr(raw+4*j,4)}, v{GW} offset:{j*1024}")
    for j in range(8):
        a(f"s_waitcnt lgkmcnt({7-j})")
        a(f"buffer_store_dwordx4 {vr(raw+4*j,4)}, v2, {sr(28)}, s{57 + j//4} offen offset:{(j%4)*1024} sc1")
    reduce(list(range(DOT, DOT + 8)))
    for r in range(8):
        a(f"v_mul_f32 v{DOT+r}, {f32(-LOG2E)}, v{DOT+r}")
    for r in range(8):
        a(f"v_exp_f32 v{DOT+r}, v{DOT+r}")
    for r in range(8):
        a(f"v_add_f32 v{DOT+r}, 1.0, v{DOT+r}")
    for r in range(8):
        a(f"v_rcp_f32 v{DOT+r}, v{DOT+r}")
    a("s_lshl_b32 s60, s56, 5")
    a("v_mov_b32 v3, 0")
    a("s_mov_b32 exec_lo, 0")
    a("s_mov_b32 exec_hi, 0x80000000")
    a(f"buffer_store_dwordx4 {vr(DOT,4)}, v3, {sr(32)}, s60 offen sc1")
    a(f"buffer_store_dwordx4 {vr(DOT+4,4)}, v3, {sr(32)}, s60 offen offset:16 sc1")
    a("s_mov_b64 exec, -1")
    stamp(a, 2)
    a("s_lshl_b32 s60, s56, 3")
    publish(a, 36, 60, vTag, 3)
    a("s_barrier")
    stamp(a, 3)
    a("s_branch L_TAIL")
    a("SVC_W:")
    if "wt" in OPT:
        a("s_and_b32 s56, s53, 7")
        a("s_lshl_b32 s56, s56, 2")
        a("s_add_u32 s56, s56, s3")
        a("s_sub_u32 s56, s56, 4")
        a("s_mul_i32 s57, s56, 43")
        a("s_lshr_b32 s57, s57, 8")
        a("s_mul_i32 s58, s57, 6")
        a("s_sub_u32 s58, s56, s58")
        a("s_lshl_b32 s57, s57, 1")
        a("s_add_u32 s57, s57, s58")
        a("s_add_u32 s57, s57, 1")
        a("s_and_b32 s57, s57, 7")
        a("s_mul_i32 s57, s57, 196608")
        a("s_and_b32 s59, s52, 1")
        a("s_mul_i32 s59, s59, 6")
        a("s_add_u32 s58, s58, s59")
        a("s_lshl_b32 s58, s58, 8")
        a("s_add_u32 s57, s57, s58")
        srd(a, 32, pWQKV, 512 * 3072)
        a("v_mul_u32_u24 v2, 3072, v1")
        a("s_cmp_ge_u32 s56, 24")
        a("s_cbranch_scc1 SVC_W2")
        a(f"buffer_load_dword v4, v2, {sr(32)}, s57 offen")
        a(f"buffer_load_dword v5, v2, {sr(32)}, s57 offen offset:128")
        a("SVC_W2:")
    a("s_barrier")
    a("s_barrier")
    a("s_branch L_TAIL")

    a("P1_LOAD:")
    vX0, vT0, vT1 = 4, 8, 9
    a("s_sub_u32 s59, s3, 4")
    a("v_lshrrev_b32 v2, 3, v1")
    a("v_and_b32 v3, 7, v1")
    a("v_lshrrev_b32 v20, 4, v1")
    a("v_xor_b32 v3, v3, v20")
    a("v_lshlrev_b32 v2, 10, v2")
    a(f"v_lshl_add_u32 v{vX0}, v3, 4, v2")
    a(f"v_xor_b32 v3, 4, v3")
    a(f"v_lshl_add_u32 v{vX0+1}, v3, 4, v2")
    a(f"v_add_u32 v{vX0+1}, 8192, v{vX0+1}")
    a(f"v_add_u32 v{vX0+2}, 16384, v{vX0}")
    a(f"v_add_u32 v{vX0+3}, 16384, v{vX0+1}")
    gemm_src(a, 3072, vT0, vT1, 2, 3)
    a("s_lshl_b32 s60, s54, 17")
    a("s_lshl_b32 s61, s59, 15")
    a("s_add_u32 s60, s60, s61")
    a("s_mul_i32 s61, s59, 49152")
    a("s_lshl_b32 s62, s55, 8")
    a("s_add_u32 s61, s61, s62")
    a("s_lshl_b32 s62, s59, 12")
    a("s_lshl_b32 s65, s59, 11")
    a("s_waitcnt lgkmcnt(0)")
    srd(a, 28, pX, 2 * MB)
    srd(a, 32, pWQKV, 512 * 3072)

    def dma(c):
        sl = (c % NS) * SLOT
        for t in ["s_and_b32 s58, s58, 7", "s_lshl_b32 s63, s58, 7", "s_add_u32 s63, s63, s60",
                  "s_mul_i32 s64, s58, 196608", "s_add_u32 s64, s64, s61", "s_add_u32 s58, s58, 1"]:
            a(t)
        def dx():
            for n in range(4):
                a(f"s_add_u32 m0, s62, {sl + n*1024}")
                a("s_nop 0")
                a(f"buffer_load_dwordx4 v{vX0+n}, {sr(28)}, s63 offen lds")

        def dw():
            for n, v in enumerate((vT0, vT1)):
                for hf in range(2):
                    a(f"s_add_u32 m0, s65, {sl + 16384 + hf*(8192-128) + n*1024}")
                    a("s_nop 0")
                    a(f"buffer_load_dwordx4 v{v}, {sr(32)}, s64 offen offset:{hf*128} lds")
        if c == 1 and "wfirst" in OPT:
            dw(); dx()
        else:
            dx(); dw()

    dma(0)
    for c in range(8):
        if c + 1 < 8:
            dma(c + 1)
            a("s_waitcnt vmcnt(8)")
        else:
            a("s_waitcnt vmcnt(0)")
        if "p1st" in OPT and c >= 1:
            stamp(a, 5 + c)
        a("s_barrier")
        if c == 0:
            stamp(a, 1)
    stamp(a, 2)
    if "p1st" in OPT:
        PROF = False
    a("L_TAIL:")
    get_tag(a, vTag, 2)
    srd(a, 28, pWS, 6 * MB, WS_Q)
    srd(a, 36, pWS, SZ_F, WS_F)
    lds_wait(a, "L_ISSW", L_PUB, 4, 3, 4, 62, 2)

    a("ATT:")
    Q, C, S, P, O, Kb, Vb = 4, 8, 24, 56, 64, 80, 88
    vL16, vLV, vK, vV, vOne, vF = 2, 3, 104, 105, 106, 107
    a("s_lshl_b32 s54, s52, 2")
    a("s_and_b32 s55, s53, 3")
    a("s_add_u32 s54, s54, s55")
    a("s_lshr_b32 s55, s53, 2")
    a("s_lshl_b32 s56, s55, 3")
    a("s_add_u32 s56, s56, s3")
    a("s_lshl_b32 s57, s54, 16")
    a("s_lshl_b32 s58, s56, 10")
    a("s_add_u32 s57, s57, s58")
    a("s_lshl_b32 s58, s3, 11")
    a("s_lshl_b32 s59, s54, 17")
    a("s_add_u32 s59, s59, s58")
    a(f"s_add_u32 s59, s59, {WS_KV - WS_Q}")
    a("s_lshl_b32 s60, s52, 5")
    a("s_lshr_b32 s61, s3, 1")
    a("s_add_u32 s60, s60, s61")
    a("s_lshl_b32 s60, s60, 7")
    a(f"s_add_u32 s60, s60, {F_QKV}")
    a("s_lshl_b32 s61, s55, 9")
    a("v_and_b32 v110, 1, v1")
    a("v_add_u32 v110, 1, v110")
    a("v_lshlrev_b32 v110, 15, v110")
    a("v_bfe_u32 v109, v1, 1, 2")
    a("v_lshl_add_u32 v112, v109, 9, v110")
    a("v_mov_b32 v110, s61")
    a("v_cmp_eq_u32 vcc, 3, v109")
    a("s_nop 0")
    a("v_cndmask_b32 v112, v112, v110, vcc")
    a("v_lshrrev_b32 v3, 5, v1")
    a(f"v_lshlrev_b32 v{vL16}, 4, v1")
    a("v_lshlrev_b32 v3, 8, v3")
    a("v_and_b32 v104, 15, v1")
    a("v_lshl_add_u32 v3, v104, 4, v3")
    a(f"v_add_u32 v{vLV}, 1024, v3")
    a(f"v_mov_b32 v{vK}, v{vL16}")
    a(f"v_mov_b32 v{vV}, v{vLV}")
    a("s_mov_b32 s40, 0x0000ffff")
    a("s_mov_b32 s41, 0x0000ffff")
    a("s_mov_b32 s42, 0")
    a(f"v_and_b32 v{vOne}, 27, v1")
    a(f"v_cmp_eq_u32 vcc, 16, v{vOne}")
    a(f"v_mov_b32 v{vOne}, 0x3f803f80")
    a(f"v_cndmask_b32 v{vOne}, 0, v{vOne}, vcc")
    for i in range(16):
        a(f"v_mov_b32 v{Vb+i}, v{vOne}")
    for i in range(16):
        a(f"v_mov_b32 v{O+i}, 0")
    for i in range(4):
        a(f"v_mov_b32 v{P+4+i}, 0")
    a("s_lshl_b32 s63, s3, 2")
    a(f"s_add_u32 s63, s63, {L_C0F}")
    a("v_mov_b32 v108, s63")
    a("v_mov_b32 v109, 1")
    a(f"v_and_b32 v{vF}, 7, v1")
    a(f"v_lshlrev_b32 v{vF}, 2, v{vF}")
    a(f"v_add_u32 v{vF}, {L_C0F}, v{vF}")
    a("v_and_b32 v111, 3, v1")
    a("v_lshlrev_b32 v111, 2, v111")
    a(f"v_add_u32 v111, {L_KVF}, v111")
    KW, VW = 32768, 65536
    poll(a, "A_POLL", 1, 112, 36, "s60", S, vTag, 62, opt("as", 2), mask=0xc3, save=61)
    stamp(a, 4)
    a("s_mov_b32 m0, s58")
    a("s_setprio 2")
    a(f"buffer_load_dwordx4 v{vL16}, {sr(28)}, s59 offen sc1 lds")
    a(f"buffer_load_dwordx4 {vr(Q,4)}, v{vL16}, {sr(28)}, s57 offen sc1")
    a(f"buffer_load_dwordx4 v{vL16}, {sr(28)}, s59 offen offset:1024 sc1 lds")
    def c12():
        for c in (1, 2):
            a(f"s_add_u32 m0, s58, {16384*c}")
            a("s_add_u32 s59, s59, 16384")
            a(f"buffer_load_dwordx4 v{vL16}, {sr(28)}, s59 offen sc1 lds")
            a(f"buffer_load_dwordx4 v{vL16}, {sr(28)}, s59 offen offset:1024 sc1 lds")

    if "c12early" in OPT:
        a("s_cmp_eq_u32 s61, 0")
        a("s_cbranch_scc0 A_LATE")
        c12()
        a("s_waitcnt vmcnt(4)")
        a("s_branch A_LATE2")
        a("A_LATE:")
    a("s_waitcnt vmcnt(0)")
    a("A_LATE2:")
    a("ds_write_b32 v108, v109")
    lds_spin(a, "A_C0", vF, 0, 1, 110, 62)
    stamp(a, 5)

    def rdK(buf, off):
        a(f"ds_read_b128 {vr(Kb+4*buf,4)}, v{vK} offset:{off}")

    def rdV(buf, off):
        a("s_mov_b64 exec, s[40:41]")
        a(f"ds_read_b128 {vr(Vb+8*buf,4)}, v{vV} offset:{off}")
        a(f"ds_read_b128 {vr(Vb+8*buf+4,4)}, v{vV} offset:{off+512}")
        a("s_mov_b64 exec, -1")

    def setC(src):
        a(f"v_mov_b32 v{src+1}, v{src}")
        a(f"v_permlane32_swap_b32 v{src}, v{src+1}")
        a(f"v_max_f32 v{src}, v{src}, v{src+1}")
        a(f"v_sub_f32 v{C}, 0, v{src}")
        for i in range(1, 16):
            a(f"v_mov_b32 v{C+i}, v{C}")

    a("s_cmp_eq_u32 s61, 0")
    a("s_cbranch_scc1 A_POLL2_X" if "c12early" not in OPT else "s_cbranch_scc1 A_C12")
    poll(a, "A_POLL2", 1, 112, 36, "s60", S, vTag, 62, 2)
    c12()
    a("A_C12:")
    srd(a, 28, pWS, 2 * MB, WS_O)
    rdK(0, 0)
    rdK(1, 2048)
    rdV(0, 0)
    a("s_waitcnt lgkmcnt(3)")
    mfma(a, S, Kb, Q, "0")
    a(f"v_max3_f32 v{S}, v{S}, v{S+1}, v{S+2}")
    for i in range(3, 15, 2):
        a(f"v_max3_f32 v{S}, v{S}, v{S+i}, v{S+i+1}")
    a(f"v_max_f32 v{S}, v{S}, v{S+15}")
    setC(S)
    mfma(a, S, Kb, Q, C)
    a("s_mov_b32 s43, 16384")
    a("s_mov_b32 s44, 8")
    a(f"s_mov_b32 s45, {(1<<8)|(1<<6)|(1<<PR1)|(1<<PR0)}")

    def tile(i):
        b = i % 2
        Sc, Sn = S + 16 * b, S + 16 * (1 - b)
        e = lambda k: a(f"v_exp_f32 v{Sc+k}, v{Sc+k}")
        c = lambda k: a(f"v_cvt_pk_bf16_f32 v{P+k}, v{Sc+2*k}, v{Sc+2*k+1}")
        e(0); e(1)
        mfma(a, O, Vb + 8 * (1 - b) + 4, P + 4)
        for k in range(2, 8):
            e(k)
        a("s_waitcnt lgkmcnt(2)")
        mfma(a, Sn, Kb + 4 * (1 - b), Q, C)
        if i == 6:
            a("s_bitcmp1_b32 s45, s44")
            a(f"v_add_u32 v{vK}, s43, v{vL16}")
            a("s_cbranch_scc1 A_EVENT")
            a("A_BACK:")
        rdK(b, ((i + 2) % 8) * 2048)
        for k in range(4):
            c(k)
        for k in range(8, 12):
            e(k)
        a("s_waitcnt lgkmcnt(1)")
        mfma(a, O, Vb + 8 * b, P)
        if i == 7:
            a(f"v_add_u32 v{vV}, s43, v{vLV}")
            a("s_add_u32 s43, s43, 16384")
            a("s_and_b32 s43, s43, 0x1ffff")
        rdV(1 - b, ((i + 1) % 8) * 2048)
        for k in range(12, 16):
            e(k)
        if i == 7:
            a("s_sub_u32 s44, s44, 1")
            a("s_cmp_lg_u32 s44, 0")
        for k in range(4, 8):
            c(k)

    a("s_nop 7")
    a.raw(".p2align 6")
    a("A_LOOP:")
    for i in range(8):
        tile(i)
    a("s_cbranch_scc1 A_LOOP")
    stamp(a, 7)
    a("s_nop 1")
    mfma(a, O, Vb + 8 + 4, P + 4)
    a("s_waitcnt lgkmcnt(0)")
    a(f"v_mov_b32 v{S+2}, {f32(2.0**30)}")
    a(f"v_mov_b32 v{S+3}, {f32(2.0**120)}")
    a("s_lshr_b32 s59, s56, 1")
    a("s_lshl_b32 s59, s59, 2")
    a("s_and_b32 s60, s53, 3")
    a("s_add_u32 s59, s59, s60")
    a("s_lshl_b32 s59, s59, 3")
    a("s_add_u32 s59, s59, s52")
    a("s_lshl_b32 s59, s59, 1")
    a("s_and_b32 s60, s3, 1")
    a("s_add_u32 s59, s59, s60")
    a("s_lshl_b32 s59, s59, 7")
    a(f"s_add_u32 s59, s59, {F_O}")
    a(f"v_rcp_f32 v{S}, v{O+8}")
    a(f"v_max3_f32 v{S+1}, |v{O}|, |v{O+1}|, |v{O+2}|")
    a(f"v_max3_f32 v{S+1}, v{S+1}, |v{O+3}|, |v{O+4}|")
    a(f"v_max3_f32 v{S+1}, v{S+1}, |v{O+5}|, |v{O+6}|")
    a(f"v_max_f32 v{S+1}, v{S+1}, |v{O+7}|")
    a(f"v_cmp_nle_f32 vcc, v{O+8}, v{S+2}")
    a(f"v_cmp_nle_f32 s[46:47], v{S+1}, v{S+3}")
    a("s_or_b64 vcc, vcc, s[46:47]")
    a("s_cmp_lg_u32 s42, 0")
    a("s_cbranch_scc1 A_OUT")
    a("s_cbranch_vccnz A_SLOW")
    a("A_OUT:")
    a(f"ds_write_b32 v108, v109 offset:{L_DONE-L_C0F}")
    for i in range(8):
        a(f"v_mul_f32 v{O+i}, v{O+i}, v{S}")
    for i in range(4):
        a(f"v_cvt_pk_bf16_f32 v{P+i}, v{O+2*i}, v{O+2*i+1}")
    a(f"buffer_store_dwordx4 {vr(P,4)}, v{vL16}, {sr(28)}, s57 offen sc1")
    publish(a, 36, 59, vTag, 110)
    stamp(a, 8)
    if "p1st" in OPT:
        PROF = True
    a("s_cmp_lt_u32 s3, 4")
    a("s_cbranch_scc1 P3_LOAD")
    endprof(a)
    a("END:")
    a("s_endpgm")
    a("A_EVENT:")
    a("s_cmp_eq_u32 s44, 8")
    a("s_cbranch_scc0 A_EV1")
    a("s_waitcnt vmcnt(0)")
    a(f"ds_write_b32 v108, v109 offset:{L_C1F-L_C0F}")
    lds_spin(a, "A_KVW1", vF, L_C1F - L_C0F, 1, 110, 62, 2)
    a("s_branch A_BACK")
    a("A_EV1:")
    a("s_cmp_eq_u32 s44, 6")
    a("s_cbranch_scc0 A_EV2")
    lds_spin(a, "A_KVW2", 111, 0, 1, 110, 62, 2)
    if "p1st" not in OPT:
        stamp(a, 6)
    a("s_branch A_BACK")
    a("A_EV2:")
    a("s_setprio 1")
    a(f"s_cmp_eq_u32 s44, {PR1}")
    a("s_cbranch_scc1 A_BACK")
    a("s_setprio 0")
    a("s_branch A_BACK")
    a("A_SLOW:")
    a("s_mov_b32 s42, 1")
    a("s_mov_b32 s45, 0")
    a(f"v_mov_b32 v{vK}, v{vL16}")
    a(f"v_mov_b32 v{P}, 0xff800000")
    a("s_mov_b32 s44, 64")
    a("A_SLOWL:")
    rdK(0, 0)
    a("s_waitcnt lgkmcnt(0)")
    mfma(a, S, Kb, Q, "0")
    a(f"v_add_u32 v{vK}, 2048, v{vK}")
    a("s_nop 15")
    for i in range(0, 16, 2):
        a(f"v_max3_f32 v{P}, v{P}, v{S+i}, v{S+i+1}")
    a("s_sub_u32 s44, s44, 1")
    a("s_cmp_lg_u32 s44, 0")
    a("s_cbranch_scc1 A_SLOWL")
    setC(P)
    a(f"v_mov_b32 v{vK}, v{vL16}")
    a(f"v_mov_b32 v{vV}, v{vLV}")
    for i in range(16):
        a(f"v_mov_b32 v{O+i}, 0")
    for i in range(4):
        a(f"v_mov_b32 v{P+4+i}, 0")
    for i in range(8):
        a(f"v_mov_b32 v{Vb+8+i}, v{vOne}")
    rdK(0, 0)
    rdK(1, 2048)
    rdV(0, 0)
    a("s_waitcnt lgkmcnt(3)")
    mfma(a, S, Kb, Q, C)
    a("s_mov_b32 s43, 16384")
    a("s_mov_b32 s44, 8")
    a("s_nop 15")
    a("s_branch A_LOOP")

    a("P3_LOAD:")
    vT0, vT1 = 4, 5
    gemm_src(a, 1024, vT0, vT1, 6, 7)
    a("s_lshl_b32 s54, s52, 2")
    a("s_lshr_b32 s55, s53, 3")
    a("s_add_u32 s54, s54, s55")
    a("s_and_b32 s56, s53, 7")
    a("s_lshl_b32 s57, s55, 1")
    a("s_add_u32 s57, s57, s56")
    a("s_lshl_b32 s58, s3, 14")
    a("s_lshl_b32 s59, s56, 7")
    a("s_add_u32 s58, s58, s59")
    a("s_lshl_b32 s59, s3, 16")
    a("s_lshl_b32 s60, s54, 11")
    a("s_add_u32 s59, s59, s60")
    a("s_lshl_b32 s60, s3, 12")
    srd(a, 32, pWO, 512 * 1024)
    a("s_lshl_b32 s61, s54, 2")
    a("s_add_u32 s61, s61, s3")
    a("s_lshl_b32 s61, s61, 11")
    a(f"s_add_u32 s61, s61, {F_O}")
    lds_spin(a, "P3_DONE", vF, L_DONE - L_C0F, 1, 110, 62, 2)
    stamp(a, 9)
    for c in range(8):
        a(f"s_add_u32 s63, s57, {c}")
        a("s_and_b32 s63, s63, 7")
        a("s_lshl_b32 s63, s63, 16")
        a(f"s_add_u32 m0, s60, {c*16384}")
        a("s_add_u32 s63, s63, s58")
        a(f"buffer_load_dwordx4 v{vT0}, {sr(32)}, s63 offen lds")
        a(f"s_add_u32 m0, s60, {c*16384 + 1024}")
        a("s_nop 0")
        a(f"buffer_load_dwordx4 v{vT1}, {sr(32)}, s63 offen lds")
    a("v_and_b32 v6, 15, v1")
    a("v_lshlrev_b32 v6, 7, v6")
    poll(a, "P3_POLL", 1, 6, 36, "s61", 8, vTag, 62, 2)
    stamp(a, 10)
    for c in range(8):
        a(f"s_add_u32 s63, s57, {c}")
        a("s_and_b32 s63, s63, 7")
        a("s_lshl_b32 s63, s63, 18")
        a(f"s_add_u32 m0, s60, {c*16384 + 2048}")
        a("s_add_u32 s63, s63, s59")
        a(f"buffer_load_dwordx4 v{vL16}, {sr(28)}, s63 offen sc1 lds")
        a(f"buffer_load_dwordx4 v{vL16}, {sr(28)}, s63 offen offset:1024 sc1 lds")
        if c >= 3 and c % 2 == 1:
            a("s_waitcnt vmcnt(4)")
            a("s_barrier")
    a("s_waitcnt vmcnt(0)")
    a("s_barrier")
    stamp(a, 11)
    endprof(a)
    a("s_endpgm")

    a("P1_M:")
    PD = 3
    vT0, vT1, vD0, vD1, vR0, vR1 = 4, 5, 6, 7, 8, 9
    Tf, Df, acc, tmp = 12, 28, 64, 128
    vKF = 136
    a("s_sub_u32 s48, s3, 8")
    a("s_lshl_b32 s49, s48, 13")
    a(f"s_add_u32 s49, s49, {MREG}")
    a("v_mov_b32 v10, s49")
    a("v_mov_b32 v4, 0")
    a("v_mov_b32 v5, 0")
    for i in range(4):
        a(f"v_mov_b32 v{12+i}, 0")
    a("ds_write_b128 v10, v[12:15] offset:6144")
    a("ds_write_b128 v10, v[12:15] offset:6160")
    a("v_min_u32 v3, 35, v1")
    a("v_lshlrev_b32 v3, 2, v3")
    a(f"v_add_u32 v3, {LF}, v3")
    a("ds_write_b32 v3, v12")
    a(f"v_mov_b32 v3, {F_E}")
    a("s_mov_b32 s60, 0x9e3779b1")
    a(f"v_mov_b32 v6, {L_TAG}")
    a("s_waitcnt lgkmcnt(0)")
    srd(a, 36, pWS, SZ_F, WS_F)
    a(f"buffer_load_dwordx2 {vr(vTag,2)}, v3, {sr(36)}, 0 offen sc1")
    a("s_and_b32 s54, s52, 1")
    a("s_lshl_b32 s54, s54, 2")
    a("s_and_b32 s55, s53, 3")
    a("s_add_u32 s54, s54, s55")
    a("s_lshr_b32 s55, s53, 2")
    a("s_lshr_b32 s56, s52, 1")
    a("s_mul_i32 s56, s56, 11")
    a("s_add_u32 s68, s56, 12")
    a("s_lshr_b32 s68, s68, 1")
    a("s_add_u32 s56, s56, 1")
    a("s_lshr_b32 s56, s56, 1")
    a("s_add_u32 s56, s56, s55")
    a("s_and_b32 s50, s48, 1")
    a("s_lshr_b32 s51, s48, 1")
    a("v_lshlrev_b32 v2, 4, v1")
    a("v_lshrrev_b32 v10, 5, v1")
    a("v_and_b32 v11, 31, v1")
    a("v_lshlrev_b32 v11, 4, v11")
    a("v_lshl_add_u32 v3, v10, 13, v11")
    a("s_lshl_b32 s57, s48, 2")
    a(f"s_add_u32 s57, s57, {L_KVF}")
    a(f"v_mov_b32 v{vKF}, s57")
    a(f"v_mov_b32 v{vKF+1}, 1")
    srd(a, 28, pW1, 2048 * 2752)
    srd(a, 32, pWS, 2 * MB, WS_HT)
    srd(a, 40, pWS, 4 * MB, WS_KV)
    a("s_waitcnt vmcnt(0)")
    a(f"v_mul_lo_u32 v{vTag}, v{vTag}, s60")
    a(f"v_add_u32 v{vTag+1}, 0x7f4a7c15, v{vTag+1}")
    a(f"v_add_u32 v{vTag}, 1, v{vTag}")
    a(f"ds_write_b64 v6, {vr(vTag,2)}")
    a("s_waitcnt lgkmcnt(0)")
    a("s_barrier")
    a("s_setprio 3")
    a("s_cmp_ge_u32 s53, 24")
    a("s_cbranch_scc1 M_SVC")
    for c in range(7):
        a("s_barrier")
    stamp(a, 1)

    def htpoll(lab):
        a("s_lshl_b32 s61, s48, 9")
        a("v_lshlrev_b32 v10, 3, v1")
        poll(a, lab, 1, 10, 36, "s61", tmp, vTag, 62, 16)

    def kvrest(lab):
        lds_wait(a, lab + "D", L_C0F, 8, tmp + 4, tmp, 62, 2)
        a("s_lshl_b32 s44, s52, 5")
        a("s_add_u32 s44, s44, s48")
        a("s_lshl_b32 s44, s44, 7")
        a(f"s_add_u32 s44, s44, {F_QKV + 32768}")
        a(f"v_and_b32 v{tmp+4}, 7, v1")
        a(f"v_lshlrev_b32 v{tmp+4}, 9, v{tmp+4}")
        a(f"v_bfe_u32 v{tmp+5}, v1, 3, 1")
        a(f"v_lshl_add_u32 v{tmp+4}, v{tmp+5}, 15, v{tmp+4}")
        poll(a, lab + "C", 1, tmp + 4, 36, "s44", tmp, vTag, 62, 2)
        a("s_lshl_b32 s44, s52, 2")
        a("s_and_b32 s45, s53, 3")
        a("s_add_u32 s44, s44, s45")
        a("s_lshl_b32 s44, s44, 17")
        a("s_lshl_b32 s46, s48, 12")
        a("s_lshr_b32 s45, s53, 2")
        a("s_min_u32 s45, s45, 4")
        a("s_add_u32 s45, s45, 2")
        a("s_lshl_b32 s45, s45, 14")
        for j in range(5):
            a("s_add_u32 s45, s45, 16384")
            a("s_cmp_ge_u32 s45, 0x20000")
            a("s_cselect_b32 s45, 49152, s45")
            a("s_add_u32 s47, s45, s46")
            a("s_mov_b32 m0, s47")
            a("s_add_u32 s47, s47, s44")
            for n in range(4):
                a(f"buffer_load_dwordx4 v2, {sr(40)}, s47 offen offset:{n*1024} sc1 lds")

    a("s_cmp_ge_u32 s56, s68")
    a("s_cbranch_scc1 M_IDLE")
    a(f"s_mul_i32 s57, s48, {512*2752}")
    a("s_lshl_b32 s58, s56, 7")
    a("s_add_u32 s57, s57, s58")
    a("s_lshl_b32 s58, s48, 19")
    a("s_lshl_b32 s59, s54, 10")
    a("s_add_u32 s58, s58, s59")
    a("s_lshl_b32 s60, s51, 6")
    a("s_lshl_b32 s61, s50, 9")
    gemm_src(a, 2752, vT0, vT1, 10, 11)
    a(f"v_xor_b32 v{vD0}, s61, v3")
    a(f"v_xor_b32 v{vD1}, 512, v{vD0}")
    G1 = opt("g1_", 8)
    g1 = Gemm(a, 32, PD, 28, 32, 57, 58, 49, 2752, 16384, True, vT0, vT1, vD0, vD1, vR0, vR1, 512, Tf, Df, acc, " sc1", 63, G1)
    a("s_and_b32 s63, s53, 3")
    a(f"s_mul_i32 s63, s63, {max(1, G1//4)}")
    a(f"s_mul_i32 s62, s55, {max(1, G1//6)}")
    a("s_add_u32 s63, s63, s62")
    gemm_rd(a, 8, vR0, vR1, 49, 60, 10, 11)
    GATE = opt("gate", 3)
    if GATE:
        lds_wait(a, "M_GATE", (L_ISS, L_PUB, L_C0F)[GATE - 1], 4 if GATE < 3 else 8, 10, 11, 62, 2)
    htpoll("M_HT")
    stamp(a, 2)
    g1.pro_T()
    g1.pro_D()
    KVS = opt("kvs", 0)

    def hook_kv():
        stamp(a, 3)
        a("s_setprio 3")
        kvrest("M_KV1")
        a("s_setprio 0")
        g1.log.extend([("K", 0)] * 20)
        stamp(a, 4)

    def hook_kvf():
        g1.wait_for([("K", 0)])
        a(f"ds_write_b32 v{vKF}, v{vKF+1}")

    g1.main({KVS: hook_kv, KVS + 3: hook_kvf})
    stamp(a, 5)
    srd(a, 28, pB1, 2752)
    srd(a, 32, pWS, SZ_U, WS_U)
    a("s_lshl_b32 s61, s56, 7")
    a("s_add_u32 s61, s61, s60")
    a("v_lshrrev_b32 v10, 5, v1")
    a("v_lshlrev_b32 v10, 3, v10")
    for g in range(4):
        a(f"buffer_load_dwordx2 {vr(Df+2*g,2)}, v10, {sr(28)}, s61 offen offset:{16*g}")
    mreduce(a, "M1", acc, 49, 0, 10, 11, tmp, Df + 16, 62)
    a("s_mov_b32 s61, 0xffff0000")
    a("s_waitcnt vmcnt(0)")
    for i in range(8):
        a(f"v_lshlrev_b32 v{acc+16+2*i}, 16, v{Df+i}")
        a(f"v_and_b32 v{acc+16+2*i+1}, s61, v{Df+i}")
    for i in range(0, 16, 2):
        a(f"v_pk_add_f32 {vr(acc+i,2)}, {vr(acc+i,2)}, {vr(acc+16+i,2)}")
    gelu(a, acc, acc + 16, acc + 32, 16, 61)
    for i in range(8):
        a(f"v_cvt_pk_bf16_f32 v{Tf+i}, v{acc+2*i}, v{acc+2*i+1}")
    a("s_lshl_b32 s61, s56, 16")
    a("s_lshl_b32 s62, s51, 15")
    a("s_add_u32 s61, s61, s62")
    a("s_add_u32 s61, s61, s59")
    a("s_add_u32 s62, s61, 16384")
    a(f"buffer_store_dwordx4 {vr(Tf,4)}, v{vD0}, {sr(32)}, s61 offen sc1")
    a(f"buffer_store_dwordx4 {vr(Tf+4,4)}, v{vD0}, {sr(32)}, s62 offen sc1")
    a("s_lshl_b32 s61, s56, 2")
    a("s_add_u32 s61, s61, s48")
    a("s_lshl_b32 s61, s61, 3")
    a("s_add_u32 s61, s61, s59")
    a("s_lshl_b32 s61, s61, 4")
    a(f"s_add_u32 s61, s61, {F_U}")
    publish(a, 36, 61, vTag, 10)
    a("s_branch M_2")

    a("M_SVC:")
    stamp(a, 1)
    a("s_and_b32 s57, s53, 7")
    a("s_lshl_b32 s58, s48, 5")
    a("s_add_u32 s57, s57, s58")
    a("s_sub_u32 s58, s56, s55")
    a("s_lshl_b32 s58, s58, 7")
    a(f"s_mul_i32 s59, s57, {16*2752}")
    a("s_add_u32 s58, s58, s59")
    a("s_lshl_b32 s59, s57, 14")
    a("s_and_b32 s60, s52, 1")
    a("s_lshl_b32 s60, s60, 12")
    a("s_add_u32 s59, s59, s60")
    a("v_lshrrev_b32 v4, 3, v1")
    a("v_mul_u32_u24 v4, 2752, v4")
    a("v_and_b32 v5, 7, v1")
    a("v_min_u32 v5, 6, v5")
    a("v_lshl_add_u32 v4, v5, 7, v4")
    a(f"v_add_u32 v5, {8*2752}, v4")
    a("v_lshrrev_b32 v6, 5, v1")
    a("v_lshlrev_b32 v6, 13, v6")
    a("v_and_b32 v7, 31, v1")
    a("v_lshl_add_u32 v6, v7, 7, v6")

    def tw(g):
        a(f"buffer_load_dword v{Tf+3*g}, v4, {sr(28)}, s58 offen")
        a(f"buffer_load_dword v{Tf+3*g+1}, v5, {sr(28)}, s58 offen")
        a(f"s_add_u32 s58, s58, {128*2752}")

    def th(g):
        a(f"buffer_load_dword v{Tf+3*g+2}, v6, {sr(32)}, s59 offen sc1")
        a(f"s_add_u32 s59, s59, {8*16384}")

    NE, NW = opt("ne", 1), opt("nw", 2)
    for g in range(NE):
        tw(g)
    a("s_barrier")
    stamp(a, 2)
    for g in range(NE, NW):
        tw(g)
    a("s_waitcnt vmcnt(0)")
    a(f"ds_write_b32 v{vKF}, v{vKF+1} offset:{L_PUB-L_KVF}")
    stamp(a, 3)
    a("M_IDLE:")
    kvrest("M_KV2")
    a("s_waitcnt vmcnt(0)")
    a(f"ds_write_b32 v{vKF}, v{vKF+1}")
    stamp(a, 4)
    a("s_cmp_lt_u32 s53, 24")
    a("s_cbranch_scc1 M_IDLE2")
    htpoll("M_HT2")
    for g in range(4):
        th(g)
        if g + NW < 4:
            tw(g + NW)
    stamp(a, 5)
    srd(a, 28, pW2, 1376 * 4096)
    a("s_and_b32 s57, s53, 7")
    a("s_lshl_b32 s57, s57, 2")
    a("s_add_u32 s57, s57, s48")
    a(f"s_mul_i32 s58, s57, {43*4096}")
    a("s_lshl_b32 s59, s52, 9")
    a("s_add_u32 s58, s58, s59")
    a("v_lshrrev_b32 v10, 2, v1")
    a("v_lshlrev_b32 v10, 12, v10")
    a("v_and_b32 v11, 3, v1")
    a("v_lshl_add_u32 v10, v11, 7, v10")
    for j in range(3):
        a(f"buffer_load_dword v{Tf+12+j}, v10, {sr(28)}, s58 offen")
        a("s_add_u32 s58, s58, 65536")
    a("s_waitcnt vmcnt(0)")
    a("M_IDLE2:")
    srd(a, 32, pWS, SZ_U, WS_U)
    a("M_2:")
    stamp(a, 6)
    srd(a, 28, pW2, 1376 * 4096)
    a("s_and_b32 s54, s53, 7")
    a("s_lshr_b32 s55, s53, 3")
    a("s_lshl_b32 s56, s52, 2")
    a("s_add_u32 s56, s56, s55")
    a(f"s_mul_i32 s57, s48, {22*16*4096}")
    a("s_lshl_b32 s58, s56, 7")
    a("s_add_u32 s57, s57, s58")
    a(f"s_mul_i32 s58, s48, {22*16384}")
    a("s_lshl_b32 s59, s54, 10")
    a("s_add_u32 s58, s58, s59")
    a("s_lshl_b32 s60, s50, 6")
    a("s_lshl_b32 s61, s51, 9")
    gemm_src(a, 4096, vT0, vT1, 10, 11)
    a(f"v_xor_b32 v{vD0}, s61, v3")
    a(f"v_xor_b32 v{vD1}, 512, v{vD0}")
    g2 = Gemm(a, 22, PD, 28, 32, 57, 58, 49, 4096, 16384, False, vT0, vT1, vD0, vD1, vR0, vR1, 1024, Tf, Df, acc, " sc1", 63, opt("g2_", 4))
    a("s_add_u32 s63, s55, s54")
    g2.pro_T()
    gemm_rd(a, 4, vR0, vR1, 49, 60, 10, 11)
    a("s_mul_i32 s61, s48, 11")
    a("s_lshr_b32 s61, s61, 1")
    a("s_lshl_b32 s61, s61, 5")
    a("s_add_u32 s61, s61, s59")
    a("s_lshl_b32 s61, s61, 4")
    a(f"s_add_u32 s61, s61, {F_U}")
    a("v_min_u32 v10, 23, v1")
    a("v_lshlrev_b32 v10, 7, v10")
    poll(a, "M_U", 1, 10, 36, "s61", tmp, vTag, 62, 8)
    stamp(a, 7)
    g2.pro_D()
    g2.main()
    stamp(a, 8)
    srd(a, 28, pWO, 512 * 1024)
    a("s_lshl_b32 s61, s53, 2")
    a("s_add_u32 s61, s61, s48")
    a("s_lshl_b32 s61, s61, 12")
    a("v_lshlrev_b32 v10, 6, v1")
    a(f"buffer_load_dword v{Df+3}, v10, {sr(28)}, s61 offen")
    srd(a, 28, pB2, 4096)
    srd(a, 32, pWS, 8192, WS_G)
    a("s_lshl_b32 s61, s56, 7")
    a("s_add_u32 s61, s61, s60")
    a("s_lshl_b32 s62, s61, 1")
    a("v_and_b32 v10, 31, v1")
    a("v_lshlrev_b32 v11, 2, v10")
    a("v_lshlrev_b32 v10, 1, v10")
    a(f"buffer_load_ushort v{Df}, v10, {sr(28)}, s61 offen")
    a(f"buffer_load_dword v{Df+1}, v11, {sr(32)}, s62 offen sc1")
    mreduce(a, "M2", acc, 49, 16, 10, 11, tmp, Df + 16, 62)
    a("s_waitcnt vmcnt(0)")
    G, Y = Df + 1, acc
    a(f"v_lshlrev_b32 v{Df}, 16, v{Df}")
    a(f"v_sub_f32 v{Df+2}, 1.0, v{G}")
    a(f"v_mul_f32 v{Df}, v{Df}, v{Df+2}")
    for i in range(16):
        a(f"v_fma_f32 v{Y+i}, v{Y+i}, v{Df+2}, v{Df}")
    stamp(a, 9)

    vR, vO = 4, 5
    Wf, Of, A3 = 96, 128, 80
    a("s_lshl_b32 s60, s51, 6")
    gemm_rd(a, 4, vR, None, None, 60, 10, 11)
    a("s_lshl_b32 s60, s50, 10")
    a("s_add_u32 s60, s60, 2048")
    a(f"v_add_u32 v{vO}, s60, v2")
    a(f"v_add_u32 v6, 65536, v{vR}")
    a(f"v_add_u32 v7, 65536, v{vO}")
    srd(a, 28, pOUT, 2 * MB)
    a("v_and_b32 v9, 31, v1")
    a("v_lshlrev_b32 v9, 10, v9")
    a("v_lshrrev_b32 v10, 5, v1")
    a("v_lshl_add_u32 v9, v10, 4, v9")
    a("s_lshl_b32 s57, s56, 16")
    a("s_lshl_b32 s58, s50, 15")
    a("s_add_u32 s57, s57, s58")
    a("s_lshl_b32 s58, s54, 7")
    a("s_add_u32 s57, s57, s58")
    a("s_lshl_b32 s58, s51, 6")
    a("s_add_u32 s57, s57, s58")
    a("s_lshl_b32 s58, s2, 4")
    a("s_add_u32 s58, s58, s48")
    a("s_cmp_lg_u32 s58, 0")
    a("s_cbranch_scc1 M_NOE")
    a("v_lshrrev_b32 v10, 4, v1")
    a("v_lshlrev_b32 v10, 13, v10")
    a("v_and_b32 v11, 15, v1")
    a("v_lshl_add_u32 v10, v11, 8, v10")
    for t in range(3):
        a(f"s_mov_b32 s58, {F_QKV + 32768*t}")
        poll(a, f"M_E{t}", 1, 10, 36, "s58", tmp, vTag, 62, 8)
    a("v_lshlrev_b32 v10, 5, v1")
    poll(a, "M_E3", 1, 10, 36, "0", tmp, vTag, 62, 8)
    a("v_lshlrev_b32 v10, 20, v1")
    a(f"s_mov_b32 s58, {F_E}")
    a(f"buffer_store_dwordx2 {vr(vTag,2)}, v10, {sr(36)}, s58 offen sc1")
    a("M_NOE:")

    def rd3(t):
        off = (t % 16) * 4096
        r, o = (vR, vO) if t < 16 else (6, 7)
        b = t % 8
        a(f"ds_read_b64_tr_b16 {vr(Wf+4*b,2)}, v{r} offset:{off}")
        a(f"ds_read_b64_tr_b16 {vr(Wf+4*b+2,2)}, v{r} offset:{off+1024}")
        a(f"ds_read_b128 {vr(Of+4*b,4)}, v{o} offset:{off}")

    for c in range(4):
        a("s_barrier")
        if c in (0, 3):
            stamp(a, 10 + c // 3)
        for j in range(4):
            rd3(8 * c + j)
        for j in range(8):
            t = 8 * c + j
            if j + 4 < 8:
                rd3(t + 4)
            a(f"s_waitcnt lgkmcnt({3*min(4, 7-j)})")
            mfma(a, A3, Wf + 4 * j, Of + 4 * j, "0" if t == 0 else None)
    stamp(a, 12)
    for i in range(16):
        a(f"v_fmac_f32 v{Y+i}, v{A3+i}, v{G}")
    for i in range(8):
        a(f"v_cvt_pk_bf16_f32 v{Tf+i}, v{Y+2*i}, v{Y+2*i+1}")
    for p in range(2):
        a(f"v_permlane32_swap_b32 v{Tf+4*p}, v{Tf+4*p+2}")
        a(f"v_permlane32_swap_b32 v{Tf+4*p+1}, v{Tf+4*p+3}")
        a(f"buffer_store_dwordx4 {vr(Tf+4*p,4)}, v9, {sr(28)}, s57 offen offset:{32*p}")
    endprof(a)
    a("s_endpgm")
    return dict(name=nm, vgpr=168, grid=256, block=768, lds=163840)


def build(path, verbose=False, aslist=False):
    ref = open("cdna_kernels/" + NAME + ".s.ref").read().split("\n")
    hdr = [l for l in ref if l.startswith(";") and "@launch" not in l and "Override launch" not in l and "grid=ceil" not in l]
    a = Asm()
    i = kernel(a)
    a.fix(verbose)
    s = "\n".join(hdr) + "\n"
    if aslist:
        s += f"; @launch kernel={i['name']} grid=({i['grid']},1,1) block=({i['block']},1,1) lds={i['lds']}\n"
    else:
        s += f"; @launch grid=({i['grid']},1,1) block=({i['block']},1,1) lds={i['lds']}\n"
    s += '.amdgcn_target "amdgcn-amd-amdhsa--gfx950"\n.text\n'
    s += a.text()
    s += '.section .rodata,"a"\n'
    s += f""".p2align 6
.amdhsa_kernel {i['name']}
  .amdhsa_next_free_vgpr {i['vgpr']}
  .amdhsa_next_free_sgpr {102 if PROF or opt('cal', -1) >= 0 else 70}
  .amdhsa_accum_offset {i['vgpr']}
  .amdhsa_group_segment_fixed_size 0
  .amdhsa_kernarg_size 96
  .amdhsa_user_sgpr_count 2
  .amdhsa_user_sgpr_kernarg_segment_ptr 1
  .amdhsa_system_sgpr_workgroup_id_x 1
.end_amdhsa_kernel
"""
    open(path, "w").write(s)


if __name__ == "__main__":
    out = sys.argv[1] if len(sys.argv) > 1 and not sys.argv[1][0] in "-+" else "cdna_kernels/" + NAME + ".s"
    PROF = "-p" in sys.argv
    OPT = set(x[1:] for x in sys.argv if x.startswith("+"))
    build(out, verbose="-v" in sys.argv, aslist="-l" in sys.argv)
```

```python
import sys, math, struct
from asmlib import Asm

NAME = "gated_mix__softmax_full_mha__mixer_token_mlp__prompt"
MB = 1 << 20
WS_Q, WS_KV, WS_HT, WS_U, WS_O, WS_G, WS_F = 0, 2 * MB, 6 * MB, 8 * MB, 10 * MB, 14 * MB, 15 * MB
SZ_U = 172 * 8192
F_HT, F_E, F_QKV, F_U, F_O = 0, 8192, 131072, 262144, 524288
SZ_F = 786432
PROF = False
OPT = set()
WS_P = 16 * MB
LOG2E = math.log2(math.e)
pX, pWQKV, pWO, pW1, pB1, pW2, pB2, pGW, pOUT, pWS = 4, 6, 8, 12, 14, 16, 18, 20, 22, 26
MREG = 131072
LF = MREG + 6144 + 64
L_KVF, L_PUB, L_C0F, L_DONE, L_C1F, L_ISS, L_TAG = LF, LF + 16, LF + 32, LF + 64, LF + 96, LF + 128, LF + 144
PR1, PR0 = 4, 2
pDBG = 24


def f32(x):
    return "0x%08x" % struct.unpack("<I", struct.pack("<f", x))[0]


def srd(a, d, base, size, add=0):
    if add:
        a(f"s_add_u32 s{d}, s{base}, {hex(add)}")
        a(f"s_addc_u32 s{d+1}, s{base+1}, 0")
    else:
        a(f"s_mov_b32 s{d}, s{base}")
        a(f"s_mov_b32 s{d+1}, s{base+1}")
    a(f"s_mov_b32 s{d+2}, {hex(size)}")
    a(f"s_mov_b32 s{d+3}, 0x20000")


def vr(b, n):
    return f"v[{b}:{b+n-1}]"


def sr(b, n=4):
    return f"s[{b}:{b+n-1}]"


def mfma(a, D, A, B, C=None):
    c = vr(D, 16) if C is None else (C if isinstance(C, str) else vr(C, 16))
    a(f"v_mfma_f32_32x32x16_bf16 {vr(D,16)}, {vr(A,4)}, {vr(B,4)}, {c}")


def stamp(a, i):
    if opt("cal", -1) == i:
        a("s_memrealtime s[70:71]")
    if PROF:
        a(f"s_memtime s[{72+2*i}:{73+2*i}]")


_cal = [0]


def endprof(a, n=12):
    if opt("cal", -1) >= 0:
        _cal[0] += 1
        L = f"CAL{_cal[0]}"
        if opt("cal", -1) == 13:
            a("s_memrealtime s[70:71]")
        a("s_cmp_lg_u32 s2, 3")
        a(f"s_cbranch_scc1 {L}_X")
        a(f"s_cmp_lg_u32 s3, {opt('cw', 0)}")
        a(f"s_cbranch_scc1 {L}_X")
        a("s_mov_b32 s74, 400000")
        a(f"{L}:")
        a("s_memrealtime s[72:73]")
        a("s_waitcnt lgkmcnt(0)")
        a("s_sub_u32 s74, s74, 1")
        a(f"s_cbranch_scc1 {L}_X")
        a("s_sub_u32 s72, s72, s70")
        a("s_cmp_lt_u32 s72, 3500")
        a(f"s_cbranch_scc1 {L}")
        a(f"{L}_X:")
    if not PROF:
        return
    a("s_waitcnt vmcnt(0)")
    a(f"s_memtime s[{72+2*(n+1)}:{73+2*(n+1)}]")
    a("s_memrealtime s[100:101]")
    a("s_mov_b64 exec, -1")
    srd(a, 28, pWS, MB, WS_P)
    a("s_lshl_b32 s52, s2, 4")
    a("s_add_u32 s52, s52, s3")
    a("s_lshl_b32 s52, s52, 7")
    a("s_waitcnt lgkmcnt(0)")
    a("v_mov_b32 v2, 0")
    a("v_mov_b32 v3, s70")
    a("buffer_store_dword v3, v2, s[28:31], s52 offen")
    a("v_mov_b32 v3, s100")
    a("buffer_store_dword v3, v2, s[28:31], s52 offen offset:4")
    for i in range(1, n + 2):
        a(f"s_sub_u32 s53, s{72+2*i}, s72")
        a("v_mov_b32 v3, s53")
        a(f"buffer_store_dword v3, v2, s[28:31], s52 offen offset:{4+4*i}")


def gemm_src(a, strideT, vT0, vT1, t0, t1):
    a(f"v_lshrrev_b32 v{t0}, 3, v1")
    a(f"v_mul_u32_u24 v{t0}, {strideT}, v{t0}")
    a(f"v_bfe_u32 v{t1}, v1, 4, 1")
    a(f"v_lshlrev_b32 v{t1}, 2, v{t1}")
    a(f"v_xor_b32 v{t1}, v{t1}, v1")
    a(f"v_and_b32 v{t1}, 7, v{t1}")
    a(f"v_lshl_add_u32 v{vT0}, v{t1}, 4, v{t0}")
    a(f"v_add_u32 v{vT1}, {8*strideT}, v{vT0}")


def gemm_rd(a, hmul, vR0, vR1, sL, sSwap, t0, t1):
    a(f"v_lshrrev_b32 v{t0}, 5, v1")
    a(f"v_mul_u32_u24 v{t0}, {hmul}, v{t0}")
    a(f"v_bfe_u32 v{t1}, v1, 2, 2")
    a(f"v_add_u32 v{t0}, v{t0}, v{t1}")
    a(f"v_lshlrev_b32 v{t0}, 7, v{t0}")
    a(f"v_bfe_u32 v{t1}, v1, 3, 1")
    a(f"v_lshl_add_u32 v{t0}, v{t1}, 6, v{t0}")
    a(f"v_bfe_u32 v{t1}, v1, 4, 1")
    a(f"v_lshl_add_u32 v{t0}, v{t1}, 5, v{t0}")
    a(f"v_and_b32 v{t1}, 3, v1")
    a(f"v_lshl_add_u32 v{t0}, v{t1}, 3, v{t0}")
    if sL is None:
        a(f"v_xor_b32 v{vR0}, s{sSwap}, v{t0}")
        return
    a(f"v_xor_b32 v{t0}, s{sSwap}, v{t0}")
    a(f"v_add_u32 v{vR0}, s{sL}, v{t0}")
    a(f"v_xor_b32 v{t0}, 64, v{t0}")
    a(f"v_add_u32 v{vR1}, s{sL}, v{t0}")


def lds_spin(a, lab, vaddr, off, want, vt, cnt, sleep=1):
    a(f"s_mov_b32 s{cnt}, 0x100000")
    a(f"{lab}:")
    a(f"ds_read_b32 v{vt}, v{vaddr} offset:{off}")
    a("s_waitcnt lgkmcnt(0)")
    a(f"v_cmp_ne_u32 vcc, {want}, v{vt}")
    a(f"s_sub_u32 s{cnt}, s{cnt}, 1")
    a(f"s_cbranch_scc1 {lab}_X")
    a(f"s_cbranch_vccz {lab}_X")
    a(f"s_sleep {sleep}")
    a(f"s_branch {lab}")
    a(f"{lab}_X:")


def poll(a, lab, n, vaddr, sF, soff, vt, vTag, cnt, sleep, extra=None, mask=None, save=None):
    a(f"s_mov_b32 s{cnt}, 0x40000")
    a(f"{lab}:")
    if n == 1:
        a(f"buffer_load_dwordx2 {vr(vt,2)}, v{vaddr}, {sr(sF)}, {soff} offen sc1")
    else:
        a(f"buffer_load_dwordx4 {vr(vt,4)}, v{vaddr}, {sr(sF)}, {soff} offen sc1")
    if n == 4:
        a(f"buffer_load_dwordx4 {vr(vt+4,4)}, v{vaddr}, {sr(sF)}, {soff} offen offset:16 sc1")
    a("s_waitcnt vmcnt(0)")
    if extra:
        a(extra)
    for i in range(2 * n):
        a(f"v_xor_b32 v{vt+i}, v{vt+i}, v{vTag + i % 2}")
    k = 2 * n
    i = 1
    while i < k:
        if i + 1 < k:
            a(f"v_or3_b32 v{vt}, v{vt}, v{vt+i}, v{vt+i+1}")
            i += 2
        else:
            a(f"v_or_b32 v{vt}, v{vt}, v{vt+i}")
            i += 1
    a(f"v_cmp_ne_u32 vcc, 0, v{vt}")
    a(f"s_sub_u32 s{cnt}, s{cnt}, 1")
    a(f"s_cbranch_scc1 {lab}_X")
    if mask is None:
        a(f"s_cbranch_vccz {lab}_X")
    else:
        a(f"s_and_b32 s{save}, vcc_lo, {mask}")
        a(f"s_cbranch_scc0 {lab}_X")
    a(f"s_sleep {sleep}")
    a(f"s_branch {lab}")
    a(f"{lab}_X:")
    if mask is not None:
        a(f"s_mov_b32 s{save}, vcc_lo")


def spoll(a, lab, words, dst, sF, sTag, cnt, sleep):
    a(f"s_mov_b32 s{cnt}, 0x40000")
    a(f"{lab}:")
    for i, (so, imm) in enumerate(words):
        a(f"s_buffer_load_dwordx2 s[{dst+2*i}:{dst+2*i+1}], {sr(sF)}, s{so} offset:{imm} glc")
    a("s_waitcnt lgkmcnt(0)")
    for i in range(len(words)):
        a(f"s_xor_b64 s[{dst+2*i}:{dst+2*i+1}], s[{dst+2*i}:{dst+2*i+1}], s[{sTag}:{sTag+1}]")
        if i:
            a(f"s_or_b64 s[{dst}:{dst+1}], s[{dst}:{dst+1}], s[{dst+2*i}:{dst+2*i+1}]")
    a(f"s_cbranch_scc0 {lab}_X")
    a(f"s_sub_u32 s{cnt}, s{cnt}, 1")
    a(f"s_cbranch_scc1 {lab}_X")
    a(f"s_sleep {sleep}")
    a(f"s_branch {lab}")
    a(f"{lab}_X:")


def publish(a, sF, soff, vTag, vt):
    a(f"v_lshlrev_b32 v{vt}, 20, v1")
    a("s_waitcnt vmcnt(0)")
    a(f"buffer_store_dwordx2 {vr(vTag,2)}, v{vt}, {sr(sF)}, s{soff} offen sc1")


def get_tag(a, vTag, vt):
    a(f"v_mov_b32 v{vt}, {L_TAG}")
    a(f"ds_read_b64 {vr(vTag,2)}, v{vt}")


def opt(name, default):
    return next((int(o[len(name):]) for o in OPT if o.startswith(name)), default)


def lds_wait(a, lab, base, n, vA, vt, cnt, sleep=1):
    a(f"v_and_b32 v{vA}, {n-1}, v1")
    a(f"v_lshlrev_b32 v{vA}, 2, v{vA}")
    a(f"v_add_u32 v{vA}, {base}, v{vA}")
    lds_spin(a, lab, vA, 0, 1, vt, cnt, sleep)


class Gemm:
    def __init__(s, a, nsteps, P, srdT, srdD, sT, sD, sL, strideT, stepD, t_is_A, vT0, vT1, vD0, vD1, vR0, vR1, qoff,
                 Tf, Df, acc, dflags, sW, G):
        s.__dict__.update(locals())
        s.log = []

    def idx(s, i, dst, base, stride):
        a = s.a
        g0 = i // s.G * s.G
        gs = min(s.G, s.nsteps - g0)
        assert gs & (gs - 1) == 0
        a(f"s_add_u32 s{dst}, s{s.sW}, {i - g0}")
        a(f"s_and_b32 s{dst}, s{dst}, {gs - 1}")
        a(f"s_add_u32 s{dst}, s{dst}, {g0}")
        a(f"s_mul_i32 s{dst}, s{dst}, {stride}")
        a(f"s_add_u32 s{dst}, s{dst}, s{base}")

    def LD1(s, i, half):
        if i >= s.nsteps:
            return
        if "nold" in OPT and i > 3:
            s.a("s_sleep 1")
            return
        d = s.Df + 8 * (i % (s.P + 1)) + 4 * half
        if not half:
            s.idx(i, s.sW + 2, s.sD, s.stepD)
        s.a(f"buffer_load_dwordx4 {vr(d,4)}, v{(s.vD0, s.vD1)[half]}, {sr(s.srdD)}, s{s.sW+2} offen{s.dflags}")
        s.log.append(("D", i))

    def DMA1(s, i, half):
        if i >= s.nsteps:
            return
        if "nold" in OPT and i > 3:
            s.a("s_sleep 1")
            return
        a = s.a
        sl = (i % s.P) * 2048 + 1024 * half
        a(f"s_add_u32 m0, s{s.sL}, {sl}")
        if not half:
            s.idx(i, s.sW + 1, s.sT, 16 * s.strideT)
        else:
            a("s_nop 0")
        a(f"buffer_load_dwordx4 v{(s.vT0, s.vT1)[half]}, {sr(s.srdT)}, s{s.sW+1} offen{' nt' if 'ntt' in OPT else ''} lds")
        s.log.append(("T", i))

    def rd(s, i):
        sl = (i % s.P) * 2048
        t = s.Tf + 8 * (i % 2)
        for b, vR in ((0, s.vR0), (1, s.vR1)):
            for q in range(2):
                s.a(f"ds_read_b64_tr_b16 {vr(t+4*b+2*q,2)}, v{vR} offset:{sl+q*s.qoff}")

    def wait_for(s, items):
        if "nold" in OPT:
            s.a("s_waitcnt vmcnt(0)")
            return
        last = max(idx for idx, it in enumerate(s.log) if it in items)
        s.a(f"s_waitcnt vmcnt({min(63, len(s.log) - 1 - last)})")

    def pro_T(s):
        for j in range(s.P):
            s.DMA1(j, 0)
            s.DMA1(j, 1)

    def pro_D(s):
        for j in range(s.P):
            s.LD1(j, 0)
            s.LD1(j, 1)

    def main(s, hooks={}):
        a = s.a
        s.wait_for([("T", 0)])
        s.rd(0)
        a("s_waitcnt lgkmcnt(0)")
        s.DMA1(s.P, 0)
        s.DMA1(s.P, 1)
        if "mp3" not in OPT:
            a("s_setprio 0")
        n = s.nsteps
        for i in range(n):
            if i in hooks:
                hooks[i]()
            need = [("D", i)] + ([("T", i + 1)] if i + 1 < n else [])
            s.wait_for(need)
            t, d = s.Tf + 8 * (i % 2), s.Df + 8 * (i % (s.P + 1))
            for k in range(4):
                x, y = k // 2, k % 2
                C = "0" if i == 0 else None
                if "nomm" in OPT and i > 0:
                    pass
                elif s.t_is_A:
                    mfma(a, s.acc + 16 * k, t + 4 * x, d + 4 * y, C)
                else:
                    mfma(a, s.acc + 16 * k, d + 4 * x, t + 4 * y, C)
                if k == 0:
                    if i + 1 < n:
                        s.rd(i + 1)
                    s.LD1(i + s.P, 0)
                elif k == 1:
                    s.LD1(i + s.P, 1)
                elif k == 2:
                    if i + 1 < n:
                        a("s_waitcnt lgkmcnt(0)")
                    s.DMA1(i + 1 + s.P, 0)
                else:
                    s.DMA1(i + 1 + s.P, 1)
        a("s_setprio 3")


def gelu(a, X, T, U, n, s0):
    k = math.sqrt(2 / math.pi)
    a(f"v_mov_b32 v{U}, {f32(-2*k*LOG2E)}")
    a(f"v_mov_b32 v{U+1}, {f32(-2*k*LOG2E)}")
    a(f"v_mov_b32 v{U+2}, {f32(-2*k*LOG2E*0.044715)}")
    a(f"v_mov_b32 v{U+3}, {f32(-2*k*LOG2E*0.044715)}")
    a(f"v_mov_b32 v{U+4}, 1.0")
    a(f"v_mov_b32 v{U+5}, 1.0")
    for i in range(0, n, 2):
        a(f"v_pk_mul_f32 {vr(T+i,2)}, {vr(X+i,2)}, {vr(X+i,2)}")
    for i in range(0, n, 2):
        a(f"v_pk_fma_f32 {vr(T+i,2)}, {vr(T+i,2)}, {vr(U+2,2)}, {vr(U,2)}")
    for i in range(0, n, 2):
        a(f"v_pk_mul_f32 {vr(T+i,2)}, {vr(T+i,2)}, {vr(X+i,2)}")
    for i in range(n):
        a(f"v_exp_f32 v{T+i}, v{T+i}")
    for i in range(0, n, 2):
        a(f"v_pk_add_f32 {vr(T+i,2)}, {vr(T+i,2)}, {vr(U+4,2)}")
    for i in range(n):
        a(f"v_rcp_f32 v{T+i}, v{T+i}")
    for i in range(0, n, 2):
        a(f"v_pk_mul_f32 {vr(X+i,2)}, {vr(X+i,2)}, {vr(T+i,2)}")


def mreduce(a, tag, acc, sL, fl, vA, vB, vT, R, cnt):
    a(f"v_lshlrev_b32 v{vA}, 4, v1")
    a(f"v_add_u32 v{vA}, s{sL}, v{vA}")
    a(f"v_mov_b32 v{vB}, s{sL}")
    a(f"v_mov_b32 v{vT+1}, 1")
    a("s_nop 7")
    wr, rdb = {1: 0, 2: 1, 3: 3}, {1: 1, 2: 3, 3: 0}

    def add():
        for i in range(0, 16, 2):
            a(f"v_pk_add_f32 {vr(acc+i,2)}, {vr(acc+i,2)}, {vr(R+i,2)}")

    for r in (1, 2, 3):
        if wr[r]:
            a(f"v_xor_b32 v{vT+2}, {8192*wr[r]}, v{vA}")
        for i in range(4):
            a(f"ds_write_b128 v{vT+2 if wr[r] else vA}, {vr(acc+16*r+4*i,4)} offset:{1024*i}")
        a(f"v_xor_b32 v{vT+3}, {8192*r}, v{vB}")
        if r > 1:
            add()
        a("s_waitcnt lgkmcnt(0)")
        a(f"ds_write_b32 v{vB}, v{vT+1} offset:{6144+fl+4*(r-1)}")
        lds_spin(a, f"{tag}_R{r}", vT + 3, 6144 + fl + 4 * (r - 1), 1, vT, cnt)
        if rdb[r]:
            a(f"v_xor_b32 v{vT+2}, {8192*rdb[r]}, v{vA}")
        for i in range(4):
            a(f"ds_read_b128 {vr(R+4*i,4)}, v{vT+2 if rdb[r] else vA} offset:{1024*i}")
        a("s_waitcnt lgkmcnt(0)")
    add()


def kernel(a):
    global PROF
    nm = NAME + "_kernel"
    a.raw(f".globl {nm}")
    a.raw(".p2align 8")
    a.raw(f".type {nm},@function")
    a(f"{nm}:")
    if PROF:
        a("s_memrealtime s[70:71]")
        a("s_memtime s[72:73]")
    stamp(a, 0) if not PROF else None
    SLOT, NS = 32768, 4
    NTX = " nt" if "ntx" in OPT else ""
    NTW = " nt" if "ntw" in OPT else ""
    NTM = " nt" if "ntm" in OPT else ""
    vTag = 166
    a("s_cmp_ge_u32 s2, 256")
    a("s_cbranch_scc1 END")
    a("s_load_dwordx16 s[4:19], s[0:1], 0")
    a("s_load_dwordx8 s[20:27], s[0:1], 64")
    a("v_lshrrev_b32 v2, 6, v0")
    a("v_and_b32 v1, 63, v0")
    a("v_readfirstlane_b32 s3, v2")
    a("s_and_b32 s52, s2, 7")
    a("s_lshr_b32 s53, s2, 3")
    a("s_mul_i32 s55, s53, 43")
    a("s_lshr_b32 s55, s55, 8")
    a("s_mul_i32 s56, s55, 6")
    a("s_sub_u32 s56, s53, s56")
    a("s_lshl_b32 s58, s55, 1")
    a("s_add_u32 s58, s58, s56")
    a("s_lshr_b32 s54, s52, 1")
    a("s_lshl_b32 s54, s54, 2")
    a("s_add_u32 s54, s54, s55")
    a("s_and_b32 s55, s52, 1")
    a("s_mul_i32 s55, s55, 6")
    a("s_add_u32 s55, s55, s56")
    a("s_cmp_ge_u32 s3, 8")
    a("s_cbranch_scc1 P1_M")
    a("s_cmp_ge_u32 s53, 24")
    a("s_cbranch_scc1 SVC")
    a("s_cmp_ge_u32 s3, 4")
    a("s_cbranch_scc1 P1_LOAD")

    vXA, vWA = 10, 18
    Fb = 112
    acc = 48
    a("s_and_b32 s56, s3, 1")
    a("s_lshr_b32 s57, s3, 1")
    a("s_lshl_b32 s59, s56, 13")
    a("v_and_b32 v2, 31, v1")
    a("v_lshrrev_b32 v3, 5, v1")
    a("v_bfe_u32 v9, v1, 1, 3")
    a("v_lshlrev_b32 v2, 7, v2")
    a("v_add_u32 v2, s59, v2")
    for kk in range(4):
        a(f"v_add_u32 v30, {2*kk}, v3")
        a("v_xor_b32 v30, v30, v9")
        a(f"v_lshl_add_u32 v{vXA+kk}, v30, 4, v2")
        a(f"v_add_u32 v{vXA+4+kk}, {2*SLOT}, v{vXA+kk}")
    a("s_lshl_b32 s59, s57, 13")
    a("s_add_u32 s59, s59, 16384")
    a("s_mov_b32 s60, 0")
    gemm_rd(a, 8, vWA, vWA + 1, 59, 60, 2, 9)
    a(f"v_add_u32 v{vWA+2}, {2*SLOT}, v{vWA}")
    a(f"v_add_u32 v{vWA+3}, {2*SLOT}, v{vWA+1}")
    a("s_and_b32 s59, s55, 3")
    a("s_lshl_b32 s59, s59, 1")
    a("s_add_u32 s59, s59, s57")
    a("s_lshl_b32 s60, s54, 1")
    a("s_add_u32 s60, s60, s56")
    a("s_lshr_b32 s61, s55, 2")
    a("s_lshl_b32 s62, s61, 8")
    a("s_lshl_b32 s63, s59, 5")
    a("s_add_u32 s62, s62, s63")
    a("s_add_u32 s62, s62, s60")
    a("s_lshl_b32 s62, s62, 7")
    a(f"s_add_u32 s62, s62, {F_QKV}")
    a("s_lshl_b32 s63, s59, 18")
    a("s_lshl_b32 s64, s60, 11")
    a("s_add_u32 s63, s63, s64")
    a("s_lshl_b32 s64, s63, 1")
    a(f"s_add_u32 s64, s64, {WS_KV - WS_Q}")
    a("s_cmp_eq_u32 s61, 0")
    a("s_cselect_b32 s63, s63, s64")
    a("s_cselect_b32 s65, 1, 2")
    a(f"s_cselect_b32 s66, {f32(0.25*LOG2E)}, 1.0")
    a("s_mov_b32 s67, s66")
    a("s_lshl_b32 s64, s65, 16")
    a("s_lshl_b32 s65, s65, 10")
    a("v_lshlrev_b32 v2, 4, v1")
    a("v_bfe_u32 v9, v1, 4, 1")
    a("v_lshlrev_b32 v9, 17, v9")
    a("v_lshl_add_u32 v9, v3, 8, v9")
    a("v_and_b32 v30, 15, v1")
    a("v_lshl_add_u32 v9, v30, 4, v9")
    a("s_lshl_b32 s59, s3, 2")
    a(f"s_add_u32 s59, s59, {L_PUB}")
    a("v_mov_b32 v31, s59")
    a("v_mov_b32 v30, 1")
    a("s_waitcnt lgkmcnt(0)")
    srd(a, 28, pWS, 6 * MB, WS_Q)
    srd(a, 36, pWS, SZ_F, WS_F)
    a("s_cmp_eq_u32 s61, 2")
    a("s_cbranch_scc1 P1_V")

    def reads(t):
        c, kk = t // 4, t % 4
        s = c % NS
        st, so = s // 2, (s % 2) * SLOT
        f = Fb + 16 * (t % 3)
        r = []
        for b in range(2):
            r.append(f"ds_read_b128 {vr(f+4*b,4)}, v{vXA+4*st+kk} offset:{so+b*4096}")
            for q in range(2):
                r.append(f"ds_read_b64_tr_b16 {vr(f+8+4*b+2*q,2)}, v{vWA+2*st+b} offset:{so+kk*2048+q*512}")
        return r

    def p1main(vtype):
        a("s_barrier")
        stamp(a, 1)
        for t in range(2):
            for x in reads(t):
                a(x)
        for t in range(32):
            if t % 4 == 2 and t + 2 < 32:
                a("s_barrier")
            a(f"s_waitcnt lgkmcnt({6 if t + 1 < 32 else 0})")
            rr = reads(t + 2) if t + 2 < 32 else []
            f = Fb + 16 * (t % 3)
            for j in range(4):
                cb, tb = j // 2, j % 2
                X, W = f + 4 * tb, f + 8 + 4 * cb
                if vtype:
                    mfma(a, acc + 16 * j, X, W, "0" if t == 0 else None)
                else:
                    mfma(a, acc + 16 * j, W, X, "0" if t == 0 else None)
                for x in rr[(0, 2, 4, 6)[j]:(2, 4, 6, 6)[j]]:
                    a(x)
        stamp(a, 2)
        get_tag(a, vTag, 32)
        for j in range(4):
            cb, tb = j // 2, j % 2
            if j == 0:
                a("s_mov_b32 s59, s63")
            elif j == 1:
                a("s_add_u32 s59, s63, s65")
            elif j == 2:
                a("s_lshl_b32 s60, s64, 1")
                a("s_add_u32 s63, s63, s60")
                a("s_mov_b32 s59, s63")
            else:
                a("s_add_u32 s59, s63, s65")
            a("s_add_u32 s60, s59, s64")
            for hf in range(2):
                A0, r = acc + 16 * j + 8 * hf, Fb + 8 * j + 4 * hf
                if not vtype:
                    for i in range(0, 8, 2):
                        a(f"v_pk_mul_f32 {vr(A0+i,2)}, {vr(A0+i,2)}, s[66:67]")
                for i in range(4):
                    a(f"v_cvt_pk_bf16_f32 v{r+i}, v{A0+2*i}, v{A0+2*i+1}")
                if vtype:
                    a(f"buffer_store_dwordx4 {vr(r,4)}, v9, {sr(28)}, s59 offen offset:{1024+512*hf} sc1")
                else:
                    a(f"buffer_store_dwordx4 {vr(r,4)}, v2, {sr(28)}, s{59+hf} offen sc1")

    p1main(False)
    a("s_branch P1_PUB")
    a("P1_V:")
    p1main(True)
    a("P1_PUB:")
    a(f"ds_write_b32 v31, v30 offset:{L_ISS-L_PUB}")
    a("s_waitcnt lgkmcnt(0)")
    publish(a, 36, 62, vTag, 32)
    a("ds_write_b32 v31, v30")
    stamp(a, 3)
    a("s_branch ATT")

    a("SVC:")
    NR = 4
    raw, gwr, X, GW, SUM, DOT = 4, 20, 24, 56, 64, 68
    a("s_lshl_b32 s56, s52, 3")
    a("s_and_b32 s57, s53, 7")
    a("s_add_u32 s56, s56, s57")
    a("s_lshl_b32 s56, s56, 3")
    a("s_add_u32 s56, s56, s3")
    a("s_lshl_b32 s57, s56, 12")
    a("v_lshlrev_b32 v2, 4, v1")
    a("s_waitcnt lgkmcnt(0)")
    srd(a, 28, pX, 2 * MB)
    srd(a, 32, pGW, 1024)
    for r in range(NR):
        a(f"buffer_load_dwordx4 {vr(raw+4*r,4)}, v2, {sr(28)}, s57 offen offset:{r*1024}")
    a(f"buffer_load_dwordx4 {vr(gwr,4)}, v2, {sr(32)}, 0 offen")
    srd(a, 28, pWS, 2 * MB, WS_HT)
    srd(a, 32, pWS, 8192, WS_G)
    srd(a, 36, pWS, SZ_F, WS_F)
    a("s_mov_b32 s59, 0xffff0000")
    a("s_lshr_b32 s60, s3, 1")
    a("s_lshl_b32 s60, s60, 13")
    a("s_add_u32 s60, s60, 65536")
    a("s_and_b32 s61, s3, 1")
    a("s_lshl_b32 s62, s61, 3")
    a("s_add_u32 s62, s62, s60")
    a("s_lshl_b32 s61, s61, 12")
    a("s_add_u32 s61, s61, s60")
    a("v_lshlrev_b32 v72, 7, v1")
    a("v_and_b32 v73, 7, v1")
    a("v_lshl_add_u32 v72, v73, 4, v72")
    a("v_add_u32 v72, s62, v72")
    a("v_lshrrev_b32 v74, 3, v1")
    a("v_xor_b32 v73, v73, v74")
    a("v_lshlrev_b32 v74, 7, v74")
    a("v_lshl_add_u32 v73, v73, 4, v74")
    a("v_add_u32 v73, s61, v73")
    a("s_waitcnt vmcnt(0)")
    stamp(a, 1)
    for i in range(4):
        a(f"v_lshlrev_b32 v{GW+2*i}, 16, v{gwr+i}")
        a(f"v_and_b32 v{GW+2*i+1}, s59, v{gwr+i}")
    for r in range(NR):
        for i in range(4):
            a(f"v_lshlrev_b32 v{X+8*r+2*i}, 16, v{raw+4*r+i}")
            a(f"v_and_b32 v{X+8*r+2*i+1}, s59, v{raw+4*r+i}")
    T = raw
    for r in range(NR):
        a(f"v_pk_add_f32 {vr(T+4*r,2)}, {vr(X+8*r,2)}, {vr(X+8*r+2,2)}")
        a(f"v_pk_mul_f32 {vr(T+4*r+2,2)}, {vr(X+8*r,2)}, {vr(GW,2)}")
    for e in (2, 4, 6):
        for r in range(NR):
            if e >= 4:
                a(f"v_pk_add_f32 {vr(T+4*r,2)}, {vr(T+4*r,2)}, {vr(X+8*r+e,2)}")
            a(f"v_pk_fma_f32 {vr(T+4*r+2,2)}, {vr(X+8*r+e,2)}, {vr(GW+e,2)}, {vr(T+4*r+2,2)}")
    for r in range(NR):
        a(f"v_add_f32 v{SUM+r}, v{T+4*r}, v{T+4*r+1}")
        a(f"v_add_f32 v{DOT+r}, v{T+4*r+2}, v{T+4*r+3}")

    def reduce(regs):
        for mod in ("row_shr:1 row_mask:0xf", "row_shr:2 row_mask:0xf", "row_shr:4 row_mask:0xf", "row_shr:8 row_mask:0xf",
                    "row_bcast:15 row_mask:0xa", "row_bcast:31 row_mask:0xc"):
            for r in regs:
                a(f"v_add_f32_dpp v{r}, v{r}, v{r} {mod} bank_mask:0xf")

    reduce(list(range(SUM, SUM + NR)))
    for r in range(NR):
        a(f"v_mul_f32 v{SUM+r}, {f32(1/512)}, v{SUM+r}")
    for r in range(NR):
        a(f"v_readlane_b32 s{40+r}, v{SUM+r}, 63")
    for e in range(8):
        for r in range(NR):
            a(f"v_subrev_f32 v{X+8*r+e}, s{40+r}, v{X+8*r+e}")
    for r in range(NR):
        a(f"v_pk_mul_f32 {vr(T+4*r,2)}, {vr(X+8*r,2)}, {vr(X+8*r,2)}")
    for e in (2, 4, 6):
        for r in range(NR):
            a(f"v_pk_fma_f32 {vr(T+4*r,2)}, {vr(X+8*r+e,2)}, {vr(X+8*r+e,2)}, {vr(T+4*r,2)}")
    for r in range(NR):
        a(f"v_add_f32 v{SUM+r}, v{T+4*r}, v{T+4*r+1}")
    reduce(list(range(SUM, SUM + NR)))
    a(f"v_mov_b32 v3, {f32(1e-5)}")
    a(f"s_mov_b32 s60, {f32(1/512)}")
    for r in range(NR):
        a(f"v_fma_f32 v{SUM+r}, v{SUM+r}, s60, v3")
    for r in range(NR):
        a(f"v_rsq_f32 v{SUM+r}, v{SUM+r}")
    a("s_nop 0")
    for r in range(NR):
        a(f"v_readlane_b32 s{40+r}, v{SUM+r}, 63")
    for e in range(8):
        for r in range(NR):
            a(f"v_mul_f32 v{X+8*r+e}, s{40+r}, v{X+8*r+e}")
        for p in range(2):
            a(f"v_cvt_pk_bf16_f32 v{raw+2*e+p}, v{X+16*p+e}, v{X+16*p+8+e}")
        a(f"v_xor_b32 v{GW+e}, {16*e}, v72")
        a(f"ds_write_b64 v{GW+e}, {vr(raw+2*e,2)}")
    a("s_waitcnt lgkmcnt(0)")
    a("s_barrier")
    for j in range(4):
        a(f"ds_read_b128 {vr(X+4*j,4)}, v73 offset:{j*1024}")
    get_tag(a, vTag, 3)
    for j in range(4):
        a(f"s_waitcnt lgkmcnt({4-j})")
        a(f"buffer_store_dwordx4 {vr(X+4*j,4)}, v2, {sr(28)}, s57 offen offset:{j*1024} sc1")
    reduce(list(range(DOT, DOT + NR)))
    for r in range(NR):
        a(f"v_mul_f32 v{DOT+r}, {f32(-LOG2E)}, v{DOT+r}")
    for r in range(NR):
        a(f"v_exp_f32 v{DOT+r}, v{DOT+r}")
    for r in range(NR):
        a(f"v_add_f32 v{DOT+r}, 1.0, v{DOT+r}")
    for r in range(NR):
        a(f"v_rcp_f32 v{DOT+r}, v{DOT+r}")
    a("s_lshl_b32 s60, s56, 4")
    a("v_mov_b32 v3, 0")
    a("s_mov_b32 exec_lo, 0")
    a("s_mov_b32 exec_hi, 0x80000000")
    a(f"buffer_store_dwordx4 {vr(DOT,4)}, v3, {sr(32)}, s60 offen sc1")
    a("s_mov_b64 exec, -1")
    stamp(a, 2)
    a("s_waitcnt vmcnt(0) lgkmcnt(0)")
    a("s_barrier")
    a("s_bitcmp1_b32 s3, 0")
    a("s_cbranch_scc1 L_TAIL")
    a("s_lshl_b32 s60, s56, 2")
    publish(a, 36, 60, vTag, 3)
    stamp(a, 3)
    a("s_branch L_TAIL")

    a("P1_LOAD:")
    vX0, vT0, vT1 = 4, 8, 9
    a("s_sub_u32 s59, s3, 4")
    a("v_lshrrev_b32 v2, 3, v1")
    a("v_and_b32 v3, 7, v1")
    a("v_lshrrev_b32 v20, 4, v1")
    a("v_xor_b32 v3, v3, v20")
    a("v_lshlrev_b32 v2, 10, v2")
    a(f"v_lshl_add_u32 v{vX0}, v3, 4, v2")
    a(f"v_xor_b32 v3, 4, v3")
    a(f"v_lshl_add_u32 v{vX0+1}, v3, 4, v2")
    a(f"v_add_u32 v{vX0+1}, 8192, v{vX0+1}")
    a(f"v_add_u32 v{vX0+2}, 16384, v{vX0}")
    a(f"v_add_u32 v{vX0+3}, 16384, v{vX0+1}")
    gemm_src(a, 3072, vT0, vT1, 2, 3)
    a("s_lshl_b32 s60, s54, 17")
    a("s_lshl_b32 s61, s59, 15")
    a("s_add_u32 s60, s60, s61")
    a("s_mul_i32 s61, s59, 49152")
    a("s_lshl_b32 s62, s55, 8")
    a("s_add_u32 s61, s61, s62")
    a("s_lshl_b32 s62, s59, 12")
    a("s_lshl_b32 s65, s59, 11")
    a("s_waitcnt lgkmcnt(0)")
    srd(a, 28, pX, 2 * MB)
    srd(a, 32, pWQKV, 512 * 3072)

    def dma(c):
        sl = (c % NS) * SLOT
        for t in ["s_and_b32 s58, s58, 7", "s_lshl_b32 s63, s58, 7", "s_add_u32 s63, s63, s60",
                  "s_mul_i32 s64, s58, 196608", "s_add_u32 s64, s64, s61", "s_add_u32 s58, s58, 1"]:
            a(t)
        def dx():
            for n in range(4):
                a(f"s_add_u32 m0, s62, {sl + n*1024}")
                a("s_nop 0")
                a(f"buffer_load_dwordx4 v{vX0+n}, {sr(28)}, s63 offen{NTX} lds")

        def dw():
            for n, v in enumerate((vT0, vT1)):
                for hf in range(2):
                    a(f"s_add_u32 m0, s65, {sl + 16384 + hf*(8192-128) + n*1024}")
                    a("s_nop 0")
                    a(f"buffer_load_dwordx4 v{v}, {sr(32)}, s64 offen offset:{hf*128}{NTW} lds")
        if c == 1 and "wfirst" in OPT:
            dw(); dx()
        else:
            dx(); dw()

    if "p1st" in OPT:
        stamp(a, 3)
    dma(0)
    if "p1st" in OPT:
        stamp(a, 4)
    a(f"s_waitcnt vmcnt({opt('fw', 4)})")
    if "p1st" in OPT:
        stamp(a, 5)
    for c in range(8):
        if c + 1 < 8:
            dma(c + 1)
            a("s_waitcnt vmcnt(8)")
        else:
            a("s_waitcnt vmcnt(0)")
        if "p1st" in OPT and c >= 1:
            stamp(a, 5 + c)
        a("s_barrier")
        if c == 0:
            stamp(a, 1)
    stamp(a, 2)
    if "p1st" in OPT:
        PROF = False
    a("L_TAIL:")
    get_tag(a, vTag, 2)
    srd(a, 28, pWS, 6 * MB, WS_Q)
    srd(a, 36, pWS, SZ_F, WS_F)
    lds_wait(a, "L_ISSW", L_PUB, 4, 3, 4, 62, 2)

    a("ATT:")
    Q, C, S, P, O, Kb, Vb = 4, 8, 24, 56, 64, 80, 88
    vL16, vLV, vK, vV, vOne, vF = 2, 3, 104, 105, 106, 107
    a("s_lshl_b32 s54, s52, 2")
    a("s_and_b32 s55, s53, 3")
    a("s_add_u32 s54, s54, s55")
    a("s_lshr_b32 s55, s53, 2")
    a("s_lshl_b32 s56, s55, 3")
    a("s_add_u32 s56, s56, s3")
    a("s_lshl_b32 s57, s54, 16")
    a("s_lshl_b32 s58, s56, 10")
    a("s_add_u32 s57, s57, s58")
    a("s_lshl_b32 s58, s3, 11")
    a("s_lshl_b32 s59, s54, 17")
    a("s_add_u32 s59, s59, s58")
    a(f"s_add_u32 s59, s59, {WS_KV - WS_Q}")
    a("s_lshl_b32 s60, s52, 5")
    a("s_lshr_b32 s61, s3, 1")
    a("s_add_u32 s60, s60, s61")
    a("s_lshl_b32 s60, s60, 7")
    a(f"s_add_u32 s60, s60, {F_QKV}")
    a("s_lshl_b32 s61, s55, 9")
    a("v_and_b32 v110, 1, v1")
    a("v_add_u32 v110, 1, v110")
    a("v_lshlrev_b32 v110, 15, v110")
    a("v_bfe_u32 v109, v1, 1, 2")
    a("v_lshl_add_u32 v112, v109, 9, v110")
    a("s_and_b32 s63, s3, 3")
    a("s_lshr_b32 s62, s3, 1")
    a("s_sub_u32 s63, s63, s62")
    a("s_lshl_b32 s63, s63, 7")
    a("v_add_u32 v110, s63, v112")
    a("v_cmp_ne_u32 vcc, 0, v109")
    a("s_nop 0")
    a("v_cndmask_b32 v112, v112, v110, vcc")
    a("v_mov_b32 v110, s61")
    a("v_cmp_eq_u32 vcc, 3, v109")
    a("s_nop 0")
    a("v_cndmask_b32 v112, v112, v110, vcc")
    a("v_lshrrev_b32 v3, 5, v1")
    a(f"v_lshlrev_b32 v{vL16}, 4, v1")
    a("v_lshlrev_b32 v3, 8, v3")
    a("v_and_b32 v104, 15, v1")
    a("v_lshl_add_u32 v3, v104, 4, v3")
    a(f"v_add_u32 v{vLV}, 1024, v3")
    a(f"v_mov_b32 v{vK}, v{vL16}")
    a(f"v_mov_b32 v{vV}, v{vLV}")
    a("s_mov_b32 s40, 0x0000ffff")
    a("s_mov_b32 s41, 0x0000ffff")
    a("s_mov_b32 s42, 0")
    a(f"v_and_b32 v{vOne}, 27, v1")
    a(f"v_cmp_eq_u32 vcc, 16, v{vOne}")
    a(f"v_mov_b32 v{vOne}, 0x3f803f80")
    a(f"v_cndmask_b32 v{vOne}, 0, v{vOne}, vcc")
    for i in range(16):
        a(f"v_mov_b32 v{Vb+i}, v{vOne}")
    for i in range(16):
        a(f"v_mov_b32 v{O+i}, 0")
    for i in range(4):
        a(f"v_mov_b32 v{P+4+i}, 0")
    a("s_lshl_b32 s63, s3, 2")
    a(f"s_add_u32 s63, s63, {L_C0F}")
    a("v_mov_b32 v108, s63")
    a("v_mov_b32 v109, 1")
    a(f"v_and_b32 v{vF}, 7, v1")
    a(f"v_lshlrev_b32 v{vF}, 2, v{vF}")
    a(f"v_add_u32 v{vF}, {L_C0F}, v{vF}")
    a("v_and_b32 v111, 3, v1")
    a("v_lshlrev_b32 v111, 2, v111")
    a(f"v_add_u32 v111, {L_KVF}, v111")
    KW, VW = 32768, 65536
    poll(a, "A_POLL", 1, 112, 36, "s60", S, vTag, 62, opt("as", 2), mask=0xc3, save=61)
    stamp(a, 4)
    a("s_mov_b32 m0, s58")
    a("s_setprio 2")
    a(f"buffer_load_dwordx4 v{vL16}, {sr(28)}, s59 offen sc1 lds")
    a(f"buffer_load_dwordx4 {vr(Q,4)}, v{vL16}, {sr(28)}, s57 offen sc1")
    a(f"buffer_load_dwordx4 v{vL16}, {sr(28)}, s59 offen offset:1024 sc1 lds")
    a("s_waitcnt vmcnt(0)")
    a("ds_write_b32 v108, v109")
    lds_spin(a, "A_C0", vF, 0, 1, 110, 62)
    a("s_cmp_lt_u32 s3, 4")
    a("s_cbranch_scc1 A_C12")
    a("s_cmp_eq_u32 s61, 0")
    a("s_cbranch_scc1 A_POLL2_X")
    poll(a, "A_POLL2", 1, 112, 36, "s60", S, vTag, 62, 2)
    a("s_sub_u32 s59, s59, s58")
    a("s_and_b32 s58, s3, 3")
    a("s_lshl_b32 s58, s58, 12")
    a("s_add_u32 s59, s59, s58")
    for c in (1, 2):
        a(f"s_add_u32 m0, s58, {16384*c}")
        a("s_add_u32 s59, s59, 16384")
        for n in range(4):
            a(f"buffer_load_dwordx4 v{vL16}, {sr(28)}, s59 offen offset:{1024*n} sc1 lds")
    a("s_waitcnt vmcnt(0)")
    a(f"ds_write_b32 v108, v109 offset:{L_C1F-L_C0F-16}")
    a("A_C12:")
    stamp(a, 5)

    def rdK(buf, off):
        a(f"ds_read_b128 {vr(Kb+4*buf,4)}, v{vK} offset:{off}")

    def rdV(buf, off):
        a("s_mov_b64 exec, s[40:41]")
        a(f"ds_read_b128 {vr(Vb+8*buf,4)}, v{vV} offset:{off}")
        a(f"ds_read_b128 {vr(Vb+8*buf+4,4)}, v{vV} offset:{off+512}")
        a("s_mov_b64 exec, -1")

    def setC(src):
        a(f"v_mov_b32 v{src+1}, v{src}")
        a(f"v_permlane32_swap_b32 v{src}, v{src+1}")
        a(f"v_max_f32 v{src}, v{src}, v{src+1}")
        a(f"v_sub_f32 v{C}, 0, v{src}")
        for i in range(1, 16):
            a(f"v_mov_b32 v{C+i}, v{C}")

    srd(a, 28, pWS, 2 * MB, WS_O)
    rdK(0, 0)
    rdK(1, 2048)
    rdV(0, 0)
    a("s_waitcnt lgkmcnt(3)")
    mfma(a, S, Kb, Q, "0")
    a(f"v_max3_f32 v{S}, v{S}, v{S+1}, v{S+2}")
    for i in range(3, 15, 2):
        a(f"v_max3_f32 v{S}, v{S}, v{S+i}, v{S+i+1}")
    a(f"v_max_f32 v{S}, v{S}, v{S+15}")
    setC(S)
    mfma(a, S, Kb, Q, C)
    a("s_mov_b32 s43, 16384")
    a("s_mov_b32 s44, 8")
    a(f"s_mov_b32 s45, {(1<<8)|(1<<6)|(1<<PR1)|(1<<PR0)}")

    def tile(i):
        b = i % 2
        Sc, Sn = S + 16 * b, S + 16 * (1 - b)
        e = lambda k: a(f"v_exp_f32 v{Sc+k}, v{Sc+k}")
        c = lambda k: a(f"v_cvt_pk_bf16_f32 v{P+k}, v{Sc+2*k}, v{Sc+2*k+1}")
        e(0); e(1)
        mfma(a, O, Vb + 8 * (1 - b) + 4, P + 4)
        for k in range(2, 8):
            e(k)
        a("s_waitcnt lgkmcnt(2)")
        mfma(a, Sn, Kb + 4 * (1 - b), Q, C)
        if i == 6:
            a("s_bitcmp1_b32 s45, s44")
            a(f"v_add_u32 v{vK}, s43, v{vL16}")
            a("s_cbranch_scc1 A_EVENT")
            a("A_BACK:")
        rdK(b, ((i + 2) % 8) * 2048)
        for k in range(4):
            c(k)
        for k in range(8, 12):
            e(k)
        a("s_waitcnt lgkmcnt(1)")
        mfma(a, O, Vb + 8 * b, P)
        if i == 7:
            a(f"v_add_u32 v{vV}, s43, v{vLV}")
            a("s_add_u32 s43, s43, 16384")
            a("s_and_b32 s43, s43, 0x1ffff")
        rdV(1 - b, ((i + 1) % 8) * 2048)
        for k in range(12, 16):
            e(k)
        if i == 7:
            a("s_sub_u32 s44, s44, 1")
            a("s_cmp_lg_u32 s44, 0")
        for k in range(4, 8):
            c(k)

    a("s_nop 7")
    a.raw(".p2align 6")
    a("A_LOOP:")
    for i in range(8):
        tile(i)
    a("s_cbranch_scc1 A_LOOP")
    stamp(a, 7)
    a("s_nop 1")
    mfma(a, O, Vb + 8 + 4, P + 4)
    a("s_waitcnt lgkmcnt(0)")
    a(f"v_mov_b32 v{S+2}, {f32(2.0**30)}")
    a(f"v_mov_b32 v{S+3}, {f32(2.0**120)}")
    a("s_lshr_b32 s59, s56, 1")
    a("s_lshl_b32 s59, s59, 2")
    a("s_and_b32 s60, s53, 3")
    a("s_add_u32 s59, s59, s60")
    a("s_lshl_b32 s59, s59, 3")
    a("s_add_u32 s59, s59, s52")
    a("s_lshl_b32 s59, s59, 1")
    a("s_and_b32 s60, s3, 1")
    a("s_add_u32 s59, s59, s60")
    a("s_lshl_b32 s59, s59, 7")
    a(f"s_add_u32 s59, s59, {F_O}")
    a(f"v_rcp_f32 v{S}, v{O+8}")
    a(f"v_max3_f32 v{S+1}, |v{O}|, |v{O+1}|, |v{O+2}|")
    a(f"v_max3_f32 v{S+1}, v{S+1}, |v{O+3}|, |v{O+4}|")
    a(f"v_max3_f32 v{S+1}, v{S+1}, |v{O+5}|, |v{O+6}|")
    a(f"v_max_f32 v{S+1}, v{S+1}, |v{O+7}|")
    a(f"v_cmp_nle_f32 vcc, v{O+8}, v{S+2}")
    a(f"v_cmp_nle_f32 s[46:47], v{S+1}, v{S+3}")
    a("s_or_b64 vcc, vcc, s[46:47]")
    a("s_cmp_lg_u32 s42, 0")
    a("s_cbranch_scc1 A_OUT")
    a("s_cbranch_vccnz A_SLOW")
    a("A_OUT:")
    a(f"ds_write_b32 v108, v109 offset:{L_DONE-L_C0F}")
    for i in range(8):
        a(f"v_mul_f32 v{O+i}, v{O+i}, v{S}")
    for i in range(4):
        a(f"v_cvt_pk_bf16_f32 v{P+i}, v{O+2*i}, v{O+2*i+1}")
    a(f"buffer_store_dwordx4 {vr(P,4)}, v{vL16}, {sr(28)}, s57 offen sc1")
    publish(a, 36, 59, vTag, 110)
    stamp(a, 8)
    if "p1st" in OPT:
        PROF = True
    a("s_cmp_lt_u32 s3, 4")
    a("s_cbranch_scc1 P3_LOAD")
    endprof(a)
    a("END:")
    a("s_endpgm")
    a("A_EVENT:")
    a("s_cmp_eq_u32 s44, 8")
    a("s_cbranch_scc0 A_EV1")
    if "evst" in OPT:
        stamp(a, 1)
    lds_spin(a, "A_KVW1", 111, L_C1F - L_KVF, 1, 110, 62, 2)
    if "evst" in OPT:
        stamp(a, 3)
    a("s_branch A_BACK")
    a("A_EV1:")
    a("s_cmp_eq_u32 s44, 6")
    a("s_cbranch_scc0 A_EV2")
    if "evst" in OPT:
        stamp(a, 4)
    lds_spin(a, "A_KVW2", 111, 0, 1, 110, 62, 2)
    if "p1st" not in OPT:
        stamp(a, 6)
    a("s_branch A_BACK")
    a("A_EV2:")
    a("s_setprio 1")
    a(f"s_cmp_eq_u32 s44, {PR1}")
    a("s_cbranch_scc1 A_BACK")
    a("s_setprio 0")
    a("s_branch A_BACK")
    a("A_SLOW:")
    a("s_mov_b32 s42, 1")
    a("s_mov_b32 s45, 0")
    a(f"v_mov_b32 v{vK}, v{vL16}")
    a(f"v_mov_b32 v{P}, 0xff800000")
    a("s_mov_b32 s44, 64")
    a("A_SLOWL:")
    rdK(0, 0)
    a("s_waitcnt lgkmcnt(0)")
    mfma(a, S, Kb, Q, "0")
    a(f"v_add_u32 v{vK}, 2048, v{vK}")
    a("s_nop 15")
    for i in range(0, 16, 2):
        a(f"v_max3_f32 v{P}, v{P}, v{S+i}, v{S+i+1}")
    a("s_sub_u32 s44, s44, 1")
    a("s_cmp_lg_u32 s44, 0")
    a("s_cbranch_scc1 A_SLOWL")
    setC(P)
    a(f"v_mov_b32 v{vK}, v{vL16}")
    a(f"v_mov_b32 v{vV}, v{vLV}")
    for i in range(16):
        a(f"v_mov_b32 v{O+i}, 0")
    for i in range(4):
        a(f"v_mov_b32 v{P+4+i}, 0")
    for i in range(8):
        a(f"v_mov_b32 v{Vb+8+i}, v{vOne}")
    rdK(0, 0)
    rdK(1, 2048)
    rdV(0, 0)
    a("s_waitcnt lgkmcnt(3)")
    mfma(a, S, Kb, Q, C)
    a("s_mov_b32 s43, 16384")
    a("s_mov_b32 s44, 8")
    a("s_nop 15")
    a("s_branch A_LOOP")

    a("P3_LOAD:")
    vT0, vT1 = 4, 5
    gemm_src(a, 1024, vT0, vT1, 6, 7)
    a("s_lshl_b32 s54, s52, 2")
    a("s_lshr_b32 s55, s53, 3")
    a("s_add_u32 s54, s54, s55")
    a("s_and_b32 s56, s53, 7")
    a("s_lshl_b32 s57, s55, 1")
    a("s_add_u32 s57, s57, s56")
    a("s_lshl_b32 s58, s3, 14")
    a("s_lshl_b32 s59, s56, 7")
    a("s_add_u32 s58, s58, s59")
    a("s_lshl_b32 s59, s3, 16")
    a("s_lshl_b32 s60, s54, 11")
    a("s_add_u32 s59, s59, s60")
    a("s_lshl_b32 s60, s3, 12")
    srd(a, 32, pWO, 512 * 1024)
    a("s_lshl_b32 s61, s54, 2")
    a("s_add_u32 s61, s61, s3")
    a("s_lshl_b32 s61, s61, 11")
    a(f"s_add_u32 s61, s61, {F_O}")
    lds_spin(a, "P3_DONE", vF, L_DONE - L_C0F, 1, 110, 62, 2)
    stamp(a, 9)
    for c in range(8):
        a(f"s_add_u32 s63, s57, {c}")
        a("s_and_b32 s63, s63, 7")
        a("s_lshl_b32 s63, s63, 16")
        a(f"s_add_u32 m0, s60, {c*16384}")
        a("s_add_u32 s63, s63, s58")
        a(f"buffer_load_dwordx4 v{vT0}, {sr(32)}, s63 offen lds")
        a(f"s_add_u32 m0, s60, {c*16384 + 1024}")
        a("s_nop 0")
        a(f"buffer_load_dwordx4 v{vT1}, {sr(32)}, s63 offen lds")
    a("v_and_b32 v6, 15, v1")
    a("v_lshlrev_b32 v6, 7, v6")
    poll(a, "P3_POLL", 1, 6, 36, "s61", 8, vTag, 62, 2)
    stamp(a, 10)
    for c in range(8):
        a(f"s_add_u32 s63, s57, {c}")
        a("s_and_b32 s63, s63, 7")
        a("s_lshl_b32 s63, s63, 18")
        a(f"s_add_u32 m0, s60, {c*16384 + 2048}")
        a("s_add_u32 s63, s63, s59")
        a(f"buffer_load_dwordx4 v{vL16}, {sr(28)}, s63 offen sc1 lds")
        a(f"buffer_load_dwordx4 v{vL16}, {sr(28)}, s63 offen offset:1024 sc1 lds")
        if c >= 3 and c % 2 == 1:
            a("s_waitcnt vmcnt(4)")
            a("s_barrier")
    a("s_waitcnt vmcnt(0)")
    a("s_barrier")
    stamp(a, 11)
    endprof(a)
    a("s_endpgm")

    a("P1_M:")
    PD = 3
    vT0, vT1, vD0, vD1, vR0, vR1 = 4, 5, 6, 7, 8, 9
    Tf, Df, acc, tmp = 12, 28, 64, 128
    vKF = 136
    a("s_sub_u32 s48, s3, 8")
    a("s_lshl_b32 s49, s48, 13")
    a(f"s_add_u32 s49, s49, {MREG}")
    a("v_mov_b32 v10, s49")
    a("v_mov_b32 v4, 0")
    a("v_mov_b32 v5, 0")
    for i in range(4):
        a(f"v_mov_b32 v{12+i}, 0")
    a("ds_write_b128 v10, v[12:15] offset:6144")
    a("ds_write_b128 v10, v[12:15] offset:6160")
    a("v_min_u32 v3, 35, v1")
    a("v_lshlrev_b32 v3, 2, v3")
    a(f"v_add_u32 v3, {LF}, v3")
    a("ds_write_b32 v3, v12")
    a(f"v_mov_b32 v3, {F_E}")
    a("s_mov_b32 s60, 0x9e3779b1")
    a(f"v_mov_b32 v6, {L_TAG}")
    a("s_waitcnt lgkmcnt(0)")
    srd(a, 36, pWS, SZ_F, WS_F)
    a(f"buffer_load_dwordx2 {vr(vTag,2)}, v3, {sr(36)}, 0 offen sc1")
    if "nowt" not in OPT:
        a("s_cmp_lt_u32 s53, 24")
        a("s_cbranch_scc1 SVC_W2")
        a("s_and_b32 s56, s53, 7")
        a("s_lshl_b32 s56, s56, 2")
        a("s_add_u32 s56, s56, s48")
        a("s_mul_i32 s57, s56, 43")
        a("s_lshr_b32 s57, s57, 8")
        a("s_mul_i32 s58, s57, 6")
        a("s_sub_u32 s58, s56, s58")
        a("s_lshl_b32 s57, s57, 1")
        a("s_add_u32 s57, s57, s58")
        a("s_add_u32 s57, s57, 1")
        a("s_and_b32 s57, s57, 7")
        a("s_mul_i32 s57, s57, 196608")
        a("s_and_b32 s59, s52, 1")
        a("s_mul_i32 s59, s59, 6")
        a("s_add_u32 s58, s58, s59")
        a("s_lshl_b32 s58, s58, 8")
        a("s_add_u32 s57, s57, s58")
        srd(a, 32, pWQKV, 512 * 3072)
        a("v_mul_u32_u24 v7, 3072, v1")
        a("s_cmp_ge_u32 s56, 24")
        a("s_cbranch_scc1 SVC_W2")
        a(f"buffer_load_dword v8, v7, {sr(32)}, s57 offen{NTW}")
        a(f"buffer_load_dword v9, v7, {sr(32)}, s57 offen offset:128{NTW}")
        a("SVC_W2:")
    a("s_and_b32 s54, s52, 1")
    a("s_lshl_b32 s54, s54, 2")
    a("s_and_b32 s55, s53, 3")
    a("s_add_u32 s54, s54, s55")
    a("s_lshr_b32 s55, s53, 2")
    a("s_lshr_b32 s56, s52, 1")
    a("s_mul_i32 s56, s56, 11")
    a("s_add_u32 s68, s56, 12")
    a("s_lshr_b32 s68, s68, 1")
    a("s_add_u32 s56, s56, 1")
    a("s_lshr_b32 s56, s56, 1")
    a("s_add_u32 s56, s56, s55")
    a("s_and_b32 s50, s48, 1")
    a("s_lshr_b32 s51, s48, 1")
    a("v_lshlrev_b32 v2, 4, v1")
    a("v_lshrrev_b32 v10, 5, v1")
    a("v_and_b32 v11, 31, v1")
    a("v_lshlrev_b32 v11, 4, v11")
    a("v_lshl_add_u32 v3, v10, 13, v11")
    a("s_lshl_b32 s57, s48, 2")
    a(f"s_add_u32 s57, s57, {L_KVF}")
    a(f"v_mov_b32 v{vKF}, s57")
    a(f"v_mov_b32 v{vKF+1}, 1")
    srd(a, 28, pW1, 2048 * 2752)
    srd(a, 32, pWS, 2 * MB, WS_HT)
    srd(a, 40, pWS, 4 * MB, WS_KV)
    a("s_waitcnt vmcnt(0)")
    a(f"v_mul_lo_u32 v{vTag}, v{vTag}, s60")
    a(f"v_add_u32 v{vTag+1}, 0x7f4a7c15, v{vTag+1}")
    a(f"v_add_u32 v{vTag}, 1, v{vTag}")
    a(f"ds_write_b64 v6, {vr(vTag,2)}")
    a("s_waitcnt lgkmcnt(0)")
    a("s_barrier")
    a("s_setprio 3")
    a("s_cmp_ge_u32 s53, 24")
    a("s_cbranch_scc1 M_SVC")
    for c in range(7):
        a("s_barrier")
    stamp(a, 1)

    def htpoll(lab):
        a("s_lshl_b32 s61, s48, 9")
        a("v_lshlrev_b32 v10, 3, v1")
        poll(a, lab, 1, 10, 36, "s61", tmp, vTag, 62, 16)

    def kvrest(lab):
        lds_wait(a, lab + "D", L_C0F, 8, tmp + 4, tmp, 62, 2)
        a("s_lshl_b32 s44, s52, 5")
        a("s_add_u32 s44, s44, s48")
        a("s_lshl_b32 s44, s44, 7")
        a(f"s_add_u32 s44, s44, {F_QKV + 32768}")
        a(f"v_and_b32 v{tmp+4}, 7, v1")
        a(f"v_lshlrev_b32 v{tmp+4}, 9, v{tmp+4}")
        a(f"v_bfe_u32 v{tmp+5}, v1, 3, 1")
        a(f"v_lshl_add_u32 v{tmp+4}, v{tmp+5}, 15, v{tmp+4}")
        poll(a, lab + "C", 1, tmp + 4, 36, "s44", tmp, vTag, 62, 2)
        a("s_lshl_b32 s44, s52, 2")
        a("s_and_b32 s45, s53, 3")
        a("s_add_u32 s44, s44, s45")
        a("s_lshl_b32 s44, s44, 17")
        a("s_lshl_b32 s46, s48, 12")
        a("s_lshr_b32 s45, s53, 2")
        a("s_min_u32 s45, s45, 4")
        a("s_add_u32 s45, s45, 2")
        a("s_lshl_b32 s45, s45, 14")
        for j in range(5):
            a("s_add_u32 s45, s45, 16384")
            a("s_cmp_ge_u32 s45, 0x20000")
            a("s_cselect_b32 s45, 49152, s45")
            a("s_add_u32 s47, s45, s46")
            a("s_mov_b32 m0, s47")
            a("s_add_u32 s47, s47, s44")
            for n in range(4):
                a(f"buffer_load_dwordx4 v2, {sr(40)}, s47 offen offset:{n*1024} sc1 lds")

    a("s_cmp_ge_u32 s56, s68")
    a("s_cbranch_scc1 M_IDLE")
    a(f"s_mul_i32 s57, s48, {512*2752}")
    a("s_lshl_b32 s58, s56, 7")
    a("s_add_u32 s57, s57, s58")
    a("s_lshl_b32 s58, s48, 19")
    a("s_lshl_b32 s59, s54, 10")
    a("s_add_u32 s58, s58, s59")
    a("s_lshl_b32 s60, s51, 6")
    a("s_lshl_b32 s61, s50, 9")
    gemm_src(a, 2752, vT0, vT1, 10, 11)
    a(f"v_xor_b32 v{vD0}, s61, v3")
    a(f"v_xor_b32 v{vD1}, 512, v{vD0}")
    G1 = opt("g1_", 8)
    g1 = Gemm(a, 32, PD, 28, 32, 57, 58, 49, 2752, 16384, True, vT0, vT1, vD0, vD1, vR0, vR1, 512, Tf, Df, acc, " sc1", 63, G1)
    a("s_and_b32 s63, s53, 3")
    a(f"s_mul_i32 s63, s63, {max(1, G1//4)}")
    a(f"s_mul_i32 s62, s55, {max(1, G1//6)}")
    a("s_add_u32 s63, s63, s62")
    gemm_rd(a, 8, vR0, vR1, 49, 60, 10, 11)
    GATE = opt("gate", 3)
    if GATE:
        lds_wait(a, "M_GATE", (L_ISS, L_PUB, L_C0F)[GATE - 1], 4 if GATE < 3 else 8, 10, 11, 62, 2)
    if "kvpre" in OPT:
        htpoll("M_HT")
        kvrest("M_KV0")
        g1.log.extend([("K", 0)] * 20)
    else:
        htpoll("M_HT")
    stamp(a, 2)
    g1.pro_T()
    g1.pro_D()
    KVS = opt("kvs", 0)

    def hook_kv():
        stamp(a, 3)
        a("s_setprio 3")
        kvrest("M_KV1")
        a("s_setprio 0")
        g1.log.extend([("K", 0)] * 20)
        stamp(a, 4)

    def hook_kvf():
        g1.wait_for([("K", 0)])
        a(f"ds_write_b32 v{vKF}, v{vKF+1}")

    if "kvpre" in OPT:
        hook_kvf()
        stamp(a, 3)
        g1.main({16: lambda: stamp(a, 4)})
    else:
        g1.main({KVS: hook_kv, KVS + 3: hook_kvf})
    stamp(a, 5)
    srd(a, 28, pB1, 2752)
    srd(a, 32, pWS, SZ_U, WS_U)
    a("s_lshl_b32 s61, s56, 7")
    a("s_add_u32 s61, s61, s60")
    a("v_lshrrev_b32 v10, 5, v1")
    a("v_lshlrev_b32 v10, 3, v10")
    for g in range(4):
        a(f"buffer_load_dwordx2 {vr(Df+2*g,2)}, v10, {sr(28)}, s61 offen offset:{16*g}")
    mreduce(a, "M1", acc, 49, 0, 10, 11, tmp, Df + 16, 62)
    a("s_mov_b32 s61, 0xffff0000")
    a("s_waitcnt vmcnt(0)")
    for i in range(8):
        a(f"v_lshlrev_b32 v{acc+16+2*i}, 16, v{Df+i}")
        a(f"v_and_b32 v{acc+16+2*i+1}, s61, v{Df+i}")
    for i in range(0, 16, 2):
        a(f"v_pk_add_f32 {vr(acc+i,2)}, {vr(acc+i,2)}, {vr(acc+16+i,2)}")
    gelu(a, acc, acc + 16, acc + 32, 16, 61)
    for i in range(8):
        a(f"v_cvt_pk_bf16_f32 v{Tf+i}, v{acc+2*i}, v{acc+2*i+1}")
    a("s_lshl_b32 s61, s56, 16")
    a("s_lshl_b32 s62, s51, 15")
    a("s_add_u32 s61, s61, s62")
    a("s_add_u32 s61, s61, s59")
    a("s_add_u32 s62, s61, 16384")
    a(f"buffer_store_dwordx4 {vr(Tf,4)}, v{vD0}, {sr(32)}, s61 offen sc1")
    a(f"buffer_store_dwordx4 {vr(Tf+4,4)}, v{vD0}, {sr(32)}, s62 offen sc1")
    a("s_lshl_b32 s61, s56, 2")
    a("s_add_u32 s61, s61, s48")
    a("s_lshl_b32 s61, s61, 3")
    a("s_add_u32 s61, s61, s59")
    a("s_lshl_b32 s61, s61, 4")
    a(f"s_add_u32 s61, s61, {F_U}")
    publish(a, 36, 61, vTag, 10)
    a("s_branch M_2")

    a("M_SVC:")
    stamp(a, 1)
    a("s_and_b32 s57, s53, 7")
    a("s_lshl_b32 s58, s48, 5")
    a("s_add_u32 s57, s57, s58")
    a("s_sub_u32 s58, s56, s55")
    a("s_lshl_b32 s58, s58, 7")
    a(f"s_mul_i32 s59, s57, {16*2752}")
    a("s_add_u32 s58, s58, s59")
    a("s_lshl_b32 s59, s57, 14")
    a("s_and_b32 s60, s52, 1")
    a("s_lshl_b32 s60, s60, 12")
    a("s_add_u32 s59, s59, s60")
    a("v_lshrrev_b32 v4, 3, v1")
    a("v_mul_u32_u24 v4, 2752, v4")
    a("v_and_b32 v5, 7, v1")
    a("v_min_u32 v5, 6, v5")
    a("v_lshl_add_u32 v4, v5, 7, v4")
    a(f"v_add_u32 v5, {8*2752}, v4")
    a("v_lshrrev_b32 v6, 5, v1")
    a("v_lshlrev_b32 v6, 13, v6")
    a("v_and_b32 v7, 31, v1")
    a("v_lshl_add_u32 v6, v7, 7, v6")

    def tw(g):
        a(f"buffer_load_dword v{Tf+3*g}, v4, {sr(28)}, s58 offen{NTM}")
        a(f"buffer_load_dword v{Tf+3*g+1}, v5, {sr(28)}, s58 offen{NTM}")
        a(f"s_add_u32 s58, s58, {128*2752}")

    def th(g):
        a(f"buffer_load_dword v{Tf+3*g+2}, v6, {sr(32)}, s59 offen sc1")
        a(f"s_add_u32 s59, s59, {8*16384}")

    NE, NW = opt("ne", 0), opt("nw", 1)
    for g in range(NE):
        tw(g)
    a("s_barrier")
    stamp(a, 2)
    for g in range(NE, NW):
        tw(g)
    a("s_waitcnt vmcnt(0)")
    a(f"ds_write_b32 v{vKF}, v{vKF+1} offset:{L_PUB-L_KVF}")
    stamp(a, 3)
    a("M_IDLE:")
    kvrest("M_KV2")
    a("s_waitcnt vmcnt(0)")
    a(f"ds_write_b32 v{vKF}, v{vKF+1}")
    stamp(a, 4)
    a("s_cmp_lt_u32 s53, 24")
    a("s_cbranch_scc1 M_IDLE2")
    htpoll("M_HT2")
    for g in range(4):
        th(g)
        if g + NW < 4:
            tw(g + NW)
    stamp(a, 5)
    srd(a, 28, pW2, 1376 * 4096)
    a("s_and_b32 s57, s53, 7")
    a("s_lshl_b32 s57, s57, 2")
    a("s_add_u32 s57, s57, s48")
    a(f"s_mul_i32 s58, s57, {43*4096}")
    a("s_lshl_b32 s59, s52, 9")
    a("s_add_u32 s58, s58, s59")
    a("v_lshrrev_b32 v10, 2, v1")
    a("v_lshlrev_b32 v10, 12, v10")
    a("v_and_b32 v11, 3, v1")
    a("v_lshl_add_u32 v10, v11, 7, v10")
    for j in range(3):
        a(f"buffer_load_dword v{Tf+12+j}, v10, {sr(28)}, s58 offen{NTM}")
        a("s_add_u32 s58, s58, 65536")
    a("s_waitcnt vmcnt(0)")
    a("M_IDLE2:")
    srd(a, 32, pWS, SZ_U, WS_U)
    a("M_2:")
    stamp(a, 6)
    srd(a, 28, pW2, 1376 * 4096)
    a("s_and_b32 s54, s53, 7")
    a("s_lshr_b32 s55, s53, 3")
    a("s_lshl_b32 s56, s52, 2")
    a("s_add_u32 s56, s56, s55")
    a(f"s_mul_i32 s57, s48, {22*16*4096}")
    a("s_lshl_b32 s58, s56, 7")
    a("s_add_u32 s57, s57, s58")
    a(f"s_mul_i32 s58, s48, {22*16384}")
    a("s_lshl_b32 s59, s54, 10")
    a("s_add_u32 s58, s58, s59")
    a("s_lshl_b32 s60, s50, 6")
    a("s_lshl_b32 s61, s51, 9")
    gemm_src(a, 4096, vT0, vT1, 10, 11)
    a(f"v_xor_b32 v{vD0}, s61, v3")
    a(f"v_xor_b32 v{vD1}, 512, v{vD0}")
    g2 = Gemm(a, 22, PD, 28, 32, 57, 58, 49, 4096, 16384, False, vT0, vT1, vD0, vD1, vR0, vR1, 1024, Tf, Df, acc, " sc1", 63, opt("g2_", 4))
    a("s_add_u32 s63, s55, s54")
    g2.pro_T()
    gemm_rd(a, 4, vR0, vR1, 49, 60, 10, 11)
    a("s_mul_i32 s61, s48, 11")
    a("s_lshr_b32 s61, s61, 1")
    a("s_lshl_b32 s61, s61, 5")
    a("s_add_u32 s61, s61, s59")
    a("s_lshl_b32 s61, s61, 4")
    a(f"s_add_u32 s61, s61, {F_U}")
    a("v_min_u32 v10, 23, v1")
    a("v_lshlrev_b32 v10, 7, v10")
    poll(a, "M_U", 1, 10, 36, "s61", tmp, vTag, 62, 8)
    stamp(a, 7)
    g2.pro_D()
    g2.main()
    stamp(a, 8)
    srd(a, 28, pWO, 512 * 1024)
    a("s_lshl_b32 s61, s53, 2")
    a("s_add_u32 s61, s61, s48")
    a("s_lshl_b32 s61, s61, 12")
    a("v_lshlrev_b32 v10, 6, v1")
    a(f"buffer_load_dword v{Df+3}, v10, {sr(28)}, s61 offen")
    srd(a, 28, pB2, 4096)
    srd(a, 32, pWS, 8192, WS_G)
    a("s_lshl_b32 s61, s56, 7")
    a("s_add_u32 s61, s61, s60")
    a("s_lshl_b32 s62, s61, 1")
    a("v_and_b32 v10, 31, v1")
    a("v_lshlrev_b32 v11, 2, v10")
    a("v_lshlrev_b32 v10, 1, v10")
    a(f"buffer_load_ushort v{Df}, v10, {sr(28)}, s61 offen")
    a(f"buffer_load_dword v{Df+1}, v11, {sr(32)}, s62 offen sc1")
    mreduce(a, "M2", acc, 49, 16, 10, 11, tmp, Df + 16, 62)
    a("s_waitcnt vmcnt(0)")
    G, Y = Df + 1, acc
    a(f"v_lshlrev_b32 v{Df}, 16, v{Df}")
    a(f"v_sub_f32 v{Df+2}, 1.0, v{G}")
    a(f"v_mul_f32 v{Df}, v{Df}, v{Df+2}")
    for i in range(16):
        a(f"v_fma_f32 v{Y+i}, v{Y+i}, v{Df+2}, v{Df}")
    stamp(a, 9)

    vR, vO = 4, 5
    Wf, Of, A3 = 96, 128, 80
    a("s_lshl_b32 s60, s51, 6")
    gemm_rd(a, 4, vR, None, None, 60, 10, 11)
    a("s_lshl_b32 s60, s50, 10")
    a("s_add_u32 s60, s60, 2048")
    a(f"v_add_u32 v{vO}, s60, v2")
    a(f"v_add_u32 v6, 65536, v{vR}")
    a(f"v_add_u32 v7, 65536, v{vO}")
    srd(a, 28, pOUT, 2 * MB)
    a("v_and_b32 v9, 31, v1")
    a("v_lshlrev_b32 v9, 10, v9")
    a("v_lshrrev_b32 v10, 5, v1")
    a("v_lshl_add_u32 v9, v10, 4, v9")
    a("s_lshl_b32 s57, s56, 16")
    a("s_lshl_b32 s58, s50, 15")
    a("s_add_u32 s57, s57, s58")
    a("s_lshl_b32 s58, s54, 7")
    a("s_add_u32 s57, s57, s58")
    a("s_lshl_b32 s58, s51, 6")
    a("s_add_u32 s57, s57, s58")
    a("s_lshl_b32 s58, s2, 4")
    a("s_add_u32 s58, s58, s48")
    a("s_cmp_lg_u32 s58, 0")
    a("s_cbranch_scc1 M_NOE")
    a("v_lshrrev_b32 v10, 4, v1")
    a("v_lshlrev_b32 v10, 13, v10")
    a("v_and_b32 v11, 15, v1")
    a("v_lshl_add_u32 v10, v11, 8, v10")
    for t in range(3):
        a(f"s_mov_b32 s58, {F_QKV + 32768*t}")
        poll(a, f"M_E{t}", 1, 10, 36, "s58", tmp, vTag, 62, 8)
    a("v_lshlrev_b32 v10, 5, v1")
    poll(a, "M_E3", 1, 10, 36, "0", tmp, vTag, 62, 8)
    a("v_lshlrev_b32 v10, 20, v1")
    a(f"s_mov_b32 s58, {F_E}")
    a(f"buffer_store_dwordx2 {vr(vTag,2)}, v10, {sr(36)}, s58 offen sc1")
    a("M_NOE:")

    def rd3(t):
        off = (t % 16) * 4096
        r, o = (vR, vO) if t < 16 else (6, 7)
        b = t % 8
        a(f"ds_read_b64_tr_b16 {vr(Wf+4*b,2)}, v{r} offset:{off}")
        a(f"ds_read_b64_tr_b16 {vr(Wf+4*b+2,2)}, v{r} offset:{off+1024}")
        a(f"ds_read_b128 {vr(Of+4*b,4)}, v{o} offset:{off}")

    for c in range(4):
        a("s_barrier")
        if c in (0, 3):
            stamp(a, 10 + c // 3)
        for j in range(4):
            rd3(8 * c + j)
        for j in range(8):
            t = 8 * c + j
            if j + 4 < 8:
                rd3(t + 4)
            a(f"s_waitcnt lgkmcnt({3*min(4, 7-j)})")
            mfma(a, A3, Wf + 4 * j, Of + 4 * j, "0" if t == 0 else None)
    stamp(a, 12)
    for i in range(16):
        a(f"v_fmac_f32 v{Y+i}, v{A3+i}, v{G}")
    for i in range(8):
        a(f"v_cvt_pk_bf16_f32 v{Tf+i}, v{Y+2*i}, v{Y+2*i+1}")
    for p in range(2):
        a(f"v_permlane32_swap_b32 v{Tf+4*p}, v{Tf+4*p+2}")
        a(f"v_permlane32_swap_b32 v{Tf+4*p+1}, v{Tf+4*p+3}")
        a(f"buffer_store_dwordx4 {vr(Tf+4*p,4)}, v9, {sr(28)}, s57 offen offset:{32*p}")
    endprof(a)
    a("s_endpgm")
    return dict(name=nm, vgpr=168, grid=256, block=768, lds=163840)


def build(path, verbose=False, aslist=False):
    ref = open("cdna_kernels/" + NAME + ".s.ref").read().split("\n")
    hdr = [l for l in ref if l.startswith(";") and "@launch" not in l and "Override launch" not in l and "grid=ceil" not in l]
    a = Asm()
    i = kernel(a)
    a.fix(verbose)
    s = "\n".join(hdr) + "\n"
    if aslist:
        s += f"; @launch kernel={i['name']} grid=({i['grid']},1,1) block=({i['block']},1,1) lds={i['lds']}\n"
    else:
        s += f"; @launch grid=({i['grid']},1,1) block=({i['block']},1,1) lds={i['lds']}\n"
    s += '.amdgcn_target "amdgcn-amd-amdhsa--gfx950"\n.text\n'
    s += a.text()
    s += '.section .rodata,"a"\n'
    s += f""".p2align 6
.amdhsa_kernel {i['name']}
  .amdhsa_next_free_vgpr {i['vgpr']}
  .amdhsa_next_free_sgpr {102 if PROF or opt('cal', -1) >= 0 else 70}
  .amdhsa_accum_offset {i['vgpr']}
  .amdhsa_group_segment_fixed_size 0
  .amdhsa_kernarg_size 96
  .amdhsa_user_sgpr_count 2
  .amdhsa_user_sgpr_kernarg_segment_ptr 1
  .amdhsa_system_sgpr_workgroup_id_x 1
.end_amdhsa_kernel
"""
    open(path, "w").write(s)


if __name__ == "__main__":
    out = sys.argv[1] if len(sys.argv) > 1 and not sys.argv[1][0] in "-+" else "cdna_kernels/" + NAME + ".s"
    PROF = "-p" in sys.argv
    OPT = set(x[1:] for x in sys.argv if x.startswith("+"))
    build(out, verbose="-v" in sys.argv, aslist="-l" in sys.argv)
```

```python
import sys, math, struct
from asmlib import Asm

NAME = "gated_mix__softmax_full_mha__mixer_token_mlp__prompt"
MB = 1 << 20
WS_Q, WS_KV, WS_HT, WS_U, WS_O, WS_G, WS_F = 0, 2 * MB, 6 * MB, 8 * MB, 10 * MB, 14 * MB, 15 * MB
SZ_U = 172 * 8192
F_HT, F_E, F_QKV, F_U, F_O = 0, 8192, 131072, 262144, 524288
SZ_F = 786432
PROF = False
OPT = set()
WS_P = 16 * MB
LOG2E = math.log2(math.e)
pX, pWQKV, pWO, pW1, pB1, pW2, pB2, pGW, pOUT, pWS = 4, 6, 8, 12, 14, 16, 18, 20, 22, 26
MREG = 131072
LF = MREG + 6144 + 64
L_KVF, L_PUB, L_C0F, L_DONE, L_C1F, L_ISS, L_TAG = LF, LF + 16, LF + 32, LF + 64, LF + 96, LF + 128, LF + 144
PR1, PR0 = 4, 2
pDBG = 24


def f32(x):
    return "0x%08x" % struct.unpack("<I", struct.pack("<f", x))[0]


def srd(a, d, base, size, add=0):
    if add:
        a(f"s_add_u32 s{d}, s{base}, {hex(add)}")
        a(f"s_addc_u32 s{d+1}, s{base+1}, 0")
    else:
        a(f"s_mov_b32 s{d}, s{base}")
        a(f"s_mov_b32 s{d+1}, s{base+1}")
    a(f"s_mov_b32 s{d+2}, {hex(size)}")
    a(f"s_mov_b32 s{d+3}, 0x20000")


def vr(b, n):
    return f"v[{b}:{b+n-1}]"


def sr(b, n=4):
    return f"s[{b}:{b+n-1}]"


def mfma(a, D, A, B, C=None):
    c = vr(D, 16) if C is None else (C if isinstance(C, str) else vr(C, 16))
    a(f"v_mfma_f32_32x32x16_bf16 {vr(D,16)}, {vr(A,4)}, {vr(B,4)}, {c}")


def stamp(a, i):
    if opt("cal", -1) == i:
        a("s_memrealtime s[70:71]")
    if opt("ca_", -1) == i:
        a("s_memtime s[76:77]")
    if opt("cb_", -1) == i:
        a("s_memtime s[78:79]")
    if PROF:
        a(f"s_memtime s[{72+2*i}:{73+2*i}]")


_cal = [0]


def endprof(a, n=12):
    if opt("cal", -1) >= 0:
        _cal[0] += 1
        L = f"CAL{_cal[0]}"
        if opt("cal", -1) == 13:
            a("s_memrealtime s[70:71]")
        a("s_cmp_lg_u32 s2, 3")
        a(f"s_cbranch_scc1 {L}_X")
        a(f"s_cmp_lg_u32 s3, {opt('cw', 0)}")
        a(f"s_cbranch_scc1 {L}_X")
        a("s_mov_b32 s74, 400000")
        if opt("ca_", -1) >= 0:
            a("s_waitcnt lgkmcnt(0)")
            a("s_sub_u32 s78, s78, s76")
            a("s_lshr_b32 s78, s78, 3")
            a("s_add_u32 s70, s70, s78")
            a("s_sub_u32 s70, s70, 5000")
        a(f"{L}:")
        a("s_memrealtime s[72:73]")
        a("s_waitcnt lgkmcnt(0)")
        a("s_sub_u32 s74, s74, 1")
        a(f"s_cbranch_scc1 {L}_X")
        a("s_sub_u32 s72, s72, s70")
        a("s_cmp_lt_u32 s72, %d" % (8500 if opt("ca_", -1) >= 0 else 3500))
        a(f"s_cbranch_scc1 {L}")
        a(f"{L}_X:")
    if not PROF:
        return
    a("s_waitcnt vmcnt(0)")
    a(f"s_memtime s[{72+2*(n+1)}:{73+2*(n+1)}]")
    a("s_memrealtime s[100:101]")
    a("s_mov_b64 exec, -1")
    srd(a, 28, pWS, MB, WS_P)
    a("s_lshl_b32 s52, s2, 4")
    a("s_add_u32 s52, s52, s3")
    a("s_lshl_b32 s52, s52, 7")
    a("s_waitcnt lgkmcnt(0)")
    a("v_mov_b32 v2, 0")
    a("v_mov_b32 v3, s70")
    a("buffer_store_dword v3, v2, s[28:31], s52 offen")
    a("v_mov_b32 v3, s100")
    a("buffer_store_dword v3, v2, s[28:31], s52 offen offset:4")
    for i in range(1, n + 2):
        a(f"s_sub_u32 s53, s{72+2*i}, s72")
        a("v_mov_b32 v3, s53")
        a(f"buffer_store_dword v3, v2, s[28:31], s52 offen offset:{4+4*i}")


def gemm_src(a, strideT, vT0, vT1, t0, t1):
    a(f"v_lshrrev_b32 v{t0}, 3, v1")
    a(f"v_mul_u32_u24 v{t0}, {strideT}, v{t0}")
    a(f"v_bfe_u32 v{t1}, v1, 4, 1")
    a(f"v_lshlrev_b32 v{t1}, 2, v{t1}")
    a(f"v_xor_b32 v{t1}, v{t1}, v1")
    a(f"v_and_b32 v{t1}, 7, v{t1}")
    a(f"v_lshl_add_u32 v{vT0}, v{t1}, 4, v{t0}")
    a(f"v_add_u32 v{vT1}, {8*strideT}, v{vT0}")


def gemm_rd(a, hmul, vR0, vR1, sL, sSwap, t0, t1):
    a(f"v_lshrrev_b32 v{t0}, 5, v1")
    a(f"v_mul_u32_u24 v{t0}, {hmul}, v{t0}")
    a(f"v_bfe_u32 v{t1}, v1, 2, 2")
    a(f"v_add_u32 v{t0}, v{t0}, v{t1}")
    a(f"v_lshlrev_b32 v{t0}, 7, v{t0}")
    a(f"v_bfe_u32 v{t1}, v1, 3, 1")
    a(f"v_lshl_add_u32 v{t0}, v{t1}, 6, v{t0}")
    a(f"v_bfe_u32 v{t1}, v1, 4, 1")
    a(f"v_lshl_add_u32 v{t0}, v{t1}, 5, v{t0}")
    a(f"v_and_b32 v{t1}, 3, v1")
    a(f"v_lshl_add_u32 v{t0}, v{t1}, 3, v{t0}")
    if sL is None:
        a(f"v_xor_b32 v{vR0}, s{sSwap}, v{t0}")
        return
    a(f"v_xor_b32 v{t0}, s{sSwap}, v{t0}")
    a(f"v_add_u32 v{vR0}, s{sL}, v{t0}")
    a(f"v_xor_b32 v{t0}, 64, v{t0}")
    a(f"v_add_u32 v{vR1}, s{sL}, v{t0}")


def lds_spin(a, lab, vaddr, off, want, vt, cnt, sleep=1):
    a(f"s_mov_b32 s{cnt}, 0x100000")
    a(f"{lab}:")
    a(f"ds_read_b32 v{vt}, v{vaddr} offset:{off}")
    a("s_waitcnt lgkmcnt(0)")
    a(f"v_cmp_ne_u32 vcc, {want}, v{vt}")
    a(f"s_sub_u32 s{cnt}, s{cnt}, 1")
    a(f"s_cbranch_scc1 {lab}_X")
    a(f"s_cbranch_vccz {lab}_X")
    a(f"s_sleep {sleep}")
    a(f"s_branch {lab}")
    a(f"{lab}_X:")


def poll(a, lab, n, vaddr, sF, soff, vt, vTag, cnt, sleep, extra=None, mask=None, save=None):
    a(f"s_mov_b32 s{cnt}, 0x40000")
    a(f"{lab}:")
    if n == 1:
        a(f"buffer_load_dwordx2 {vr(vt,2)}, v{vaddr}, {sr(sF)}, {soff} offen sc1")
    else:
        a(f"buffer_load_dwordx4 {vr(vt,4)}, v{vaddr}, {sr(sF)}, {soff} offen sc1")
    if n == 4:
        a(f"buffer_load_dwordx4 {vr(vt+4,4)}, v{vaddr}, {sr(sF)}, {soff} offen offset:16 sc1")
    a("s_waitcnt vmcnt(0)")
    if extra:
        a(extra)
    for i in range(2 * n):
        a(f"v_xor_b32 v{vt+i}, v{vt+i}, v{vTag + i % 2}")
    k = 2 * n
    i = 1
    while i < k:
        if i + 1 < k:
            a(f"v_or3_b32 v{vt}, v{vt}, v{vt+i}, v{vt+i+1}")
            i += 2
        else:
            a(f"v_or_b32 v{vt}, v{vt}, v{vt+i}")
            i += 1
    a(f"v_cmp_ne_u32 vcc, 0, v{vt}")
    a(f"s_sub_u32 s{cnt}, s{cnt}, 1")
    a(f"s_cbranch_scc1 {lab}_X")
    if mask is None:
        a(f"s_cbranch_vccz {lab}_X")
    else:
        a(f"s_and_b32 s{save}, vcc_lo, {mask}")
        a(f"s_cbranch_scc0 {lab}_X")
    a(f"s_sleep {sleep}")
    a(f"s_branch {lab}")
    a(f"{lab}_X:")
    if mask is not None:
        a(f"s_mov_b32 s{save}, vcc_lo")


def spoll(a, lab, words, dst, sF, sTag, cnt, sleep):
    a(f"s_mov_b32 s{cnt}, 0x40000")
    a(f"{lab}:")
    for i, (so, imm) in enumerate(words):
        a(f"s_buffer_load_dwordx2 s[{dst+2*i}:{dst+2*i+1}], {sr(sF)}, s{so} offset:{imm} glc")
    a("s_waitcnt lgkmcnt(0)")
    for i in range(len(words)):
        a(f"s_xor_b64 s[{dst+2*i}:{dst+2*i+1}], s[{dst+2*i}:{dst+2*i+1}], s[{sTag}:{sTag+1}]")
        if i:
            a(f"s_or_b64 s[{dst}:{dst+1}], s[{dst}:{dst+1}], s[{dst+2*i}:{dst+2*i+1}]")
    a(f"s_cbranch_scc0 {lab}_X")
    a(f"s_sub_u32 s{cnt}, s{cnt}, 1")
    a(f"s_cbranch_scc1 {lab}_X")
    a(f"s_sleep {sleep}")
    a(f"s_branch {lab}")
    a(f"{lab}_X:")


def publish(a, sF, soff, vTag, vt):
    a(f"v_lshlrev_b32 v{vt}, 20, v1")
    a("s_waitcnt vmcnt(0)")
    a(f"buffer_store_dwordx2 {vr(vTag,2)}, v{vt}, {sr(sF)}, s{soff} offen sc1")


def get_tag(a, vTag, vt):
    a(f"v_mov_b32 v{vt}, {L_TAG}")
    a(f"ds_read_b64 {vr(vTag,2)}, v{vt}")


def opt(name, default):
    return next((int(o[len(name):]) for o in OPT if o.startswith(name)), default)


def lds_wait(a, lab, base, n, vA, vt, cnt, sleep=1):
    a(f"v_and_b32 v{vA}, {n-1}, v1")
    a(f"v_lshlrev_b32 v{vA}, 2, v{vA}")
    a(f"v_add_u32 v{vA}, {base}, v{vA}")
    lds_spin(a, lab, vA, 0, 1, vt, cnt, sleep)


class Gemm:
    def __init__(s, a, nsteps, P, srdT, srdD, sT, sD, sL, strideT, stepD, t_is_A, vT0, vT1, vD0, vD1, vR0, vR1, qoff,
                 Tf, Df, acc, dflags, sW, G):
        s.__dict__.update(locals())
        s.log = []

    def idx(s, i, dst, base, stride):
        a = s.a
        g0 = i // s.G * s.G
        gs = min(s.G, s.nsteps - g0)
        assert gs & (gs - 1) == 0
        a(f"s_add_u32 s{dst}, s{s.sW}, {i - g0}")
        a(f"s_and_b32 s{dst}, s{dst}, {gs - 1}")
        a(f"s_add_u32 s{dst}, s{dst}, {g0}")
        a(f"s_mul_i32 s{dst}, s{dst}, {stride}")
        a(f"s_add_u32 s{dst}, s{dst}, s{base}")

    def LD1(s, i, half):
        if i >= s.nsteps:
            return
        if "nold" in OPT and i > 3:
            s.a("s_sleep 1")
            return
        d = s.Df + 8 * (i % (s.P + 1)) + 4 * half
        if not half:
            s.idx(i, s.sW + 2, s.sD, s.stepD)
        s.a(f"buffer_load_dwordx4 {vr(d,4)}, v{(s.vD0, s.vD1)[half]}, {sr(s.srdD)}, s{s.sW+2} offen{s.dflags}")
        s.log.append(("D", i))

    def DMA1(s, i, half):
        if i >= s.nsteps:
            return
        if "nold" in OPT and i > 3:
            s.a("s_sleep 1")
            return
        a = s.a
        sl = (i % s.P) * 2048 + 1024 * half
        a(f"s_add_u32 m0, s{s.sL}, {sl}")
        if not half:
            s.idx(i, s.sW + 1, s.sT, 16 * s.strideT)
        else:
            a("s_nop 0")
        a(f"buffer_load_dwordx4 v{(s.vT0, s.vT1)[half]}, {sr(s.srdT)}, s{s.sW+1} offen{' nt' if 'ntt' in OPT else ''} lds")
        s.log.append(("T", i))

    def rd(s, i):
        sl = (i % s.P) * 2048
        t = s.Tf + 8 * (i % 2)
        for b, vR in ((0, s.vR0), (1, s.vR1)):
            for q in range(2):
                s.a(f"ds_read_b64_tr_b16 {vr(t+4*b+2*q,2)}, v{vR} offset:{sl+q*s.qoff}")

    def wait_for(s, items):
        if "nold" in OPT:
            s.a("s_waitcnt vmcnt(0)")
            return
        last = max(idx for idx, it in enumerate(s.log) if it in items)
        s.a(f"s_waitcnt vmcnt({min(63, len(s.log) - 1 - last)})")

    def pro_T(s):
        for j in range(s.P):
            s.DMA1(j, 0)
            s.DMA1(j, 1)

    def pro_D(s):
        for j in range(s.P):
            s.LD1(j, 0)
            s.LD1(j, 1)

    def main(s, hooks={}):
        a = s.a
        s.wait_for([("T", 0)])
        s.rd(0)
        a("s_waitcnt lgkmcnt(0)")
        s.DMA1(s.P, 0)
        s.DMA1(s.P, 1)
        if "mp3" not in OPT:
            a("s_setprio 0")
        n = s.nsteps
        for i in range(n):
            if i in hooks:
                hooks[i]()
            need = [("D", i)] + ([("T", i + 1)] if i + 1 < n else [])
            s.wait_for(need)
            t, d = s.Tf + 8 * (i % 2), s.Df + 8 * (i % (s.P + 1))
            for k in range(4):
                x, y = k // 2, k % 2
                C = "0" if i == 0 else None
                if "nomm" in OPT and i > 0:
                    pass
                elif s.t_is_A:
                    mfma(a, s.acc + 16 * k, t + 4 * x, d + 4 * y, C)
                else:
                    mfma(a, s.acc + 16 * k, d + 4 * x, t + 4 * y, C)
                if k == 0:
                    if i + 1 < n:
                        s.rd(i + 1)
                    s.LD1(i + s.P, 0)
                elif k == 1:
                    s.LD1(i + s.P, 1)
                elif k == 2:
                    if i + 1 < n:
                        a("s_waitcnt lgkmcnt(0)")
                    s.DMA1(i + 1 + s.P, 0)
                else:
                    s.DMA1(i + 1 + s.P, 1)
        a("s_setprio 3")


def gelu(a, X, T, U, n, s0):
    k = math.sqrt(2 / math.pi)
    a(f"v_mov_b32 v{U}, {f32(-2*k*LOG2E)}")
    a(f"v_mov_b32 v{U+1}, {f32(-2*k*LOG2E)}")
    a(f"v_mov_b32 v{U+2}, {f32(-2*k*LOG2E*0.044715)}")
    a(f"v_mov_b32 v{U+3}, {f32(-2*k*LOG2E*0.044715)}")
    a(f"v_mov_b32 v{U+4}, 1.0")
    a(f"v_mov_b32 v{U+5}, 1.0")
    for i in range(0, n, 2):
        a(f"v_pk_mul_f32 {vr(T+i,2)}, {vr(X+i,2)}, {vr(X+i,2)}")
    for i in range(0, n, 2):
        a(f"v_pk_fma_f32 {vr(T+i,2)}, {vr(T+i,2)}, {vr(U+2,2)}, {vr(U,2)}")
    for i in range(0, n, 2):
        a(f"v_pk_mul_f32 {vr(T+i,2)}, {vr(T+i,2)}, {vr(X+i,2)}")
    for i in range(n):
        a(f"v_exp_f32 v{T+i}, v{T+i}")
    for i in range(0, n, 2):
        a(f"v_pk_add_f32 {vr(T+i,2)}, {vr(T+i,2)}, {vr(U+4,2)}")
    for i in range(n):
        a(f"v_rcp_f32 v{T+i}, v{T+i}")
    for i in range(0, n, 2):
        a(f"v_pk_mul_f32 {vr(X+i,2)}, {vr(X+i,2)}, {vr(T+i,2)}")


def mreduce(a, tag, acc, sL, fl, vA, vB, vT, R, cnt):
    a(f"v_lshlrev_b32 v{vA}, 4, v1")
    a(f"v_add_u32 v{vA}, s{sL}, v{vA}")
    a(f"v_mov_b32 v{vB}, s{sL}")
    a(f"v_mov_b32 v{vT+1}, 1")
    a("s_nop 7")
    wr, rdb = {1: 0, 2: 1, 3: 3}, {1: 1, 2: 3, 3: 0}

    def add():
        for i in range(0, 16, 2):
            a(f"v_pk_add_f32 {vr(acc+i,2)}, {vr(acc+i,2)}, {vr(R+i,2)}")

    for r in (1, 2, 3):
        if wr[r]:
            a(f"v_xor_b32 v{vT+2}, {8192*wr[r]}, v{vA}")
        for i in range(4):
            a(f"ds_write_b128 v{vT+2 if wr[r] else vA}, {vr(acc+16*r+4*i,4)} offset:{1024*i}")
        a(f"v_xor_b32 v{vT+3}, {8192*r}, v{vB}")
        if r > 1:
            add()
        a("s_waitcnt lgkmcnt(0)")
        a(f"ds_write_b32 v{vB}, v{vT+1} offset:{6144+fl+4*(r-1)}")
        lds_spin(a, f"{tag}_R{r}", vT + 3, 6144 + fl + 4 * (r - 1), 1, vT, cnt)
        if rdb[r]:
            a(f"v_xor_b32 v{vT+2}, {8192*rdb[r]}, v{vA}")
        for i in range(4):
            a(f"ds_read_b128 {vr(R+4*i,4)}, v{vT+2 if rdb[r] else vA} offset:{1024*i}")
        a("s_waitcnt lgkmcnt(0)")
    add()


def kernel(a):
    global PROF
    nm = NAME + "_kernel"
    a.raw(f".globl {nm}")
    a.raw(".p2align 8")
    a.raw(f".type {nm},@function")
    a(f"{nm}:")
    if PROF:
        a("s_memrealtime s[70:71]")
        a("s_memtime s[72:73]")
    stamp(a, 0) if not PROF else None
    SLOT, NS = 32768, 4
    NTX = " nt" if "ntx" in OPT else ""
    NTW = " nt" if "ntw" in OPT else ""
    NTM = " nt" if "ntm" in OPT else ""
    vTag = 166
    a("s_cmp_ge_u32 s2, 256")
    a("s_cbranch_scc1 END")
    a("s_load_dwordx16 s[4:19], s[0:1], 0")
    a("s_load_dwordx8 s[20:27], s[0:1], 64")
    a("v_lshrrev_b32 v2, 6, v0")
    a("v_and_b32 v1, 63, v0")
    a("v_readfirstlane_b32 s3, v2")
    a("s_and_b32 s52, s2, 7")
    a("s_lshr_b32 s53, s2, 3")
    a("s_mul_i32 s55, s53, 43")
    a("s_lshr_b32 s55, s55, 8")
    a("s_mul_i32 s56, s55, 6")
    a("s_sub_u32 s56, s53, s56")
    a("s_lshl_b32 s58, s55, 1")
    a("s_add_u32 s58, s58, s56")
    a("s_lshr_b32 s54, s52, 1")
    a("s_lshl_b32 s54, s54, 2")
    a("s_add_u32 s54, s54, s55")
    a("s_and_b32 s55, s52, 1")
    a("s_mul_i32 s55, s55, 6")
    a("s_add_u32 s55, s55, s56")
    a("s_cmp_ge_u32 s3, 8")
    a("s_cbranch_scc1 P1_M")
    a("s_cmp_ge_u32 s53, 24")
    a("s_cbranch_scc1 SVC")
    a("s_cmp_ge_u32 s3, 4")
    a("s_cbranch_scc1 P1_LOAD")

    vXA, vWA = 10, 18
    Fb = 112
    acc = 48
    a("s_and_b32 s56, s3, 1")
    a("s_lshr_b32 s57, s3, 1")
    a("s_lshl_b32 s59, s56, 13")
    a("v_and_b32 v2, 31, v1")
    a("v_lshrrev_b32 v3, 5, v1")
    a("v_bfe_u32 v9, v1, 1, 3")
    a("v_lshlrev_b32 v2, 7, v2")
    a("v_add_u32 v2, s59, v2")
    for kk in range(4):
        a(f"v_add_u32 v30, {2*kk}, v3")
        a("v_xor_b32 v30, v30, v9")
        a(f"v_lshl_add_u32 v{vXA+kk}, v30, 4, v2")
        a(f"v_add_u32 v{vXA+4+kk}, {2*SLOT}, v{vXA+kk}")
    a("s_lshl_b32 s59, s57, 13")
    a("s_add_u32 s59, s59, 16384")
    a("s_mov_b32 s60, 0")
    gemm_rd(a, 8, vWA, vWA + 1, 59, 60, 2, 9)
    a(f"v_add_u32 v{vWA+2}, {2*SLOT}, v{vWA}")
    a(f"v_add_u32 v{vWA+3}, {2*SLOT}, v{vWA+1}")
    a("s_and_b32 s59, s55, 3")
    a("s_lshl_b32 s59, s59, 1")
    a("s_add_u32 s59, s59, s57")
    a("s_lshl_b32 s60, s54, 1")
    a("s_add_u32 s60, s60, s56")
    a("s_lshr_b32 s61, s55, 2")
    a("s_lshl_b32 s62, s61, 8")
    a("s_lshl_b32 s63, s59, 5")
    a("s_add_u32 s62, s62, s63")
    a("s_add_u32 s62, s62, s60")
    a("s_lshl_b32 s62, s62, 7")
    a(f"s_add_u32 s62, s62, {F_QKV}")
    a("s_lshl_b32 s63, s59, 18")
    a("s_lshl_b32 s64, s60, 11")
    a("s_add_u32 s63, s63, s64")
    a("s_lshl_b32 s64, s63, 1")
    a(f"s_add_u32 s64, s64, {WS_KV - WS_Q}")
    a("s_cmp_eq_u32 s61, 0")
    a("s_cselect_b32 s63, s63, s64")
    a("s_cselect_b32 s65, 1, 2")
    a(f"s_cselect_b32 s66, {f32(0.25*LOG2E)}, 1.0")
    a("s_mov_b32 s67, s66")
    a("s_lshl_b32 s64, s65, 16")
    a("s_lshl_b32 s65, s65, 10")
    a("v_lshlrev_b32 v2, 4, v1")
    a("v_bfe_u32 v9, v1, 4, 1")
    a("v_lshlrev_b32 v9, 17, v9")
    a("v_lshl_add_u32 v9, v3, 8, v9")
    a("v_and_b32 v30, 15, v1")
    a("v_lshl_add_u32 v9, v30, 4, v9")
    a("s_lshl_b32 s59, s3, 2")
    a(f"s_add_u32 s59, s59, {L_PUB}")
    a("v_mov_b32 v31, s59")
    a("v_mov_b32 v30, 1")
    a("s_waitcnt lgkmcnt(0)")
    srd(a, 28, pWS, 6 * MB, WS_Q)
    srd(a, 36, pWS, SZ_F, WS_F)
    a("s_cmp_eq_u32 s61, 2")
    a("s_cbranch_scc1 P1_V")

    def reads(t):
        c, kk = t // 4, t % 4
        s = c % NS
        st, so = s // 2, (s % 2) * SLOT
        f = Fb + 16 * (t % 3)
        r = []
        for b in range(2):
            r.append(f"ds_read_b128 {vr(f+4*b,4)}, v{vXA+4*st+kk} offset:{so+b*4096}")
            for q in range(2):
                r.append(f"ds_read_b64_tr_b16 {vr(f+8+4*b+2*q,2)}, v{vWA+2*st+b} offset:{so+kk*2048+q*512}")
        return r

    def p1main(vtype):
        a("s_barrier")
        stamp(a, 1)
        for t in range(2):
            for x in reads(t):
                a(x)
        for t in range(32):
            if t % 4 == 2 and t + 2 < 32:
                a("s_barrier")
            a(f"s_waitcnt lgkmcnt({6 if t + 1 < 32 else 0})")
            rr = reads(t + 2) if t + 2 < 32 else []
            f = Fb + 16 * (t % 3)
            for j in range(4):
                cb, tb = j // 2, j % 2
                X, W = f + 4 * tb, f + 8 + 4 * cb
                if vtype:
                    mfma(a, acc + 16 * j, X, W, "0" if t == 0 else None)
                else:
                    mfma(a, acc + 16 * j, W, X, "0" if t == 0 else None)
                for x in rr[(0, 2, 4, 6)[j]:(2, 4, 6, 6)[j]]:
                    a(x)
        stamp(a, 2)
        get_tag(a, vTag, 32)
        for j in range(4):
            cb, tb = j // 2, j % 2
            if j == 0:
                a("s_mov_b32 s59, s63")
            elif j == 1:
                a("s_add_u32 s59, s63, s65")
            elif j == 2:
                a("s_lshl_b32 s60, s64, 1")
                a("s_add_u32 s63, s63, s60")
                a("s_mov_b32 s59, s63")
            else:
                a("s_add_u32 s59, s63, s65")
            a("s_add_u32 s60, s59, s64")
            for hf in range(2):
                A0, r = acc + 16 * j + 8 * hf, Fb + 8 * j + 4 * hf
                if not vtype:
                    for i in range(0, 8, 2):
                        a(f"v_pk_mul_f32 {vr(A0+i,2)}, {vr(A0+i,2)}, s[66:67]")
                for i in range(4):
                    a(f"v_cvt_pk_bf16_f32 v{r+i}, v{A0+2*i}, v{A0+2*i+1}")
                if vtype:
                    a(f"buffer_store_dwordx4 {vr(r,4)}, v9, {sr(28)}, s59 offen offset:{1024+512*hf} sc1")
                else:
                    a(f"buffer_store_dwordx4 {vr(r,4)}, v2, {sr(28)}, s{59+hf} offen sc1")

    p1main(False)
    a("s_branch P1_PUB")
    a("P1_V:")
    p1main(True)
    a("P1_PUB:")
    a(f"ds_write_b32 v31, v30 offset:{L_ISS-L_PUB}")
    a("s_waitcnt lgkmcnt(0)")
    publish(a, 36, 62, vTag, 32)
    a("ds_write_b32 v31, v30")
    stamp(a, 3)
    a("s_branch ATT")

    a("SVC:")
    NR = 4
    raw, gwr, X, GW, SUM, DOT = 4, 20, 24, 56, 64, 68
    a("s_lshl_b32 s56, s52, 3")
    a("s_and_b32 s57, s53, 7")
    a("s_add_u32 s56, s56, s57")
    a("s_lshl_b32 s56, s56, 3")
    a("s_add_u32 s56, s56, s3")
    a("s_lshl_b32 s57, s56, 12")
    a("v_lshlrev_b32 v2, 4, v1")
    a("s_waitcnt lgkmcnt(0)")
    srd(a, 28, pX, 2 * MB)
    srd(a, 32, pGW, 1024)
    for r in range(NR):
        a(f"buffer_load_dwordx4 {vr(raw+4*r,4)}, v2, {sr(28)}, s57 offen offset:{r*1024}")
    a(f"buffer_load_dwordx4 {vr(gwr,4)}, v2, {sr(32)}, 0 offen")
    srd(a, 28, pWS, 2 * MB, WS_HT)
    srd(a, 32, pWS, 8192, WS_G)
    srd(a, 36, pWS, SZ_F, WS_F)
    a("s_mov_b32 s59, 0xffff0000")
    a("s_lshr_b32 s60, s3, 1")
    a("s_lshl_b32 s60, s60, 13")
    a("s_add_u32 s60, s60, 65536")
    a("s_and_b32 s61, s3, 1")
    a("s_lshl_b32 s62, s61, 3")
    a("s_add_u32 s62, s62, s60")
    a("s_lshl_b32 s61, s61, 12")
    a("s_add_u32 s61, s61, s60")
    a("v_lshlrev_b32 v72, 7, v1")
    a("v_and_b32 v73, 7, v1")
    a("v_lshl_add_u32 v72, v73, 4, v72")
    a("v_add_u32 v72, s62, v72")
    a("v_lshrrev_b32 v74, 3, v1")
    a("v_xor_b32 v73, v73, v74")
    a("v_lshlrev_b32 v74, 7, v74")
    a("v_lshl_add_u32 v73, v73, 4, v74")
    a("v_add_u32 v73, s61, v73")
    a("s_waitcnt vmcnt(0)")
    stamp(a, 1)
    for i in range(4):
        a(f"v_lshlrev_b32 v{GW+2*i}, 16, v{gwr+i}")
        a(f"v_and_b32 v{GW+2*i+1}, s59, v{gwr+i}")
    for r in range(NR):
        for i in range(4):
            a(f"v_lshlrev_b32 v{X+8*r+2*i}, 16, v{raw+4*r+i}")
            a(f"v_and_b32 v{X+8*r+2*i+1}, s59, v{raw+4*r+i}")
    T = raw
    for r in range(NR):
        a(f"v_pk_add_f32 {vr(T+4*r,2)}, {vr(X+8*r,2)}, {vr(X+8*r+2,2)}")
        a(f"v_pk_mul_f32 {vr(T+4*r+2,2)}, {vr(X+8*r,2)}, {vr(GW,2)}")
    for e in (2, 4, 6):
        for r in range(NR):
            if e >= 4:
                a(f"v_pk_add_f32 {vr(T+4*r,2)}, {vr(T+4*r,2)}, {vr(X+8*r+e,2)}")
            a(f"v_pk_fma_f32 {vr(T+4*r+2,2)}, {vr(X+8*r+e,2)}, {vr(GW+e,2)}, {vr(T+4*r+2,2)}")
    for r in range(NR):
        a(f"v_add_f32 v{SUM+r}, v{T+4*r}, v{T+4*r+1}")
        a(f"v_add_f32 v{DOT+r}, v{T+4*r+2}, v{T+4*r+3}")

    def reduce(regs):
        for mod in ("row_shr:1 row_mask:0xf", "row_shr:2 row_mask:0xf", "row_shr:4 row_mask:0xf", "row_shr:8 row_mask:0xf",
                    "row_bcast:15 row_mask:0xa", "row_bcast:31 row_mask:0xc"):
            for r in regs:
                a(f"v_add_f32_dpp v{r}, v{r}, v{r} {mod} bank_mask:0xf")

    reduce(list(range(SUM, SUM + NR)))
    for r in range(NR):
        a(f"v_mul_f32 v{SUM+r}, {f32(1/512)}, v{SUM+r}")
    for r in range(NR):
        a(f"v_readlane_b32 s{40+r}, v{SUM+r}, 63")
    for e in range(8):
        for r in range(NR):
            a(f"v_subrev_f32 v{X+8*r+e}, s{40+r}, v{X+8*r+e}")
    for r in range(NR):
        a(f"v_pk_mul_f32 {vr(T+4*r,2)}, {vr(X+8*r,2)}, {vr(X+8*r,2)}")
    for e in (2, 4, 6):
        for r in range(NR):
            a(f"v_pk_fma_f32 {vr(T+4*r,2)}, {vr(X+8*r+e,2)}, {vr(X+8*r+e,2)}, {vr(T+4*r,2)}")
    for r in range(NR):
        a(f"v_add_f32 v{SUM+r}, v{T+4*r}, v{T+4*r+1}")
    reduce(list(range(SUM, SUM + NR)))
    a(f"v_mov_b32 v3, {f32(1e-5)}")
    a(f"s_mov_b32 s60, {f32(1/512)}")
    for r in range(NR):
        a(f"v_fma_f32 v{SUM+r}, v{SUM+r}, s60, v3")
    for r in range(NR):
        a(f"v_rsq_f32 v{SUM+r}, v{SUM+r}")
    a("s_nop 0")
    for r in range(NR):
        a(f"v_readlane_b32 s{40+r}, v{SUM+r}, 63")
    for e in range(8):
        for r in range(NR):
            a(f"v_mul_f32 v{X+8*r+e}, s{40+r}, v{X+8*r+e}")
        for p in range(2):
            a(f"v_cvt_pk_bf16_f32 v{raw+2*e+p}, v{X+16*p+e}, v{X+16*p+8+e}")
        a(f"v_xor_b32 v{GW+e}, {16*e}, v72")
        a(f"ds_write_b64 v{GW+e}, {vr(raw+2*e,2)}")
    a("s_waitcnt lgkmcnt(0)")
    a("s_barrier")
    for j in range(4):
        a(f"ds_read_b128 {vr(X+4*j,4)}, v73 offset:{j*1024}")
    get_tag(a, vTag, 3)
    for j in range(4):
        a(f"s_waitcnt lgkmcnt({4-j})")
        a(f"buffer_store_dwordx4 {vr(X+4*j,4)}, v2, {sr(28)}, s57 offen offset:{j*1024} sc1")
    reduce(list(range(DOT, DOT + NR)))
    for r in range(NR):
        a(f"v_mul_f32 v{DOT+r}, {f32(-LOG2E)}, v{DOT+r}")
    for r in range(NR):
        a(f"v_exp_f32 v{DOT+r}, v{DOT+r}")
    for r in range(NR):
        a(f"v_add_f32 v{DOT+r}, 1.0, v{DOT+r}")
    for r in range(NR):
        a(f"v_rcp_f32 v{DOT+r}, v{DOT+r}")
    a("s_lshl_b32 s60, s56, 4")
    a("v_mov_b32 v3, 0")
    a("s_mov_b32 exec_lo, 0")
    a("s_mov_b32 exec_hi, 0x80000000")
    a(f"buffer_store_dwordx4 {vr(DOT,4)}, v3, {sr(32)}, s60 offen sc1")
    a("s_mov_b64 exec, -1")
    stamp(a, 2)
    a("s_waitcnt vmcnt(0) lgkmcnt(0)")
    a("s_barrier")
    a("s_bitcmp1_b32 s3, 0")
    a("s_cbranch_scc1 L_TAIL")
    a("s_lshl_b32 s60, s56, 2")
    publish(a, 36, 60, vTag, 3)
    stamp(a, 3)
    a("s_branch L_TAIL")

    a("P1_LOAD:")
    vX0, vT0, vT1 = 4, 8, 9
    a("s_sub_u32 s59, s3, 4")
    a("v_lshrrev_b32 v2, 3, v1")
    a("v_and_b32 v3, 7, v1")
    a("v_lshrrev_b32 v20, 4, v1")
    a("v_xor_b32 v3, v3, v20")
    a("v_lshlrev_b32 v2, 10, v2")
    a(f"v_lshl_add_u32 v{vX0}, v3, 4, v2")
    a(f"v_xor_b32 v3, 4, v3")
    a(f"v_lshl_add_u32 v{vX0+1}, v3, 4, v2")
    a(f"v_add_u32 v{vX0+1}, 8192, v{vX0+1}")
    a(f"v_add_u32 v{vX0+2}, 16384, v{vX0}")
    a(f"v_add_u32 v{vX0+3}, 16384, v{vX0+1}")
    gemm_src(a, 3072, vT0, vT1, 2, 3)
    a("s_lshl_b32 s60, s54, 17")
    a("s_lshl_b32 s61, s59, 15")
    a("s_add_u32 s60, s60, s61")
    a("s_mul_i32 s61, s59, 49152")
    a("s_lshl_b32 s62, s55, 8")
    a("s_add_u32 s61, s61, s62")
    a("s_lshl_b32 s62, s59, 12")
    a("s_lshl_b32 s65, s59, 11")
    a("s_waitcnt lgkmcnt(0)")
    srd(a, 28, pX, 2 * MB)
    srd(a, 32, pWQKV, 512 * 3072)

    def dma(c):
        sl = (c % NS) * SLOT
        for t in ["s_and_b32 s58, s58, 7", "s_lshl_b32 s63, s58, 7", "s_add_u32 s63, s63, s60",
                  "s_mul_i32 s64, s58, 196608", "s_add_u32 s64, s64, s61", "s_add_u32 s58, s58, 1"]:
            a(t)
        def dx():
            for n in range(4):
                a(f"s_add_u32 m0, s62, {sl + n*1024}")
                a("s_nop 0")
                a(f"buffer_load_dwordx4 v{vX0+n}, {sr(28)}, s63 offen{NTX} lds")

        def dw():
            for n, v in enumerate((vT0, vT1)):
                for hf in range(2):
                    a(f"s_add_u32 m0, s65, {sl + 16384 + hf*(8192-128) + n*1024}")
                    a("s_nop 0")
                    a(f"buffer_load_dwordx4 v{v}, {sr(32)}, s64 offen offset:{hf*128}{NTW} lds")
        if c == 1 and "wfirst" in OPT:
            dw(); dx()
        else:
            dx(); dw()

    if "p1st" in OPT:
        stamp(a, 3)
    dma(0)
    if "p1st" in OPT:
        stamp(a, 4)
    a(f"s_waitcnt vmcnt({opt('fw', 4)})")
    if "p1st" in OPT:
        stamp(a, 5)
    for c in range(8):
        if c + 1 < 8:
            dma(c + 1)
            a("s_waitcnt vmcnt(8)")
        else:
            a("s_waitcnt vmcnt(0)")
        if "p1st" in OPT and c >= 1:
            stamp(a, 5 + c)
        a("s_barrier")
        if c == 0:
            stamp(a, 1)
    stamp(a, 2)
    if "p1st" in OPT:
        PROF = False
    a("L_TAIL:")
    get_tag(a, vTag, 2)
    srd(a, 28, pWS, 6 * MB, WS_Q)
    srd(a, 36, pWS, SZ_F, WS_F)
    lds_wait(a, "L_ISSW", L_PUB, 4, 3, 4, 62, 2)

    a("ATT:")
    Q, C, S, P, O, Kb, Vb = 4, 8, 24, 56, 64, 80, 88
    vL16, vLV, vK, vV, vOne, vF = 2, 3, 104, 105, 106, 107
    a("s_lshl_b32 s54, s52, 2")
    a("s_and_b32 s55, s53, 3")
    a("s_add_u32 s54, s54, s55")
    a("s_lshr_b32 s55, s53, 2")
    a("s_lshl_b32 s56, s55, 3")
    a("s_add_u32 s56, s56, s3")
    a("s_lshl_b32 s57, s54, 16")
    a("s_lshl_b32 s58, s56, 10")
    a("s_add_u32 s57, s57, s58")
    a("s_lshl_b32 s58, s3, 11")
    a("s_lshl_b32 s59, s54, 17")
    a("s_add_u32 s59, s59, s58")
    a(f"s_add_u32 s59, s59, {WS_KV - WS_Q}")
    a("s_lshl_b32 s60, s52, 5")
    a("s_lshr_b32 s61, s3, 1")
    a("s_add_u32 s60, s60, s61")
    a("s_lshl_b32 s60, s60, 7")
    a(f"s_add_u32 s60, s60, {F_QKV}")
    a("s_lshl_b32 s61, s55, 9")
    a("v_and_b32 v110, 1, v1")
    a("v_add_u32 v110, 1, v110")
    a("v_lshlrev_b32 v110, 15, v110")
    a("v_bfe_u32 v109, v1, 1, 2")
    a("v_lshl_add_u32 v112, v109, 9, v110")
    a("s_and_b32 s63, s3, 3")
    a("s_lshr_b32 s62, s3, 1")
    a("s_sub_u32 s63, s63, s62")
    a("s_lshl_b32 s63, s63, 7")
    a("v_add_u32 v110, s63, v112")
    a("v_cmp_ne_u32 vcc, 0, v109")
    a("s_nop 0")
    a("v_cndmask_b32 v112, v112, v110, vcc")
    a("v_mov_b32 v110, s61")
    a("v_cmp_eq_u32 vcc, 3, v109")
    a("s_nop 0")
    a("v_cndmask_b32 v112, v112, v110, vcc")
    a("v_lshrrev_b32 v3, 5, v1")
    a(f"v_lshlrev_b32 v{vL16}, 4, v1")
    a("v_lshlrev_b32 v3, 8, v3")
    a("v_and_b32 v104, 15, v1")
    a("v_lshl_add_u32 v3, v104, 4, v3")
    a(f"v_add_u32 v{vLV}, 1024, v3")
    a(f"v_mov_b32 v{vK}, v{vL16}")
    a(f"v_mov_b32 v{vV}, v{vLV}")
    a("s_mov_b32 s40, 0x0000ffff")
    a("s_mov_b32 s41, 0x0000ffff")
    a("s_mov_b32 s42, 0")
    a(f"v_and_b32 v{vOne}, 27, v1")
    a(f"v_cmp_eq_u32 vcc, 16, v{vOne}")
    a(f"v_mov_b32 v{vOne}, 0x3f803f80")
    a(f"v_cndmask_b32 v{vOne}, 0, v{vOne}, vcc")
    for i in range(16):
        a(f"v_mov_b32 v{Vb+i}, v{vOne}")
    for i in range(16):
        a(f"v_mov_b32 v{O+i}, 0")
    for i in range(4):
        a(f"v_mov_b32 v{P+4+i}, 0")
    a("s_lshl_b32 s63, s3, 2")
    a(f"s_add_u32 s63, s63, {L_C0F}")
    a("v_mov_b32 v108, s63")
    a("v_mov_b32 v109, 1")
    a(f"v_and_b32 v{vF}, 7, v1")
    a(f"v_lshlrev_b32 v{vF}, 2, v{vF}")
    a(f"v_add_u32 v{vF}, {L_C0F}, v{vF}")
    a("v_and_b32 v111, 3, v1")
    a("v_lshlrev_b32 v111, 2, v111")
    a(f"v_add_u32 v111, {L_KVF}, v111")
    KW, VW = 32768, 65536
    poll(a, "A_POLL", 1, 112, 36, "s60", S, vTag, 62, opt("as", 2), mask=0xc3, save=61)
    stamp(a, 4)
    a("s_mov_b32 m0, s58")
    a("s_setprio 2")
    a(f"buffer_load_dwordx4 v{vL16}, {sr(28)}, s59 offen sc1 lds")
    a(f"buffer_load_dwordx4 {vr(Q,4)}, v{vL16}, {sr(28)}, s57 offen sc1")
    a(f"buffer_load_dwordx4 v{vL16}, {sr(28)}, s59 offen offset:1024 sc1 lds")
    a("s_waitcnt vmcnt(0)")
    a("ds_write_b32 v108, v109")
    lds_spin(a, "A_C0", vF, 0, 1, 110, 62)
    a("s_cmp_lt_u32 s3, 4")
    a("s_cbranch_scc1 A_C12")
    a("s_cmp_eq_u32 s61, 0")
    a("s_cbranch_scc1 A_POLL2_X")
    poll(a, "A_POLL2", 1, 112, 36, "s60", S, vTag, 62, 2)
    a("s_sub_u32 s59, s59, s58")
    a("s_and_b32 s58, s3, 3")
    a("s_lshl_b32 s58, s58, 12")
    a("s_add_u32 s59, s59, s58")
    for c in (1, 2):
        a(f"s_add_u32 m0, s58, {16384*c}")
        a("s_add_u32 s59, s59, 16384")
        for n in range(4):
            a(f"buffer_load_dwordx4 v{vL16}, {sr(28)}, s59 offen offset:{1024*n} sc1 lds")
    a("s_waitcnt vmcnt(0)")
    a(f"ds_write_b32 v108, v109 offset:{L_C1F-L_C0F-16}")
    a("A_C12:")
    stamp(a, 5)

    def rdK(buf, off):
        a(f"ds_read_b128 {vr(Kb+4*buf,4)}, v{vK} offset:{off}")

    def rdV(buf, off):
        a("s_mov_b64 exec, s[40:41]")
        a(f"ds_read_b128 {vr(Vb+8*buf,4)}, v{vV} offset:{off}")
        a(f"ds_read_b128 {vr(Vb+8*buf+4,4)}, v{vV} offset:{off+512}")
        a("s_mov_b64 exec, -1")

    def setC(src):
        a(f"v_mov_b32 v{src+1}, v{src}")
        a(f"v_permlane32_swap_b32 v{src}, v{src+1}")
        a(f"v_max_f32 v{src}, v{src}, v{src+1}")
        a(f"v_sub_f32 v{C}, 0, v{src}")
        for i in range(1, 16):
            a(f"v_mov_b32 v{C+i}, v{C}")

    srd(a, 28, pWS, 2 * MB, WS_O)
    rdK(0, 0)
    rdK(1, 2048)
    rdV(0, 0)
    a("s_waitcnt lgkmcnt(3)")
    mfma(a, S, Kb, Q, "0")
    a(f"v_max3_f32 v{S}, v{S}, v{S+1}, v{S+2}")
    for i in range(3, 15, 2):
        a(f"v_max3_f32 v{S}, v{S}, v{S+i}, v{S+i+1}")
    a(f"v_max_f32 v{S}, v{S}, v{S+15}")
    setC(S)
    mfma(a, S, Kb, Q, C)
    a("s_mov_b32 s43, 16384")
    a("s_mov_b32 s44, 8")
    a(f"s_mov_b32 s45, {(1<<8)|(1<<6)|(1<<PR1)|(1<<PR0)}")

    def tile(i):
        b = i % 2
        Sc, Sn = S + 16 * b, S + 16 * (1 - b)
        e = lambda k: a(f"v_exp_f32 v{Sc+k}, v{Sc+k}")
        c = lambda k: a(f"v_cvt_pk_bf16_f32 v{P+k}, v{Sc+2*k}, v{Sc+2*k+1}")
        e(0); e(1)
        mfma(a, O, Vb + 8 * (1 - b) + 4, P + 4)
        for k in range(2, 8):
            e(k)
        a("s_waitcnt lgkmcnt(2)")
        mfma(a, Sn, Kb + 4 * (1 - b), Q, C)
        if i == 6:
            a("s_bitcmp1_b32 s45, s44")
            a(f"v_add_u32 v{vK}, s43, v{vL16}")
            a("s_cbranch_scc1 A_EVENT")
            a("A_BACK:")
        rdK(b, ((i + 2) % 8) * 2048)
        for k in range(4):
            c(k)
        for k in range(8, 12):
            e(k)
        a("s_waitcnt lgkmcnt(1)")
        mfma(a, O, Vb + 8 * b, P)
        if i == 7:
            a(f"v_add_u32 v{vV}, s43, v{vLV}")
            a("s_add_u32 s43, s43, 16384")
            a("s_and_b32 s43, s43, 0x1ffff")
        rdV(1 - b, ((i + 1) % 8) * 2048)
        for k in range(12, 16):
            e(k)
        if i == 7:
            a("s_sub_u32 s44, s44, 1")
            a("s_cmp_lg_u32 s44, 0")
        for k in range(4, 8):
            c(k)

    a("s_nop 7")
    a.raw(".p2align 6")
    a("A_LOOP:")
    for i in range(8):
        tile(i)
    a("s_cbranch_scc1 A_LOOP")
    stamp(a, 7)
    a("s_nop 1")
    mfma(a, O, Vb + 8 + 4, P + 4)
    a("s_waitcnt lgkmcnt(0)")
    a(f"v_mov_b32 v{S+2}, {f32(2.0**30)}")
    a(f"v_mov_b32 v{S+3}, {f32(2.0**120)}")
    a("s_lshr_b32 s59, s56, 1")
    a("s_lshl_b32 s59, s59, 2")
    a("s_and_b32 s60, s53, 3")
    a("s_add_u32 s59, s59, s60")
    a("s_lshl_b32 s59, s59, 3")
    a("s_add_u32 s59, s59, s52")
    a("s_lshl_b32 s59, s59, 1")
    a("s_and_b32 s60, s3, 1")
    a("s_add_u32 s59, s59, s60")
    a("s_lshl_b32 s59, s59, 7")
    a(f"s_add_u32 s59, s59, {F_O}")
    a(f"v_rcp_f32 v{S}, v{O+8}")
    a(f"v_max3_f32 v{S+1}, |v{O}|, |v{O+1}|, |v{O+2}|")
    a(f"v_max3_f32 v{S+1}, v{S+1}, |v{O+3}|, |v{O+4}|")
    a(f"v_max3_f32 v{S+1}, v{S+1}, |v{O+5}|, |v{O+6}|")
    a(f"v_max_f32 v{S+1}, v{S+1}, |v{O+7}|")
    a(f"v_cmp_nle_f32 vcc, v{O+8}, v{S+2}")
    a(f"v_cmp_nle_f32 s[46:47], v{S+1}, v{S+3}")
    a("s_or_b64 vcc, vcc, s[46:47]")
    a("s_cmp_lg_u32 s42, 0")
    a("s_cbranch_scc1 A_OUT")
    a("s_cbranch_vccnz A_SLOW")
    a("A_OUT:")
    a(f"ds_write_b32 v108, v109 offset:{L_DONE-L_C0F}")
    for i in range(8):
        a(f"v_mul_f32 v{O+i}, v{O+i}, v{S}")
    for i in range(4):
        a(f"v_cvt_pk_bf16_f32 v{P+i}, v{O+2*i}, v{O+2*i+1}")
    a(f"buffer_store_dwordx4 {vr(P,4)}, v{vL16}, {sr(28)}, s57 offen sc1")
    publish(a, 36, 59, vTag, 110)
    stamp(a, 8)
    if "p1st" in OPT:
        PROF = True
    a("s_cmp_lt_u32 s3, 4")
    a("s_cbranch_scc1 P3_LOAD")
    endprof(a)
    a("END:")
    a("s_endpgm")
    a("A_EVENT:")
    a("s_cmp_eq_u32 s44, 8")
    a("s_cbranch_scc0 A_EV1")
    if "evst" in OPT:
        stamp(a, 1)
    lds_spin(a, "A_KVW1", 111, L_C1F - L_KVF, 1, 110, 62, 2)
    if "evst" in OPT:
        stamp(a, 3)
    a("s_branch A_BACK")
    a("A_EV1:")
    a("s_cmp_eq_u32 s44, 6")
    a("s_cbranch_scc0 A_EV2")
    if "evst" in OPT:
        stamp(a, 4)
    lds_spin(a, "A_KVW2", 111, 0, 1, 110, 62, 2)
    if "p1st" not in OPT:
        stamp(a, 6)
    a("s_branch A_BACK")
    a("A_EV2:")
    a("s_setprio 1")
    a(f"s_cmp_eq_u32 s44, {PR1}")
    a("s_cbranch_scc1 A_BACK")
    a("s_setprio 0")
    a("s_branch A_BACK")
    a("A_SLOW:")
    a("s_mov_b32 s42, 1")
    a("s_mov_b32 s45, 0")
    a(f"v_mov_b32 v{vK}, v{vL16}")
    a(f"v_mov_b32 v{P}, 0xff800000")
    a("s_mov_b32 s44, 64")
    a("A_SLOWL:")
    rdK(0, 0)
    a("s_waitcnt lgkmcnt(0)")
    mfma(a, S, Kb, Q, "0")
    a(f"v_add_u32 v{vK}, 2048, v{vK}")
    a("s_nop 15")
    for i in range(0, 16, 2):
        a(f"v_max3_f32 v{P}, v{P}, v{S+i}, v{S+i+1}")
    a("s_sub_u32 s44, s44, 1")
    a("s_cmp_lg_u32 s44, 0")
    a("s_cbranch_scc1 A_SLOWL")
    setC(P)
    a(f"v_mov_b32 v{vK}, v{vL16}")
    a(f"v_mov_b32 v{vV}, v{vLV}")
    for i in range(16):
        a(f"v_mov_b32 v{O+i}, 0")
    for i in range(4):
        a(f"v_mov_b32 v{P+4+i}, 0")
    for i in range(8):
        a(f"v_mov_b32 v{Vb+8+i}, v{vOne}")
    rdK(0, 0)
    rdK(1, 2048)
    rdV(0, 0)
    a("s_waitcnt lgkmcnt(3)")
    mfma(a, S, Kb, Q, C)
    a("s_mov_b32 s43, 16384")
    a("s_mov_b32 s44, 8")
    a("s_nop 15")
    a("s_branch A_LOOP")

    a("P3_LOAD:")
    vT0, vT1 = 4, 5
    gemm_src(a, 1024, vT0, vT1, 6, 7)
    a("s_lshl_b32 s54, s52, 2")
    a("s_lshr_b32 s55, s53, 3")
    a("s_add_u32 s54, s54, s55")
    a("s_and_b32 s56, s53, 7")
    a("s_lshl_b32 s57, s55, 1")
    a("s_add_u32 s57, s57, s56")
    a("s_lshl_b32 s58, s3, 14")
    a("s_lshl_b32 s59, s56, 7")
    a("s_add_u32 s58, s58, s59")
    a("s_lshl_b32 s59, s3, 16")
    a("s_lshl_b32 s60, s54, 11")
    a("s_add_u32 s59, s59, s60")
    a("s_lshl_b32 s60, s3, 12")
    srd(a, 32, pWO, 512 * 1024)
    a("s_lshl_b32 s61, s54, 2")
    a("s_add_u32 s61, s61, s3")
    a("s_lshl_b32 s61, s61, 11")
    a(f"s_add_u32 s61, s61, {F_O}")
    lds_spin(a, "P3_DONE", vF, L_DONE - L_C0F, 1, 110, 62, 2)
    stamp(a, 9)
    for c in range(8):
        a(f"s_add_u32 s63, s57, {c}")
        a("s_and_b32 s63, s63, 7")
        a("s_lshl_b32 s63, s63, 16")
        a(f"s_add_u32 m0, s60, {c*16384}")
        a("s_add_u32 s63, s63, s58")
        a(f"buffer_load_dwordx4 v{vT0}, {sr(32)}, s63 offen lds")
        a(f"s_add_u32 m0, s60, {c*16384 + 1024}")
        a("s_nop 0")
        a(f"buffer_load_dwordx4 v{vT1}, {sr(32)}, s63 offen lds")
    a("v_and_b32 v6, 15, v1")
    a("v_lshlrev_b32 v6, 7, v6")
    poll(a, "P3_POLL", 1, 6, 36, "s61", 8, vTag, 62, 2)
    stamp(a, 10)
    for c in range(8):
        a(f"s_add_u32 s63, s57, {c}")
        a("s_and_b32 s63, s63, 7")
        a("s_lshl_b32 s63, s63, 18")
        a(f"s_add_u32 m0, s60, {c*16384 + 2048}")
        a("s_add_u32 s63, s63, s59")
        a(f"buffer_load_dwordx4 v{vL16}, {sr(28)}, s63 offen sc1 lds")
        a(f"buffer_load_dwordx4 v{vL16}, {sr(28)}, s63 offen offset:1024 sc1 lds")
        if c >= 3 and c % 2 == 1:
            a("s_waitcnt vmcnt(4)")
            a("s_barrier")
    a("s_waitcnt vmcnt(0)")
    a("s_barrier")
    stamp(a, 11)
    endprof(a)
    a("s_endpgm")

    a("P1_M:")
    PD = 3
    vT0, vT1, vD0, vD1, vR0, vR1 = 4, 5, 6, 7, 8, 9
    Tf, Df, acc, tmp = 12, 28, 64, 128
    vKF = 136
    a("s_sub_u32 s48, s3, 8")
    a("s_lshl_b32 s49, s48, 13")
    a(f"s_add_u32 s49, s49, {MREG}")
    a("v_mov_b32 v10, s49")
    a("v_mov_b32 v4, 0")
    a("v_mov_b32 v5, 0")
    for i in range(4):
        a(f"v_mov_b32 v{12+i}, 0")
    a("ds_write_b128 v10, v[12:15] offset:6144")
    a("ds_write_b128 v10, v[12:15] offset:6160")
    a("v_min_u32 v3, 35, v1")
    a("v_lshlrev_b32 v3, 2, v3")
    a(f"v_add_u32 v3, {LF}, v3")
    a("ds_write_b32 v3, v12")
    a(f"v_mov_b32 v3, {F_E}")
    a("s_mov_b32 s60, 0x9e3779b1")
    a(f"v_mov_b32 v6, {L_TAG}")
    a("s_waitcnt lgkmcnt(0)")
    srd(a, 36, pWS, SZ_F, WS_F)
    a(f"buffer_load_dwordx2 {vr(vTag,2)}, v3, {sr(36)}, 0 offen sc1")
    if "nowt" not in OPT:
        a("s_cmp_lt_u32 s53, 24")
        a("s_cbranch_scc1 SVC_W2")
        a("s_and_b32 s56, s53, 7")
        a("s_lshl_b32 s56, s56, 2")
        a("s_add_u32 s56, s56, s48")
        a("s_mul_i32 s57, s56, 43")
        a("s_lshr_b32 s57, s57, 8")
        a("s_mul_i32 s58, s57, 6")
        a("s_sub_u32 s58, s56, s58")
        a("s_lshl_b32 s57, s57, 1")
        a("s_add_u32 s57, s57, s58")
        a("s_add_u32 s57, s57, 1")
        a("s_and_b32 s57, s57, 7")
        a("s_mul_i32 s57, s57, 196608")
        a("s_and_b32 s59, s52, 1")
        a("s_mul_i32 s59, s59, 6")
        a("s_add_u32 s58, s58, s59")
        a("s_lshl_b32 s58, s58, 8")
        a("s_add_u32 s57, s57, s58")
        srd(a, 32, pWQKV, 512 * 3072)
        a("v_mul_u32_u24 v7, 3072, v1")
        a("s_cmp_ge_u32 s56, 24")
        a("s_cbranch_scc1 SVC_W2")
        a(f"buffer_load_dword v8, v7, {sr(32)}, s57 offen{NTW}")
        a(f"buffer_load_dword v9, v7, {sr(32)}, s57 offen offset:128{NTW}")
        a("SVC_W2:")
    a("s_and_b32 s54, s52, 1")
    a("s_lshl_b32 s54, s54, 2")
    a("s_and_b32 s55, s53, 3")
    a("s_add_u32 s54, s54, s55")
    a("s_lshr_b32 s55, s53, 2")
    a("s_lshr_b32 s56, s52, 1")
    a("s_mul_i32 s56, s56, 11")
    a("s_add_u32 s68, s56, 12")
    a("s_lshr_b32 s68, s68, 1")
    a("s_add_u32 s56, s56, 1")
    a("s_lshr_b32 s56, s56, 1")
    a("s_add_u32 s56, s56, s55")
    a("s_and_b32 s50, s48, 1")
    a("s_lshr_b32 s51, s48, 1")
    a("v_lshlrev_b32 v2, 4, v1")
    a("v_lshrrev_b32 v10, 5, v1")
    a("v_and_b32 v11, 31, v1")
    a("v_lshlrev_b32 v11, 4, v11")
    a("v_lshl_add_u32 v3, v10, 13, v11")
    a("s_lshl_b32 s57, s48, 2")
    a(f"s_add_u32 s57, s57, {L_KVF}")
    a(f"v_mov_b32 v{vKF}, s57")
    a(f"v_mov_b32 v{vKF+1}, 1")
    srd(a, 28, pW1, 2048 * 2752)
    srd(a, 32, pWS, 2 * MB, WS_HT)
    srd(a, 40, pWS, 4 * MB, WS_KV)
    a("s_waitcnt vmcnt(0)")
    a(f"v_mul_lo_u32 v{vTag}, v{vTag}, s60")
    a(f"v_add_u32 v{vTag+1}, 0x7f4a7c15, v{vTag+1}")
    a(f"v_add_u32 v{vTag}, 1, v{vTag}")
    a(f"ds_write_b64 v6, {vr(vTag,2)}")
    a("s_waitcnt lgkmcnt(0)")
    a("s_barrier")
    a("s_setprio 3")
    a("s_cmp_ge_u32 s53, 24")
    a("s_cbranch_scc1 M_SVC")
    for c in range(7):
        a("s_barrier")
    stamp(a, 1)

    def htpoll(lab):
        a("s_lshl_b32 s61, s48, 9")
        a("v_lshlrev_b32 v10, 3, v1")
        poll(a, lab, 1, 10, 36, "s61", tmp, vTag, 62, 16)

    def kvrest(lab):
        lds_wait(a, lab + "D", L_C0F, 8, tmp + 4, tmp, 62, 2)
        a("s_lshl_b32 s44, s52, 5")
        a("s_add_u32 s44, s44, s48")
        a("s_lshl_b32 s44, s44, 7")
        a(f"s_add_u32 s44, s44, {F_QKV + 32768}")
        a(f"v_and_b32 v{tmp+4}, 7, v1")
        a(f"v_lshlrev_b32 v{tmp+4}, 9, v{tmp+4}")
        a(f"v_bfe_u32 v{tmp+5}, v1, 3, 1")
        a(f"v_lshl_add_u32 v{tmp+4}, v{tmp+5}, 15, v{tmp+4}")
        poll(a, lab + "C", 1, tmp + 4, 36, "s44", tmp, vTag, 62, 2)
        a("s_lshl_b32 s44, s52, 2")
        a("s_and_b32 s45, s53, 3")
        a("s_add_u32 s44, s44, s45")
        a("s_lshl_b32 s44, s44, 17")
        a("s_lshl_b32 s46, s48, 12")
        a("s_lshr_b32 s45, s53, 2")
        a("s_min_u32 s45, s45, 4")
        a("s_add_u32 s45, s45, 2")
        a("s_lshl_b32 s45, s45, 14")
        for j in range(5):
            a("s_add_u32 s45, s45, 16384")
            a("s_cmp_ge_u32 s45, 0x20000")
            a("s_cselect_b32 s45, 49152, s45")
            a("s_add_u32 s47, s45, s46")
            a("s_mov_b32 m0, s47")
            a("s_add_u32 s47, s47, s44")
            for n in range(4):
                a(f"buffer_load_dwordx4 v2, {sr(40)}, s47 offen offset:{n*1024} sc1 lds")

    a("s_cmp_ge_u32 s56, s68")
    a("s_cbranch_scc1 M_IDLE")
    a(f"s_mul_i32 s57, s48, {512*2752}")
    a("s_lshl_b32 s58, s56, 7")
    a("s_add_u32 s57, s57, s58")
    a("s_lshl_b32 s58, s48, 19")
    a("s_lshl_b32 s59, s54, 10")
    a("s_add_u32 s58, s58, s59")
    a("s_lshl_b32 s60, s51, 6")
    a("s_lshl_b32 s61, s50, 9")
    gemm_src(a, 2752, vT0, vT1, 10, 11)
    a(f"v_xor_b32 v{vD0}, s61, v3")
    a(f"v_xor_b32 v{vD1}, 512, v{vD0}")
    G1 = opt("g1_", 8)
    g1 = Gemm(a, 32, PD, 28, 32, 57, 58, 49, 2752, 16384, True, vT0, vT1, vD0, vD1, vR0, vR1, 512, Tf, Df, acc, " sc1", 63, G1)
    a("s_and_b32 s63, s53, 3")
    a(f"s_mul_i32 s63, s63, {max(1, G1//4)}")
    a(f"s_mul_i32 s62, s55, {max(1, G1//6)}")
    a("s_add_u32 s63, s63, s62")
    gemm_rd(a, 8, vR0, vR1, 49, 60, 10, 11)
    GATE = opt("gate", 3)
    if GATE:
        lds_wait(a, "M_GATE", (L_ISS, L_PUB, L_C0F)[GATE - 1], 4 if GATE < 3 else 8, 10, 11, 62, 2)
    if "kvpre" in OPT:
        htpoll("M_HT")
        kvrest("M_KV0")
        g1.log.extend([("K", 0)] * 20)
    else:
        htpoll("M_HT")
    stamp(a, 2)
    g1.pro_T()
    g1.pro_D()
    KVS = opt("kvs", 0)

    def hook_kv():
        stamp(a, 3)
        a("s_setprio 3")
        kvrest("M_KV1")
        a("s_setprio 0")
        g1.log.extend([("K", 0)] * 20)
        stamp(a, 4)

    def hook_kvf():
        g1.wait_for([("K", 0)])
        a(f"ds_write_b32 v{vKF}, v{vKF+1}")

    if "kvpre" in OPT:
        hook_kvf()
        stamp(a, 3)
        g1.main({16: lambda: stamp(a, 4)})
    else:
        g1.main({KVS: hook_kv, KVS + 3: hook_kvf})
    stamp(a, 5)
    srd(a, 28, pB1, 2752)
    srd(a, 32, pWS, SZ_U, WS_U)
    a("s_lshl_b32 s61, s56, 7")
    a("s_add_u32 s61, s61, s60")
    a("v_lshrrev_b32 v10, 5, v1")
    a("v_lshlrev_b32 v10, 3, v10")
    for g in range(4):
        a(f"buffer_load_dwordx2 {vr(Df+2*g,2)}, v10, {sr(28)}, s61 offen offset:{16*g}")
    mreduce(a, "M1", acc, 49, 0, 10, 11, tmp, Df + 16, 62)
    a("s_mov_b32 s61, 0xffff0000")
    a("s_waitcnt vmcnt(0)")
    for i in range(8):
        a(f"v_lshlrev_b32 v{acc+16+2*i}, 16, v{Df+i}")
        a(f"v_and_b32 v{acc+16+2*i+1}, s61, v{Df+i}")
    for i in range(0, 16, 2):
        a(f"v_pk_add_f32 {vr(acc+i,2)}, {vr(acc+i,2)}, {vr(acc+16+i,2)}")
    gelu(a, acc, acc + 16, acc + 32, 16, 61)
    for i in range(8):
        a(f"v_cvt_pk_bf16_f32 v{Tf+i}, v{acc+2*i}, v{acc+2*i+1}")
    a("s_lshl_b32 s61, s56, 16")
    a("s_lshl_b32 s62, s51, 15")
    a("s_add_u32 s61, s61, s62")
    a("s_add_u32 s61, s61, s59")
    a("s_add_u32 s62, s61, 16384")
    a(f"buffer_store_dwordx4 {vr(Tf,4)}, v{vD0}, {sr(32)}, s61 offen sc1")
    a(f"buffer_store_dwordx4 {vr(Tf+4,4)}, v{vD0}, {sr(32)}, s62 offen sc1")
    a("s_lshl_b32 s61, s56, 2")
    a("s_add_u32 s61, s61, s48")
    a("s_lshl_b32 s61, s61, 3")
    a("s_add_u32 s61, s61, s59")
    a("s_lshl_b32 s61, s61, 4")
    a(f"s_add_u32 s61, s61, {F_U}")
    publish(a, 36, 61, vTag, 10)
    a("s_branch M_2")

    a("M_SVC:")
    stamp(a, 1)
    a("s_and_b32 s57, s53, 7")
    a("s_lshl_b32 s58, s48, 5")
    a("s_add_u32 s57, s57, s58")
    a("s_sub_u32 s58, s56, s55")
    a("s_lshl_b32 s58, s58, 7")
    a(f"s_mul_i32 s59, s57, {16*2752}")
    a("s_add_u32 s58, s58, s59")
    a("s_lshl_b32 s59, s57, 14")
    a("s_and_b32 s60, s52, 1")
    a("s_lshl_b32 s60, s60, 12")
    a("s_add_u32 s59, s59, s60")
    a("v_lshrrev_b32 v4, 3, v1")
    a("v_mul_u32_u24 v4, 2752, v4")
    a("v_and_b32 v5, 7, v1")
    a("v_min_u32 v5, 6, v5")
    a("v_lshl_add_u32 v4, v5, 7, v4")
    a(f"v_add_u32 v5, {8*2752}, v4")
    a("v_lshrrev_b32 v6, 5, v1")
    a("v_lshlrev_b32 v6, 13, v6")
    a("v_and_b32 v7, 31, v1")
    a("v_lshl_add_u32 v6, v7, 7, v6")

    def tw(g):
        a(f"buffer_load_dword v{Tf+3*g}, v4, {sr(28)}, s58 offen{NTM}")
        a(f"buffer_load_dword v{Tf+3*g+1}, v5, {sr(28)}, s58 offen{NTM}")
        a(f"s_add_u32 s58, s58, {128*2752}")

    def th(g):
        a(f"buffer_load_dword v{Tf+3*g+2}, v6, {sr(32)}, s59 offen sc1")
        a(f"s_add_u32 s59, s59, {8*16384}")

    NE, NW = opt("ne", 0), opt("nw", 1)
    for g in range(NE):
        tw(g)
    a("s_barrier")
    stamp(a, 2)
    for g in range(NE, NW):
        tw(g)
    a("s_waitcnt vmcnt(0)")
    a(f"ds_write_b32 v{vKF}, v{vKF+1} offset:{L_PUB-L_KVF}")
    stamp(a, 3)
    a("M_IDLE:")
    kvrest("M_KV2")
    a("s_waitcnt vmcnt(0)")
    a(f"ds_write_b32 v{vKF}, v{vKF+1}")
    stamp(a, 4)
    a("s_cmp_lt_u32 s53, 24")
    a("s_cbranch_scc1 M_IDLE2")
    htpoll("M_HT2")
    for g in range(4):
        th(g)
        if g + NW < 4:
            tw(g + NW)
    stamp(a, 5)
    srd(a, 28, pW2, 1376 * 4096)
    a("s_and_b32 s57, s53, 7")
    a("s_lshl_b32 s57, s57, 2")
    a("s_add_u32 s57, s57, s48")
    a(f"s_mul_i32 s58, s57, {43*4096}")
    a("s_lshl_b32 s59, s52, 9")
    a("s_add_u32 s58, s58, s59")
    a("v_lshrrev_b32 v10, 2, v1")
    a("v_lshlrev_b32 v10, 12, v10")
    a("v_and_b32 v11, 3, v1")
    a("v_lshl_add_u32 v10, v11, 7, v10")
    for j in range(3):
        a(f"buffer_load_dword v{Tf+12+j}, v10, {sr(28)}, s58 offen{NTM}")
        a("s_add_u32 s58, s58, 65536")
    a("s_waitcnt vmcnt(0)")
    a("M_IDLE2:")
    srd(a, 32, pWS, SZ_U, WS_U)
    a("M_2:")
    stamp(a, 6)
    srd(a, 28, pW2, 1376 * 4096)
    a("s_and_b32 s54, s53, 7")
    a("s_lshr_b32 s55, s53, 3")
    a("s_lshl_b32 s56, s52, 2")
    a("s_add_u32 s56, s56, s55")
    a(f"s_mul_i32 s57, s48, {22*16*4096}")
    a("s_lshl_b32 s58, s56, 7")
    a("s_add_u32 s57, s57, s58")
    a(f"s_mul_i32 s58, s48, {22*16384}")
    a("s_lshl_b32 s59, s54, 10")
    a("s_add_u32 s58, s58, s59")
    a("s_lshl_b32 s60, s50, 6")
    a("s_lshl_b32 s61, s51, 9")
    gemm_src(a, 4096, vT0, vT1, 10, 11)
    a(f"v_xor_b32 v{vD0}, s61, v3")
    a(f"v_xor_b32 v{vD1}, 512, v{vD0}")
    g2 = Gemm(a, 22, PD, 28, 32, 57, 58, 49, 4096, 16384, False, vT0, vT1, vD0, vD1, vR0, vR1, 1024, Tf, Df, acc, " sc1", 63, opt("g2_", 4))
    a("s_add_u32 s63, s55, s54")
    g2.pro_T()
    gemm_rd(a, 4, vR0, vR1, 49, 60, 10, 11)
    a("s_mul_i32 s61, s48, 11")
    a("s_lshr_b32 s61, s61, 1")
    a("s_lshl_b32 s61, s61, 5")
    a("s_add_u32 s61, s61, s59")
    a("s_lshl_b32 s61, s61, 4")
    a(f"s_add_u32 s61, s61, {F_U}")
    a("v_min_u32 v10, 23, v1")
    a("v_lshlrev_b32 v10, 7, v10")
    poll(a, "M_U", 1, 10, 36, "s61", tmp, vTag, 62, 8)
    stamp(a, 7)
    g2.pro_D()
    g2.main()
    stamp(a, 8)
    srd(a, 28, pWO, 512 * 1024)
    a("s_lshl_b32 s61, s53, 2")
    a("s_add_u32 s61, s61, s48")
    a("s_lshl_b32 s61, s61, 12")
    a("v_lshlrev_b32 v10, 6, v1")
    a(f"buffer_load_dword v{Df+3}, v10, {sr(28)}, s61 offen")
    srd(a, 28, pB2, 4096)
    srd(a, 32, pWS, 8192, WS_G)
    a("s_lshl_b32 s61, s56, 7")
    a("s_add_u32 s61, s61, s60")
    a("s_lshl_b32 s62, s61, 1")
    a("v_and_b32 v10, 31, v1")
    a("v_lshlrev_b32 v11, 2, v10")
    a("v_lshlrev_b32 v10, 1, v10")
    a(f"buffer_load_ushort v{Df}, v10, {sr(28)}, s61 offen")
    a(f"buffer_load_dword v{Df+1}, v11, {sr(32)}, s62 offen sc1")
    mreduce(a, "M2", acc, 49, 16, 10, 11, tmp, Df + 16, 62)
    a("s_waitcnt vmcnt(0)")
    G, Y = Df + 1, acc
    a(f"v_lshlrev_b32 v{Df}, 16, v{Df}")
    a(f"v_sub_f32 v{Df+2}, 1.0, v{G}")
    a(f"v_mul_f32 v{Df}, v{Df}, v{Df+2}")
    for i in range(16):
        a(f"v_fma_f32 v{Y+i}, v{Y+i}, v{Df+2}, v{Df}")
    stamp(a, 9)

    vR, vO = 4, 5
    Wf, Of, A3 = 96, 128, 80
    a("s_lshl_b32 s60, s51, 6")
    gemm_rd(a, 4, vR, None, None, 60, 10, 11)
    a("s_lshl_b32 s60, s50, 10")
    a("s_add_u32 s60, s60, 2048")
    a(f"v_add_u32 v{vO}, s60, v2")
    a(f"v_add_u32 v6, 65536, v{vR}")
    a(f"v_add_u32 v7, 65536, v{vO}")
    srd(a, 28, pOUT, 2 * MB)
    a("v_and_b32 v9, 31, v1")
    a("v_lshlrev_b32 v9, 10, v9")
    a("v_lshrrev_b32 v10, 5, v1")
    a("v_lshl_add_u32 v9, v10, 4, v9")
    a("s_lshl_b32 s57, s56, 16")
    a("s_lshl_b32 s58, s50, 15")
    a("s_add_u32 s57, s57, s58")
    a("s_lshl_b32 s58, s54, 7")
    a("s_add_u32 s57, s57, s58")
    a("s_lshl_b32 s58, s51, 6")
    a("s_add_u32 s57, s57, s58")
    a("s_lshl_b32 s58, s2, 4")
    a("s_add_u32 s58, s58, s48")
    a("s_cmp_lg_u32 s58, 0")
    a("s_cbranch_scc1 M_NOE")
    a("v_lshrrev_b32 v10, 4, v1")
    a("v_lshlrev_b32 v10, 13, v10")
    a("v_and_b32 v11, 15, v1")
    a("v_lshl_add_u32 v10, v11, 8, v10")
    for t in range(3):
        a(f"s_mov_b32 s58, {F_QKV + 32768*t}")
        poll(a, f"M_E{t}", 1, 10, 36, "s58", tmp, vTag, 62, 8)
    a("v_lshlrev_b32 v10, 5, v1")
    poll(a, "M_E3", 1, 10, 36, "0", tmp, vTag, 62, 8)
    a("v_lshlrev_b32 v10, 20, v1")
    a(f"s_mov_b32 s58, {F_E}")
    a(f"buffer_store_dwordx2 {vr(vTag,2)}, v10, {sr(36)}, s58 offen sc1")
    a("M_NOE:")

    def rd3(t):
        off = (t % 16) * 4096
        r, o = (vR, vO) if t < 16 else (6, 7)
        b = t % 8
        a(f"ds_read_b64_tr_b16 {vr(Wf+4*b,2)}, v{r} offset:{off}")
        a(f"ds_read_b64_tr_b16 {vr(Wf+4*b+2,2)}, v{r} offset:{off+1024}")
        a(f"ds_read_b128 {vr(Of+4*b,4)}, v{o} offset:{off}")

    for c in range(4):
        a("s_barrier")
        if c in (0, 3):
            stamp(a, 10 + c // 3)
        for j in range(4):
            rd3(8 * c + j)
        for j in range(8):
            t = 8 * c + j
            if j + 4 < 8:
                rd3(t + 4)
            a(f"s_waitcnt lgkmcnt({3*min(4, 7-j)})")
            mfma(a, A3, Wf + 4 * j, Of + 4 * j, "0" if t == 0 else None)
    stamp(a, 12)
    for i in range(16):
        a(f"v_fmac_f32 v{Y+i}, v{A3+i}, v{G}")
    for i in range(8):
        a(f"v_cvt_pk_bf16_f32 v{Tf+i}, v{Y+2*i}, v{Y+2*i+1}")
    for p in range(2):
        a(f"v_permlane32_swap_b32 v{Tf+4*p}, v{Tf+4*p+2}")
        a(f"v_permlane32_swap_b32 v{Tf+4*p+1}, v{Tf+4*p+3}")
        a(f"buffer_store_dwordx4 {vr(Tf+4*p,4)}, v9, {sr(28)}, s57 offen offset:{32*p}")
    endprof(a)
    a("s_endpgm")
    return dict(name=nm, vgpr=168, grid=256, block=768, lds=163840)


def build(path, verbose=False, aslist=False):
    ref = open("cdna_kernels/" + NAME + ".s.ref").read().split("\n")
    hdr = [l for l in ref if l.startswith(";") and "@launch" not in l and "Override launch" not in l and "grid=ceil" not in l]
    a = Asm()
    i = kernel(a)
    a.fix(verbose)
    s = "\n".join(hdr) + "\n"
    if aslist:
        s += f"; @launch kernel={i['name']} grid=({i['grid']},1,1) block=({i['block']},1,1) lds={i['lds']}\n"
    else:
        s += f"; @launch grid=({i['grid']},1,1) block=({i['block']},1,1) lds={i['lds']}\n"
    s += '.amdgcn_target "amdgcn-amd-amdhsa--gfx950"\n.text\n'
    s += a.text()
    s += '.section .rodata,"a"\n'
    s += f""".p2align 6
.amdhsa_kernel {i['name']}
  .amdhsa_next_free_vgpr {i['vgpr']}
  .amdhsa_next_free_sgpr {102 if PROF or opt('cal', -1) >= 0 else 70}
  .amdhsa_accum_offset {i['vgpr']}
  .amdhsa_group_segment_fixed_size 0
  .amdhsa_kernarg_size 96
  .amdhsa_user_sgpr_count 2
  .amdhsa_user_sgpr_kernarg_segment_ptr 1
  .amdhsa_system_sgpr_workgroup_id_x 1
.end_amdhsa_kernel
"""
    open(path, "w").write(s)


if __name__ == "__main__":
    out = sys.argv[1] if len(sys.argv) > 1 and not sys.argv[1][0] in "-+" else "cdna_kernels/" + NAME + ".s"
    PROF = "-p" in sys.argv
    OPT = set(x[1:] for x in sys.argv if x.startswith("+"))
    build(out, verbose="-v" in sys.argv, aslist="-l" in sys.argv)
```

```python
import sys, math, struct
from asmlib import Asm

NAME = "gated_mix__softmax_full_mha__mixer_token_mlp__prompt"
MB = 1 << 20
WS_Q, WS_KV, WS_HT, WS_U, WS_O, WS_G, WS_F = 0, 2 * MB, 6 * MB, 8 * MB, 10 * MB, 14 * MB, 15 * MB
SZ_U = 172 * 8192
F_HT, F_E, F_QKV, F_U, F_O = 0, 8192, 131072, 262144, 524288
SZ_F = 786432
PROF = False
OPT = set()
WS_P = 16 * MB
LOG2E = math.log2(math.e)
pX, pWQKV, pWO, pW1, pB1, pW2, pB2, pGW, pOUT, pWS = 4, 6, 8, 12, 14, 16, 18, 20, 22, 26
MREG = 131072
LF = MREG + 6144 + 64
L_KVF, L_PUB, L_C0F, L_DONE, L_PAST, L_C1F, L_ISS, L_TAG = LF, LF + 16, LF + 32, LF + 64, LF + 96, LF + 128, LF + 144, LF + 160
PR1, PR0 = 4, 2
pDBG = 24


def f32(x):
    return "0x%08x" % struct.unpack("<I", struct.pack("<f", x))[0]


def srd(a, d, base, size, add=0):
    if add:
        a(f"s_add_u32 s{d}, s{base}, {hex(add)}")
        a(f"s_addc_u32 s{d+1}, s{base+1}, 0")
    else:
        a(f"s_mov_b32 s{d}, s{base}")
        a(f"s_mov_b32 s{d+1}, s{base+1}")
    a(f"s_mov_b32 s{d+2}, {hex(size)}")
    a(f"s_mov_b32 s{d+3}, 0x20000")


def vr(b, n):
    return f"v[{b}:{b+n-1}]"


def sr(b, n=4):
    return f"s[{b}:{b+n-1}]"


def mfma(a, D, A, B, C=None):
    c = vr(D, 16) if C is None else (C if isinstance(C, str) else vr(C, 16))
    a(f"v_mfma_f32_32x32x16_bf16 {vr(D,16)}, {vr(A,4)}, {vr(B,4)}, {c}")


def MT():
    return "s_memrealtime" if "rt" in OPT else "s_memtime"


def stamp(a, i):
    if opt("cal", -1) == i:
        a("s_memrealtime s[70:71]")
    if opt("ca_", -1) == i:
        a("s_memtime s[76:77]")
    if opt("cb_", -1) == i:
        a("s_memtime s[78:79]")
    if PROF:
        a(f"{MT()} s[{72+2*i}:{73+2*i}]")


_cal = [0]


def endprof(a, n=12):
    if opt("cal", -1) >= 0:
        _cal[0] += 1
        L = f"CAL{_cal[0]}"
        if opt("cal", -1) == 13:
            a("s_memrealtime s[70:71]")
        a("s_cmp_lg_u32 s2, 3")
        a(f"s_cbranch_scc1 {L}_X")
        a(f"s_cmp_lg_u32 s3, {opt('cw', 0)}")
        a(f"s_cbranch_scc1 {L}_X")
        a("s_mov_b32 s74, 400000")
        if opt("ca_", -1) >= 0:
            a("s_waitcnt lgkmcnt(0)")
            a("s_sub_u32 s78, s78, s76")
            a("s_lshr_b32 s78, s78, 3")
            a("s_add_u32 s70, s70, s78")
            a("s_sub_u32 s70, s70, 5000")
        a(f"{L}:")
        a("s_memrealtime s[72:73]")
        a("s_waitcnt lgkmcnt(0)")
        a("s_sub_u32 s74, s74, 1")
        a(f"s_cbranch_scc1 {L}_X")
        a("s_sub_u32 s72, s72, s70")
        a("s_cmp_lt_u32 s72, %d" % (8500 if opt("ca_", -1) >= 0 else 3500))
        a(f"s_cbranch_scc1 {L}")
        a(f"{L}_X:")
    if not PROF:
        return
    a("s_waitcnt vmcnt(0)")
    a(f"{MT()} s[{72+2*(n+1)}:{73+2*(n+1)}]")
    a("s_memrealtime s[100:101]")
    a("s_mov_b64 exec, -1")
    srd(a, 28, pWS, MB, WS_P)
    a("s_lshl_b32 s52, s2, 4")
    a("s_add_u32 s52, s52, s3")
    a("s_lshl_b32 s52, s52, 7")
    a("s_waitcnt lgkmcnt(0)")
    a("v_mov_b32 v2, 0")
    a("v_mov_b32 v3, s70")
    a("buffer_store_dword v3, v2, s[28:31], s52 offen")
    a("v_mov_b32 v3, s100")
    a("buffer_store_dword v3, v2, s[28:31], s52 offen offset:4")
    for i in range(1, n + 2):
        a(f"s_sub_u32 s53, s{72+2*i}, s72")
        a("v_mov_b32 v3, s53")
        a(f"buffer_store_dword v3, v2, s[28:31], s52 offen offset:{4+4*i}")


def gemm_src(a, strideT, vT0, vT1, t0, t1):
    a(f"v_lshrrev_b32 v{t0}, 3, v1")
    a(f"v_mul_u32_u24 v{t0}, {strideT}, v{t0}")
    a(f"v_bfe_u32 v{t1}, v1, 4, 1")
    a(f"v_lshlrev_b32 v{t1}, 2, v{t1}")
    a(f"v_xor_b32 v{t1}, v{t1}, v1")
    a(f"v_and_b32 v{t1}, 7, v{t1}")
    a(f"v_lshl_add_u32 v{vT0}, v{t1}, 4, v{t0}")
    a(f"v_add_u32 v{vT1}, {8*strideT}, v{vT0}")


def gemm_rd(a, hmul, vR0, vR1, sL, sSwap, t0, t1):
    a(f"v_lshrrev_b32 v{t0}, 5, v1")
    a(f"v_mul_u32_u24 v{t0}, {hmul}, v{t0}")
    a(f"v_bfe_u32 v{t1}, v1, 2, 2")
    a(f"v_add_u32 v{t0}, v{t0}, v{t1}")
    a(f"v_lshlrev_b32 v{t0}, 7, v{t0}")
    a(f"v_bfe_u32 v{t1}, v1, 3, 1")
    a(f"v_lshl_add_u32 v{t0}, v{t1}, 6, v{t0}")
    a(f"v_bfe_u32 v{t1}, v1, 4, 1")
    a(f"v_lshl_add_u32 v{t0}, v{t1}, 5, v{t0}")
    a(f"v_and_b32 v{t1}, 3, v1")
    a(f"v_lshl_add_u32 v{t0}, v{t1}, 3, v{t0}")
    if sL is None:
        a(f"v_xor_b32 v{vR0}, s{sSwap}, v{t0}")
        return
    a(f"v_xor_b32 v{t0}, s{sSwap}, v{t0}")
    a(f"v_add_u32 v{vR0}, s{sL}, v{t0}")
    a(f"v_xor_b32 v{t0}, 64, v{t0}")
    a(f"v_add_u32 v{vR1}, s{sL}, v{t0}")


def lds_spin(a, lab, vaddr, off, want, vt, cnt, sleep=1):
    a(f"s_mov_b32 s{cnt}, 0x100000")
    a(f"{lab}:")
    a(f"ds_read_b32 v{vt}, v{vaddr} offset:{off}")
    a("s_waitcnt lgkmcnt(0)")
    a(f"v_cmp_ne_u32 vcc, {want}, v{vt}")
    a(f"s_sub_u32 s{cnt}, s{cnt}, 1")
    a(f"s_cbranch_scc1 {lab}_X")
    a(f"s_cbranch_vccz {lab}_X")
    a(f"s_sleep {sleep}")
    a(f"s_branch {lab}")
    a(f"{lab}_X:")


def poll(a, lab, n, vaddr, sF, soff, vt, vTag, cnt, sleep, extra=None, mask=None, save=None):
    a(f"s_mov_b32 s{cnt}, 0x40000")
    a(f"{lab}:")
    if n == 1:
        a(f"buffer_load_dwordx2 {vr(vt,2)}, v{vaddr}, {sr(sF)}, {soff} offen sc1")
    else:
        a(f"buffer_load_dwordx4 {vr(vt,4)}, v{vaddr}, {sr(sF)}, {soff} offen sc1")
    if n == 4:
        a(f"buffer_load_dwordx4 {vr(vt+4,4)}, v{vaddr}, {sr(sF)}, {soff} offen offset:16 sc1")
    a("s_waitcnt vmcnt(0)")
    if extra:
        a(extra)
    for i in range(2 * n):
        a(f"v_xor_b32 v{vt+i}, v{vt+i}, v{vTag + i % 2}")
    k = 2 * n
    i = 1
    while i < k:
        if i + 1 < k:
            a(f"v_or3_b32 v{vt}, v{vt}, v{vt+i}, v{vt+i+1}")
            i += 2
        else:
            a(f"v_or_b32 v{vt}, v{vt}, v{vt+i}")
            i += 1
    a(f"v_cmp_ne_u32 vcc, 0, v{vt}")
    a(f"s_sub_u32 s{cnt}, s{cnt}, 1")
    a(f"s_cbranch_scc1 {lab}_X")
    if mask is None:
        a(f"s_cbranch_vccz {lab}_X")
    else:
        a(f"s_and_b32 s{save}, vcc_lo, {mask}")
        a(f"s_cbranch_scc0 {lab}_X")
    a(f"s_sleep {sleep}")
    a(f"s_branch {lab}")
    a(f"{lab}_X:")
    if mask is not None:
        a(f"s_mov_b32 s{save}, vcc_lo")


def spoll(a, lab, words, dst, sF, sTag, cnt, sleep):
    a(f"s_mov_b32 s{cnt}, 0x40000")
    a(f"{lab}:")
    for i, (so, imm) in enumerate(words):
        a(f"s_buffer_load_dwordx2 s[{dst+2*i}:{dst+2*i+1}], {sr(sF)}, s{so} offset:{imm} glc")
    a("s_waitcnt lgkmcnt(0)")
    for i in range(len(words)):
        a(f"s_xor_b64 s[{dst+2*i}:{dst+2*i+1}], s[{dst+2*i}:{dst+2*i+1}], s[{sTag}:{sTag+1}]")
        if i:
            a(f"s_or_b64 s[{dst}:{dst+1}], s[{dst}:{dst+1}], s[{dst+2*i}:{dst+2*i+1}]")
    a(f"s_cbranch_scc0 {lab}_X")
    a(f"s_sub_u32 s{cnt}, s{cnt}, 1")
    a(f"s_cbranch_scc1 {lab}_X")
    a(f"s_sleep {sleep}")
    a(f"s_branch {lab}")
    a(f"{lab}_X:")


def publish(a, sF, soff, vTag, vt):
    a(f"v_lshlrev_b32 v{vt}, 20, v1")
    a("s_waitcnt vmcnt(0)")
    a(f"buffer_store_dwordx2 {vr(vTag,2)}, v{vt}, {sr(sF)}, s{soff} offen sc1")


def get_tag(a, vTag, vt):
    a(f"v_mov_b32 v{vt}, {L_TAG}")
    a(f"ds_read_b64 {vr(vTag,2)}, v{vt}")


def opt(name, default):
    return next((int(o[len(name):]) for o in OPT if o.startswith(name)), default)


def lds_wait(a, lab, base, n, vA, vt, cnt, sleep=1):
    a(f"v_and_b32 v{vA}, {n-1}, v1")
    a(f"v_lshlrev_b32 v{vA}, 2, v{vA}")
    a(f"v_add_u32 v{vA}, {base}, v{vA}")
    lds_spin(a, lab, vA, 0, 1, vt, cnt, sleep)


class Gemm:
    def __init__(s, a, nsteps, P, srdT, srdD, sT, sD, sL, strideT, stepD, t_is_A, vT0, vT1, vD0, vD1, vR0, vR1, qoff,
                 Tf, Df, acc, dflags, sW, G):
        s.__dict__.update(locals())
        s.log = []

    def idx(s, i, dst, base, stride):
        a = s.a
        g0 = i // s.G * s.G
        gs = min(s.G, s.nsteps - g0)
        assert gs & (gs - 1) == 0
        a(f"s_add_u32 s{dst}, s{s.sW}, {i - g0}")
        a(f"s_and_b32 s{dst}, s{dst}, {gs - 1}")
        a(f"s_add_u32 s{dst}, s{dst}, {g0}")
        a(f"s_mul_i32 s{dst}, s{dst}, {stride}")
        a(f"s_add_u32 s{dst}, s{dst}, s{base}")

    def LD1(s, i, half):
        if i >= s.nsteps:
            return
        if "nold" in OPT and i > 3:
            s.a("s_sleep 1")
            return
        d = s.Df + 8 * (i % (s.P + 1)) + 4 * half
        if not half:
            s.idx(i, s.sW + 2, s.sD, s.stepD)
        s.a(f"buffer_load_dwordx4 {vr(d,4)}, v{(s.vD0, s.vD1)[half]}, {sr(s.srdD)}, s{s.sW+2} offen{s.dflags}")
        s.log.append(("D", i))

    def DMA1(s, i, half):
        if i >= s.nsteps:
            return
        if "nold" in OPT and i > 3:
            s.a("s_sleep 1")
            return
        a = s.a
        sl = (i % s.P) * 2048 + 1024 * half
        a(f"s_add_u32 m0, s{s.sL}, {sl}")
        if not half:
            s.idx(i, s.sW + 1, s.sT, 16 * s.strideT)
        else:
            a("s_nop 0")
        a(f"buffer_load_dwordx4 v{(s.vT0, s.vT1)[half]}, {sr(s.srdT)}, s{s.sW+1} offen{' nt' if 'ntt' in OPT else ''} lds")
        s.log.append(("T", i))

    def rd(s, i):
        sl = (i % s.P) * 2048
        t = s.Tf + 8 * (i % 2)
        for b, vR in ((0, s.vR0), (1, s.vR1)):
            for q in range(2):
                s.a(f"ds_read_b64_tr_b16 {vr(t+4*b+2*q,2)}, v{vR} offset:{sl+q*s.qoff}")

    def wait_for(s, items):
        if "nold" in OPT:
            s.a("s_waitcnt vmcnt(0)")
            return
        last = max(idx for idx, it in enumerate(s.log) if it in items)
        s.a(f"s_waitcnt vmcnt({min(63, len(s.log) - 1 - last)})")

    def pro_T(s):
        for j in range(s.P):
            s.DMA1(j, 0)
            s.DMA1(j, 1)

    def pro_D(s):
        for j in range(s.P):
            s.LD1(j, 0)
            s.LD1(j, 1)

    def main(s, hooks={}):
        a = s.a
        s.wait_for([("T", 0)])
        s.rd(0)
        a("s_waitcnt lgkmcnt(0)")
        s.DMA1(s.P, 0)
        s.DMA1(s.P, 1)
        if "mp3" not in OPT:
            a("s_setprio 0")
        n = s.nsteps
        for i in range(n):
            if i in hooks:
                hooks[i]()
            need = [("D", i)] + ([("T", i + 1)] if i + 1 < n else [])
            s.wait_for(need)
            t, d = s.Tf + 8 * (i % 2), s.Df + 8 * (i % (s.P + 1))
            for k in range(4):
                x, y = k // 2, k % 2
                C = "0" if i == 0 else None
                if "nomm" in OPT and i > 0:
                    pass
                elif s.t_is_A:
                    mfma(a, s.acc + 16 * k, t + 4 * x, d + 4 * y, C)
                else:
                    mfma(a, s.acc + 16 * k, d + 4 * x, t + 4 * y, C)
                if k == 0:
                    if i + 1 < n:
                        s.rd(i + 1)
                    s.LD1(i + s.P, 0)
                elif k == 1:
                    s.LD1(i + s.P, 1)
                elif k == 2:
                    if i + 1 < n:
                        a("s_waitcnt lgkmcnt(0)")
                    s.DMA1(i + 1 + s.P, 0)
                else:
                    s.DMA1(i + 1 + s.P, 1)
        a("s_setprio 3")


def gelu(a, X, T, U, n, s0):
    k = math.sqrt(2 / math.pi)
    a(f"v_mov_b32 v{U}, {f32(-2*k*LOG2E)}")
    a(f"v_mov_b32 v{U+1}, {f32(-2*k*LOG2E)}")
    a(f"v_mov_b32 v{U+2}, {f32(-2*k*LOG2E*0.044715)}")
    a(f"v_mov_b32 v{U+3}, {f32(-2*k*LOG2E*0.044715)}")
    a(f"v_mov_b32 v{U+4}, 1.0")
    a(f"v_mov_b32 v{U+5}, 1.0")
    for i in range(0, n, 2):
        a(f"v_pk_mul_f32 {vr(T+i,2)}, {vr(X+i,2)}, {vr(X+i,2)}")
    for i in range(0, n, 2):
        a(f"v_pk_fma_f32 {vr(T+i,2)}, {vr(T+i,2)}, {vr(U+2,2)}, {vr(U,2)}")
    for i in range(0, n, 2):
        a(f"v_pk_mul_f32 {vr(T+i,2)}, {vr(T+i,2)}, {vr(X+i,2)}")
    for i in range(n):
        a(f"v_exp_f32 v{T+i}, v{T+i}")
    for i in range(0, n, 2):
        a(f"v_pk_add_f32 {vr(T+i,2)}, {vr(T+i,2)}, {vr(U+4,2)}")
    for i in range(n):
        a(f"v_rcp_f32 v{T+i}, v{T+i}")
    for i in range(0, n, 2):
        a(f"v_pk_mul_f32 {vr(X+i,2)}, {vr(X+i,2)}, {vr(T+i,2)}")


def mreduce(a, tag, acc, sL, fl, vA, vB, vT, R, cnt):
    a(f"v_lshlrev_b32 v{vA}, 4, v1")
    a(f"v_add_u32 v{vA}, s{sL}, v{vA}")
    a(f"v_mov_b32 v{vB}, s{sL}")
    a(f"v_mov_b32 v{vT+1}, 1")
    a("s_nop 7")
    wr, rdb = {1: 0, 2: 1, 3: 3}, {1: 1, 2: 3, 3: 0}

    def add():
        for i in range(0, 16, 2):
            a(f"v_pk_add_f32 {vr(acc+i,2)}, {vr(acc+i,2)}, {vr(R+i,2)}")

    for r in (1, 2, 3):
        if wr[r]:
            a(f"v_xor_b32 v{vT+2}, {8192*wr[r]}, v{vA}")
        for i in range(4):
            a(f"ds_write_b128 v{vT+2 if wr[r] else vA}, {vr(acc+16*r+4*i,4)} offset:{1024*i}")
        a(f"v_xor_b32 v{vT+3}, {8192*r}, v{vB}")
        if r > 1:
            add()
        a("s_waitcnt lgkmcnt(0)")
        a(f"ds_write_b32 v{vB}, v{vT+1} offset:{6144+fl+4*(r-1)}")
        lds_spin(a, f"{tag}_R{r}", vT + 3, 6144 + fl + 4 * (r - 1), 1, vT, cnt)
        if rdb[r]:
            a(f"v_xor_b32 v{vT+2}, {8192*rdb[r]}, v{vA}")
        for i in range(4):
            a(f"ds_read_b128 {vr(R+4*i,4)}, v{vT+2 if rdb[r] else vA} offset:{1024*i}")
        a("s_waitcnt lgkmcnt(0)")
    add()


def kernel(a):
    global PROF
    nm = NAME + "_kernel"
    a.raw(f".globl {nm}")
    a.raw(".p2align 8")
    a.raw(f".type {nm},@function")
    a(f"{nm}:")
    if PROF:
        a("s_memrealtime s[70:71]")
        a(f"{MT()} s[72:73]")
    stamp(a, 0) if not PROF else None
    SLOT, NS = 32768, 4
    NTX = " nt" if "ntx" in OPT else ""
    NTW = " nt" if "ntw" in OPT else ""
    NTM = " nt" if "ntm" in OPT else ""
    vTag = 166
    a("s_cmp_ge_u32 s2, 256")
    a("s_cbranch_scc1 END")
    a("s_load_dwordx16 s[4:19], s[0:1], 0")
    a("s_load_dwordx8 s[20:27], s[0:1], 64")
    a("v_lshrrev_b32 v2, 6, v0")
    a("v_and_b32 v1, 63, v0")
    a("v_readfirstlane_b32 s3, v2")
    a("s_and_b32 s52, s2, 7")
    a("s_lshr_b32 s53, s2, 3")
    a("s_mul_i32 s55, s53, 43")
    a("s_lshr_b32 s55, s55, 8")
    a("s_mul_i32 s56, s55, 6")
    a("s_sub_u32 s56, s53, s56")
    a("s_lshl_b32 s58, s55, 1")
    a("s_add_u32 s58, s58, s56")
    a("s_lshr_b32 s54, s52, 1")
    a("s_lshl_b32 s54, s54, 2")
    a("s_add_u32 s54, s54, s55")
    a("s_and_b32 s55, s52, 1")
    a("s_mul_i32 s55, s55, 6")
    a("s_add_u32 s55, s55, s56")
    a("s_cmp_ge_u32 s3, 8")
    a("s_cbranch_scc1 P1_M")
    a("s_cmp_ge_u32 s53, 24")
    a("s_cbranch_scc1 SVC")
    a("s_cmp_ge_u32 s3, 4")
    a("s_cbranch_scc1 P1_LOAD")

    vXA, vWA = 10, 18
    Fb = 112
    acc = 48
    a("s_and_b32 s56, s3, 1")
    a("s_lshr_b32 s57, s3, 1")
    a("s_lshl_b32 s59, s56, 13")
    a("v_and_b32 v2, 31, v1")
    a("v_lshrrev_b32 v3, 5, v1")
    a("v_bfe_u32 v9, v1, 1, 3")
    a("v_lshlrev_b32 v2, 7, v2")
    a("v_add_u32 v2, s59, v2")
    for kk in range(4):
        a(f"v_add_u32 v30, {2*kk}, v3")
        a("v_xor_b32 v30, v30, v9")
        a(f"v_lshl_add_u32 v{vXA+kk}, v30, 4, v2")
        a(f"v_add_u32 v{vXA+4+kk}, {2*SLOT}, v{vXA+kk}")
    a("s_lshl_b32 s59, s57, 13")
    a("s_add_u32 s59, s59, 16384")
    a("s_mov_b32 s60, 0")
    gemm_rd(a, 8, vWA, vWA + 1, 59, 60, 2, 9)
    a(f"v_add_u32 v{vWA+2}, {2*SLOT}, v{vWA}")
    a(f"v_add_u32 v{vWA+3}, {2*SLOT}, v{vWA+1}")
    a("s_and_b32 s59, s55, 3")
    a("s_lshl_b32 s59, s59, 1")
    a("s_add_u32 s59, s59, s57")
    a("s_lshl_b32 s60, s54, 1")
    a("s_add_u32 s60, s60, s56")
    a("s_lshr_b32 s61, s55, 2")
    a("s_lshl_b32 s62, s61, 8")
    a("s_lshl_b32 s63, s59, 5")
    a("s_add_u32 s62, s62, s63")
    a("s_add_u32 s62, s62, s60")
    a("s_lshl_b32 s62, s62, 7")
    a(f"s_add_u32 s62, s62, {F_QKV}")
    a("s_lshl_b32 s63, s59, 18")
    a("s_lshl_b32 s64, s60, 11")
    a("s_add_u32 s63, s63, s64")
    a("s_lshl_b32 s64, s63, 1")
    a(f"s_add_u32 s64, s64, {WS_KV - WS_Q}")
    a("s_cmp_eq_u32 s61, 0")
    a("s_cselect_b32 s63, s63, s64")
    a("s_cselect_b32 s65, 1, 2")
    a(f"s_cselect_b32 s66, {f32(0.25*LOG2E)}, 1.0")
    a("s_mov_b32 s67, s66")
    a("s_lshl_b32 s64, s65, 16")
    a("s_lshl_b32 s65, s65, 10")
    a("v_lshlrev_b32 v2, 4, v1")
    a("v_bfe_u32 v9, v1, 4, 1")
    a("v_lshlrev_b32 v9, 17, v9")
    a("v_lshl_add_u32 v9, v3, 8, v9")
    a("v_and_b32 v30, 15, v1")
    a("v_lshl_add_u32 v9, v30, 4, v9")
    a("s_lshl_b32 s59, s3, 2")
    a(f"s_add_u32 s59, s59, {L_PUB}")
    a("v_mov_b32 v31, s59")
    a("v_mov_b32 v30, 1")
    a("s_waitcnt lgkmcnt(0)")
    srd(a, 28, pWS, 6 * MB, WS_Q)
    srd(a, 36, pWS, SZ_F, WS_F)
    a("s_cmp_eq_u32 s61, 2")
    a("s_cbranch_scc1 P1_V")

    def reads(t):
        c, kk = t // 4, t % 4
        s = c % NS
        st, so = s // 2, (s % 2) * SLOT
        f = Fb + 16 * (t % 3)
        r = []
        for b in range(2):
            r.append(f"ds_read_b128 {vr(f+4*b,4)}, v{vXA+4*st+kk} offset:{so+b*4096}")
            for q in range(2):
                r.append(f"ds_read_b64_tr_b16 {vr(f+8+4*b+2*q,2)}, v{vWA+2*st+b} offset:{so+kk*2048+q*512}")
        return r

    def p1main(vtype):
        a("s_barrier")
        stamp(a, 1)
        for t in range(2):
            for x in reads(t):
                a(x)
        for t in range(32):
            if t % 4 == 2 and t + 2 < 32:
                a("s_barrier")
            a(f"s_waitcnt lgkmcnt({6 if t + 1 < 32 else 0})")
            rr = reads(t + 2) if t + 2 < 32 else []
            f = Fb + 16 * (t % 3)
            for j in range(4):
                cb, tb = j // 2, j % 2
                X, W = f + 4 * tb, f + 8 + 4 * cb
                if vtype:
                    mfma(a, acc + 16 * j, X, W, "0" if t == 0 else None)
                else:
                    mfma(a, acc + 16 * j, W, X, "0" if t == 0 else None)
                for x in rr[(0, 2, 4, 6)[j]:(2, 4, 6, 6)[j]]:
                    a(x)
        stamp(a, 2)
        get_tag(a, vTag, 32)
        for j in range(4):
            cb, tb = j // 2, j % 2
            if j == 0:
                a("s_mov_b32 s59, s63")
            elif j == 1:
                a("s_add_u32 s59, s63, s65")
            elif j == 2:
                a("s_lshl_b32 s60, s64, 1")
                a("s_add_u32 s63, s63, s60")
                a("s_mov_b32 s59, s63")
            else:
                a("s_add_u32 s59, s63, s65")
            a("s_add_u32 s60, s59, s64")
            for hf in range(2):
                A0, r = acc + 16 * j + 8 * hf, Fb + 8 * j + 4 * hf
                if not vtype:
                    for i in range(0, 8, 2):
                        a(f"v_pk_mul_f32 {vr(A0+i,2)}, {vr(A0+i,2)}, s[66:67]")
                for i in range(4):
                    a(f"v_cvt_pk_bf16_f32 v{r+i}, v{A0+2*i}, v{A0+2*i+1}")
                if vtype:
                    a(f"buffer_store_dwordx4 {vr(r,4)}, v9, {sr(28)}, s59 offen offset:{1024+512*hf} sc1")
                else:
                    a(f"buffer_store_dwordx4 {vr(r,4)}, v2, {sr(28)}, s{59+hf} offen sc1")

    p1main(False)
    a("s_branch P1_PUB")
    a("P1_V:")
    p1main(True)
    a("P1_PUB:")
    a(f"ds_write_b32 v31, v30 offset:{L_ISS-L_PUB}")
    a("s_waitcnt lgkmcnt(0)")
    publish(a, 36, 62, vTag, 32)
    a("ds_write_b32 v31, v30")
    stamp(a, 3)
    a("s_branch ATT")

    a("SVC:")
    NR = 4
    raw, gwr, X, GW, SUM, DOT = 4, 20, 24, 56, 64, 68
    a("s_lshl_b32 s56, s52, 3")
    a("s_and_b32 s57, s53, 7")
    a("s_add_u32 s56, s56, s57")
    a("s_lshl_b32 s56, s56, 3")
    a("s_add_u32 s56, s56, s3")
    a("s_lshl_b32 s57, s56, 12")
    a("v_lshlrev_b32 v2, 4, v1")
    a("s_waitcnt lgkmcnt(0)")
    srd(a, 28, pX, 2 * MB)
    srd(a, 32, pGW, 1024)
    for r in range(NR):
        a(f"buffer_load_dwordx4 {vr(raw+4*r,4)}, v2, {sr(28)}, s57 offen offset:{r*1024}")
    a(f"buffer_load_dwordx4 {vr(gwr,4)}, v2, {sr(32)}, 0 offen")
    srd(a, 28, pWS, 2 * MB, WS_HT)
    srd(a, 32, pWS, 8192, WS_G)
    srd(a, 36, pWS, SZ_F, WS_F)
    a("s_mov_b32 s59, 0xffff0000")
    a("s_lshr_b32 s60, s3, 1")
    a("s_lshl_b32 s60, s60, 13")
    a("s_add_u32 s60, s60, 65536")
    a("s_and_b32 s61, s3, 1")
    a("s_lshl_b32 s62, s61, 3")
    a("s_add_u32 s62, s62, s60")
    a("s_lshl_b32 s61, s61, 12")
    a("s_add_u32 s61, s61, s60")
    a("v_lshlrev_b32 v72, 7, v1")
    a("v_and_b32 v73, 7, v1")
    a("v_lshl_add_u32 v72, v73, 4, v72")
    a("v_add_u32 v72, s62, v72")
    a("v_lshrrev_b32 v74, 3, v1")
    a("v_xor_b32 v73, v73, v74")
    a("v_lshlrev_b32 v74, 7, v74")
    a("v_lshl_add_u32 v73, v73, 4, v74")
    a("v_add_u32 v73, s61, v73")
    a("s_waitcnt vmcnt(0)")
    stamp(a, 1)
    for i in range(4):
        a(f"v_lshlrev_b32 v{GW+2*i}, 16, v{gwr+i}")
        a(f"v_and_b32 v{GW+2*i+1}, s59, v{gwr+i}")
    for r in range(NR):
        for i in range(4):
            a(f"v_lshlrev_b32 v{X+8*r+2*i}, 16, v{raw+4*r+i}")
            a(f"v_and_b32 v{X+8*r+2*i+1}, s59, v{raw+4*r+i}")
    T = raw
    for r in range(NR):
        a(f"v_pk_add_f32 {vr(T+4*r,2)}, {vr(X+8*r,2)}, {vr(X+8*r+2,2)}")
        a(f"v_pk_mul_f32 {vr(T+4*r+2,2)}, {vr(X+8*r,2)}, {vr(GW,2)}")
    for e in (2, 4, 6):
        for r in range(NR):
            if e >= 4:
                a(f"v_pk_add_f32 {vr(T+4*r,2)}, {vr(T+4*r,2)}, {vr(X+8*r+e,2)}")
            a(f"v_pk_fma_f32 {vr(T+4*r+2,2)}, {vr(X+8*r+e,2)}, {vr(GW+e,2)}, {vr(T+4*r+2,2)}")
    for r in range(NR):
        a(f"v_add_f32 v{SUM+r}, v{T+4*r}, v{T+4*r+1}")
        a(f"v_add_f32 v{DOT+r}, v{T+4*r+2}, v{T+4*r+3}")

    def reduce(regs):
        for mod in ("row_shr:1 row_mask:0xf", "row_shr:2 row_mask:0xf", "row_shr:4 row_mask:0xf", "row_shr:8 row_mask:0xf",
                    "row_bcast:15 row_mask:0xa", "row_bcast:31 row_mask:0xc"):
            for r in regs:
                a(f"v_add_f32_dpp v{r}, v{r}, v{r} {mod} bank_mask:0xf")

    reduce(list(range(SUM, SUM + NR)))
    for r in range(NR):
        a(f"v_mul_f32 v{SUM+r}, {f32(1/512)}, v{SUM+r}")
    for r in range(NR):
        a(f"v_readlane_b32 s{40+r}, v{SUM+r}, 63")
    for e in range(8):
        for r in range(NR):
            a(f"v_subrev_f32 v{X+8*r+e}, s{40+r}, v{X+8*r+e}")
    for r in range(NR):
        a(f"v_pk_mul_f32 {vr(T+4*r,2)}, {vr(X+8*r,2)}, {vr(X+8*r,2)}")
    for e in (2, 4, 6):
        for r in range(NR):
            a(f"v_pk_fma_f32 {vr(T+4*r,2)}, {vr(X+8*r+e,2)}, {vr(X+8*r+e,2)}, {vr(T+4*r,2)}")
    for r in range(NR):
        a(f"v_add_f32 v{SUM+r}, v{T+4*r}, v{T+4*r+1}")
    reduce(list(range(SUM, SUM + NR)))
    a(f"v_mov_b32 v3, {f32(1e-5)}")
    a(f"s_mov_b32 s60, {f32(1/512)}")
    for r in range(NR):
        a(f"v_fma_f32 v{SUM+r}, v{SUM+r}, s60, v3")
    for r in range(NR):
        a(f"v_rsq_f32 v{SUM+r}, v{SUM+r}")
    a("s_nop 0")
    for r in range(NR):
        a(f"v_readlane_b32 s{40+r}, v{SUM+r}, 63")
    for e in range(8):
        for r in range(NR):
            a(f"v_mul_f32 v{X+8*r+e}, s{40+r}, v{X+8*r+e}")
        for p in range(2):
            a(f"v_cvt_pk_bf16_f32 v{raw+2*e+p}, v{X+16*p+e}, v{X+16*p+8+e}")
        a(f"v_xor_b32 v{GW+e}, {16*e}, v72")
        a(f"ds_write_b64 v{GW+e}, {vr(raw+2*e,2)}")
    a("s_waitcnt lgkmcnt(0)")
    a("s_barrier")
    for j in range(4):
        a(f"ds_read_b128 {vr(X+4*j,4)}, v73 offset:{j*1024}")
    get_tag(a, vTag, 3)
    for j in range(4):
        a(f"s_waitcnt lgkmcnt({4-j})")
        a(f"buffer_store_dwordx4 {vr(X+4*j,4)}, v2, {sr(28)}, s57 offen offset:{j*1024} sc1")
    reduce(list(range(DOT, DOT + NR)))
    for r in range(NR):
        a(f"v_mul_f32 v{DOT+r}, {f32(-LOG2E)}, v{DOT+r}")
    for r in range(NR):
        a(f"v_exp_f32 v{DOT+r}, v{DOT+r}")
    for r in range(NR):
        a(f"v_add_f32 v{DOT+r}, 1.0, v{DOT+r}")
    for r in range(NR):
        a(f"v_rcp_f32 v{DOT+r}, v{DOT+r}")
    a("s_lshl_b32 s60, s56, 4")
    a("v_mov_b32 v3, 0")
    a("s_mov_b32 exec_lo, 0")
    a("s_mov_b32 exec_hi, 0x80000000")
    a(f"buffer_store_dwordx4 {vr(DOT,4)}, v3, {sr(32)}, s60 offen sc1")
    a("s_mov_b64 exec, -1")
    stamp(a, 2)
    a("s_waitcnt vmcnt(0) lgkmcnt(0)")
    a("s_barrier")
    a("s_bitcmp1_b32 s3, 0")
    a("s_cbranch_scc1 L_TAIL")
    a("s_lshl_b32 s60, s56, 2")
    publish(a, 36, 60, vTag, 3)
    stamp(a, 3)
    a("s_branch L_TAIL")

    a("P1_LOAD:")
    vX0, vT0, vT1 = 4, 8, 9
    a("s_sub_u32 s59, s3, 4")
    a("v_lshrrev_b32 v2, 3, v1")
    a("v_and_b32 v3, 7, v1")
    a("v_lshrrev_b32 v20, 4, v1")
    a("v_xor_b32 v3, v3, v20")
    a("v_lshlrev_b32 v2, 10, v2")
    a(f"v_lshl_add_u32 v{vX0}, v3, 4, v2")
    a(f"v_xor_b32 v3, 4, v3")
    a(f"v_lshl_add_u32 v{vX0+1}, v3, 4, v2")
    a(f"v_add_u32 v{vX0+1}, 8192, v{vX0+1}")
    a(f"v_add_u32 v{vX0+2}, 16384, v{vX0}")
    a(f"v_add_u32 v{vX0+3}, 16384, v{vX0+1}")
    gemm_src(a, 3072, vT0, vT1, 2, 3)
    a("s_lshl_b32 s60, s54, 17")
    a("s_lshl_b32 s61, s59, 15")
    a("s_add_u32 s60, s60, s61")
    a("s_mul_i32 s61, s59, 49152")
    a("s_lshl_b32 s62, s55, 8")
    a("s_add_u32 s61, s61, s62")
    a("s_lshl_b32 s62, s59, 12")
    a("s_lshl_b32 s65, s59, 11")
    a("s_waitcnt lgkmcnt(0)")
    srd(a, 28, pX, 2 * MB)
    srd(a, 32, pWQKV, 512 * 3072)

    def dma(c):
        sl = (c % NS) * SLOT
        for t in ["s_and_b32 s58, s58, 7", "s_lshl_b32 s63, s58, 7", "s_add_u32 s63, s63, s60",
                  "s_mul_i32 s64, s58, 196608", "s_add_u32 s64, s64, s61", "s_add_u32 s58, s58, 1"]:
            a(t)
        def dx():
            for n in range(4):
                a(f"s_add_u32 m0, s62, {sl + n*1024}")
                a("s_nop 0")
                a(f"buffer_load_dwordx4 v{vX0+n}, {sr(28)}, s63 offen{NTX} lds")

        def dw():
            for n, v in enumerate((vT0, vT1)):
                for hf in range(2):
                    a(f"s_add_u32 m0, s65, {sl + 16384 + hf*(8192-128) + n*1024}")
                    a("s_nop 0")
                    a(f"buffer_load_dwordx4 v{v}, {sr(32)}, s64 offen offset:{hf*128}{NTW} lds")
        if c == 1 and "wfirst" in OPT:
            dw(); dx()
        else:
            dx(); dw()

    if "p1st" in OPT:
        stamp(a, 3)
    dma(0)
    if "p1st" in OPT:
        stamp(a, 4)
    a(f"s_waitcnt vmcnt({opt('fw', 4)})")
    if "p1st" in OPT:
        stamp(a, 5)
    for c in range(8):
        if c + 1 < 8:
            dma(c + 1)
            a("s_waitcnt vmcnt(8)")
        else:
            a("s_waitcnt vmcnt(0)")
        if "p1st" in OPT and c >= 1:
            stamp(a, 5 + c)
        a("s_barrier")
        if c == 0:
            stamp(a, 1)
    stamp(a, 2)
    if "p1st" in OPT:
        PROF = False
    a("L_TAIL:")
    get_tag(a, vTag, 2)
    srd(a, 28, pWS, 6 * MB, WS_Q)
    srd(a, 36, pWS, SZ_F, WS_F)
    lds_wait(a, "L_ISSW", L_PUB, 4, 3, 4, 62, 2)

    a("ATT:")
    Q, C, S, P, O, Kb, Vb = 4, 8, 24, 56, 64, 80, 88
    vL16, vLV, vK, vV, vOne, vF = 2, 3, 104, 105, 106, 107
    a("s_lshl_b32 s54, s52, 2")
    a("s_and_b32 s55, s53, 3")
    a("s_add_u32 s54, s54, s55")
    a("s_lshr_b32 s55, s53, 2")
    a("s_lshl_b32 s56, s55, 3")
    a("s_add_u32 s56, s56, s3")
    a("s_lshl_b32 s57, s54, 16")
    a("s_lshl_b32 s58, s56, 10")
    a("s_add_u32 s57, s57, s58")
    a("s_lshl_b32 s58, s3, 11")
    a("s_lshl_b32 s59, s54, 17")
    a("s_add_u32 s59, s59, s58")
    a(f"s_add_u32 s59, s59, {WS_KV - WS_Q}")
    a("s_lshl_b32 s60, s52, 5")
    a("s_lshr_b32 s61, s3, 1")
    a("s_add_u32 s60, s60, s61")
    a("s_lshl_b32 s60, s60, 7")
    a(f"s_add_u32 s60, s60, {F_QKV}")
    a("s_lshl_b32 s61, s55, 9")
    a("v_and_b32 v110, 1, v1")
    a("v_add_u32 v110, 1, v110")
    a("v_lshlrev_b32 v110, 15, v110")
    a("v_bfe_u32 v109, v1, 1, 2")
    a("v_lshl_add_u32 v112, v109, 9, v110")
    a("s_and_b32 s63, s3, 3")
    a("s_lshr_b32 s62, s3, 1")
    a("s_sub_u32 s63, s63, s62")
    a("s_lshl_b32 s63, s63, 7")
    a("v_add_u32 v110, s63, v112")
    a("v_cmp_ne_u32 vcc, 0, v109")
    a("s_nop 0")
    a("v_cndmask_b32 v112, v112, v110, vcc")
    a("v_mov_b32 v110, s61")
    a("v_cmp_eq_u32 vcc, 3, v109")
    a("s_nop 0")
    a("v_cndmask_b32 v112, v112, v110, vcc")
    a("v_lshrrev_b32 v3, 5, v1")
    a(f"v_lshlrev_b32 v{vL16}, 4, v1")
    a("v_lshlrev_b32 v3, 8, v3")
    a("v_and_b32 v104, 15, v1")
    a("v_lshl_add_u32 v3, v104, 4, v3")
    a(f"v_add_u32 v{vLV}, 1024, v3")
    a(f"v_mov_b32 v{vK}, v{vL16}")
    a(f"v_mov_b32 v{vV}, v{vLV}")
    a("s_mov_b32 s40, 0x0000ffff")
    a("s_mov_b32 s41, 0x0000ffff")
    a(f"v_and_b32 v{vOne}, 27, v1")
    a(f"v_cmp_eq_u32 vcc, 16, v{vOne}")
    a(f"v_mov_b32 v{vOne}, 0x3f803f80")
    a(f"v_cndmask_b32 v{vOne}, 0, v{vOne}, vcc")
    for i in range(16):
        a(f"v_mov_b32 v{Vb+i}, v{vOne}")
    for i in range(16):
        a(f"v_mov_b32 v{O+i}, 0")
    for i in range(4):
        a(f"v_mov_b32 v{P+4+i}, 0")
    a("s_lshl_b32 s63, s3, 2")
    a(f"s_add_u32 s63, s63, {L_C0F}")
    a("v_mov_b32 v108, s63")
    a("v_mov_b32 v109, 1")
    a(f"v_and_b32 v{vF}, 7, v1")
    a(f"v_lshlrev_b32 v{vF}, 2, v{vF}")
    a(f"v_add_u32 v{vF}, {L_C0F}, v{vF}")
    a("v_and_b32 v111, 3, v1")
    a("v_lshlrev_b32 v111, 2, v111")
    a(f"v_add_u32 v111, {L_KVF}, v111")
    KW, VW = 32768, 65536
    poll(a, "A_POLL", 1, 112, 36, "s60", S, vTag, 62, opt("as", 2), mask=0xc3, save=61)
    stamp(a, 4)
    a("s_mov_b32 m0, s58")
    a("s_setprio 2")
    a(f"buffer_load_dwordx4 v{vL16}, {sr(28)}, s59 offen sc1 lds")
    a(f"buffer_load_dwordx4 {vr(Q,4)}, v{vL16}, {sr(28)}, s57 offen sc1")
    a(f"buffer_load_dwordx4 v{vL16}, {sr(28)}, s59 offen offset:1024 sc1 lds")
    a("s_waitcnt vmcnt(0)")
    a("ds_write_b32 v108, v109")
    lds_spin(a, "A_C0", vF, 0, 1, 110, 62)
    a("s_cmp_lt_u32 s3, 4")
    a("s_cbranch_scc1 A_C12")
    a("s_cmp_eq_u32 s61, 0")
    a("s_cbranch_scc1 A_POLL2_X")
    poll(a, "A_POLL2", 1, 112, 36, "s60", S, vTag, 62, 2)
    a("s_sub_u32 s59, s59, s58")
    a("s_and_b32 s58, s3, 3")
    a("s_lshl_b32 s58, s58, 12")
    a("s_add_u32 s59, s59, s58")
    for c in (1, 2):
        a(f"s_add_u32 m0, s58, {16384*c}")
        a("s_add_u32 s59, s59, 16384")
        for n in range(4):
            a(f"buffer_load_dwordx4 v{vL16}, {sr(28)}, s59 offen offset:{1024*n} sc1 lds")
    a("s_waitcnt vmcnt(0)")
    a(f"ds_write_b32 v108, v109 offset:{L_C1F-L_C0F-16}")
    a("A_C12:")
    stamp(a, 5)

    def rdK(buf, off):
        a(f"ds_read_b128 {vr(Kb+4*buf,4)}, v{vK} offset:{off}")

    def rdV(buf, off):
        a("s_mov_b64 exec, s[40:41]")
        a(f"ds_read_b128 {vr(Vb+8*buf,4)}, v{vV} offset:{off}")
        a(f"ds_read_b128 {vr(Vb+8*buf+4,4)}, v{vV} offset:{off+512}")
        a("s_mov_b64 exec, -1")

    def setC(src):
        a(f"v_mov_b32 v{src+1}, v{src}")
        a(f"v_permlane32_swap_b32 v{src}, v{src+1}")
        a(f"v_max_f32 v{src}, v{src}, v{src+1}")
        a(f"v_sub_f32 v{C}, 0, v{src}")
        for i in range(1, 16):
            a(f"v_mov_b32 v{C+i}, v{C}")

    srd(a, 32, pWS, 2 * MB, WS_O)
    rdK(0, 0)
    rdK(1, 2048)
    rdV(0, 0)
    a("s_waitcnt lgkmcnt(3)")
    mfma(a, S, Kb, Q, "0")
    a(f"v_max3_f32 v{S}, v{S}, v{S+1}, v{S+2}")
    for i in range(3, 15, 2):
        a(f"v_max3_f32 v{S}, v{S}, v{S+i}, v{S+i+1}")
    a(f"v_max_f32 v{S}, v{S}, v{S+15}")
    setC(S)
    mfma(a, S, Kb, Q, C)
    a("s_mov_b32 s43, 16384")
    a("s_mov_b32 s44, 8")
    a(f"s_mov_b32 s45, {(1<<8)|(1<<6)|(1<<PR1)|(1<<PR0)}")

    def tile(i):
        b = i % 2
        Sc, Sn = S + 16 * b, S + 16 * (1 - b)
        e = lambda k: a(f"v_exp_f32 v{Sc+k}, v{Sc+k}")
        c = lambda k: a(f"v_cvt_pk_bf16_f32 v{P+k}, v{Sc+2*k}, v{Sc+2*k+1}")
        e(0); e(1)
        mfma(a, O, Vb + 8 * (1 - b) + 4, P + 4)
        for k in range(2, 8):
            e(k)
        a("s_waitcnt lgkmcnt(2)")
        mfma(a, Sn, Kb + 4 * (1 - b), Q, C)
        if i == 6:
            a("s_bitcmp1_b32 s45, s44")
            a(f"v_add_u32 v{vK}, s43, v{vL16}")
            a("s_cbranch_scc1 A_EVENT")
            a("A_BACK:")
        rdK(b, ((i + 2) % 8) * 2048)
        for k in range(4):
            c(k)
        for k in range(8, 12):
            e(k)
        a("s_waitcnt lgkmcnt(1)")
        mfma(a, O, Vb + 8 * b, P)
        if i == 7:
            a(f"v_add_u32 v{vV}, s43, v{vLV}")
            a("s_add_u32 s43, s43, 16384")
            a("s_and_b32 s43, s43, 0x1ffff")
        rdV(1 - b, ((i + 1) % 8) * 2048)
        for k in range(12, 16):
            e(k)
        if i == 7:
            a("s_sub_u32 s44, s44, 1")
            a("s_cmp_lg_u32 s44, 0")
        for k in range(4, 8):
            c(k)

    a("s_nop 7")
    a.raw(".p2align 6")
    a("A_LOOP:")
    for i in range(8):
        tile(i)
    a("s_cbranch_scc1 A_LOOP")
    stamp(a, 7)
    a("s_nop 1")
    mfma(a, O, Vb + 8 + 4, P + 4)
    a("s_waitcnt lgkmcnt(0)")
    a(f"v_mov_b32 v{S+2}, {f32(2.0**30)}")
    a(f"v_mov_b32 v{S+3}, {f32(2.0**120)}")
    a("s_lshr_b32 s59, s56, 1")
    a("s_lshl_b32 s59, s59, 2")
    a("s_and_b32 s60, s53, 3")
    a("s_add_u32 s59, s59, s60")
    a("s_lshl_b32 s59, s59, 3")
    a("s_add_u32 s59, s59, s52")
    a("s_lshl_b32 s59, s59, 1")
    a("s_and_b32 s60, s3, 1")
    a("s_add_u32 s59, s59, s60")
    a("s_lshl_b32 s59, s59, 7")
    a(f"s_add_u32 s59, s59, {F_O}")
    a(f"v_rcp_f32 v{S}, v{O+8}")
    a(f"v_max3_f32 v{S+1}, |v{O}|, |v{O+1}|, |v{O+2}|")
    a(f"v_max3_f32 v{S+1}, v{S+1}, |v{O+3}|, |v{O+4}|")
    a(f"v_max3_f32 v{S+1}, v{S+1}, |v{O+5}|, |v{O+6}|")
    a(f"v_max_f32 v{S+1}, v{S+1}, |v{O+7}|")
    a(f"v_cmp_nle_f32 vcc, v{O+8}, v{S+2}")
    a(f"v_cmp_nle_f32 s[46:47], v{S+1}, v{S+3}")
    a("s_or_b64 vcc, vcc, s[46:47]")
    a(f"ds_write_b32 v108, v109 offset:{L_DONE-L_C0F}")
    a("s_cbranch_vccnz A_SLOW")
    a("A_OUT:")
    for i in range(8):
        a(f"v_mul_f32 v{O+i}, v{O+i}, v{S}")
    for i in range(4):
        a(f"v_cvt_pk_bf16_f32 v{P+i}, v{O+2*i}, v{O+2*i+1}")
    a(f"buffer_store_dwordx4 {vr(P,4)}, v{vL16}, {sr(32)}, s57 offen sc1")
    publish(a, 36, 59, vTag, 110)
    stamp(a, 8)
    if "p1st" in OPT:
        PROF = True
    a("s_cmp_lt_u32 s3, 4")
    a("s_cbranch_scc1 P3_LOAD")
    endprof(a)
    a("END:")
    a("s_endpgm")
    a("A_EVENT:")
    a("s_cmp_eq_u32 s44, 8")
    a("s_cbranch_scc0 A_EV1")
    if "evst" in OPT:
        stamp(a, 1)
    lds_spin(a, "A_KVW1", 111, L_C1F - L_KVF, 1, 110, 62, 2)
    if "evst" in OPT:
        stamp(a, 3)
    a("s_branch A_BACK")
    a("A_EV1:")
    a("s_cmp_eq_u32 s44, 6")
    a("s_cbranch_scc0 A_EV2")
    if "evst" in OPT:
        stamp(a, 4)
    lds_spin(a, "A_KVW2", 111, 0, 1, 110, 62, 2)
    if "p1st" not in OPT:
        stamp(a, 6)
    a("s_branch A_BACK")
    a("A_EV2:")
    a("s_setprio 1")
    a(f"ds_write_b32 v108, v109 offset:{L_PAST-L_C0F}")
    a(f"s_cmp_eq_u32 s44, {PR1}")
    a("s_cbranch_scc1 A_BACK")
    a("s_setprio 0")
    a("s_branch A_BACK")
    a("A_SLOW:")
    a("s_lshl_b32 s63, s54, 17")
    a(f"s_add_u32 s63, s63, {WS_KV - WS_Q}")
    a("s_mov_b32 s61, s63")
    a(f"v_mov_b32 v{P}, 0xff800000")
    a("s_mov_b32 s44, 64")
    a("A_SLOWL:")
    a(f"buffer_load_dwordx4 {vr(Kb,4)}, v{vL16}, {sr(28)}, s61 offen sc1")
    a("s_add_u32 s61, s61, 2048")
    a("s_waitcnt vmcnt(0)")
    mfma(a, S, Kb, Q, "0")
    a("s_nop 15")
    for i in range(0, 16, 2):
        a(f"v_max3_f32 v{P}, v{P}, v{S+i}, v{S+i+1}")
    a("s_sub_u32 s44, s44, 1")
    a("s_cmp_lg_u32 s44, 0")
    a("s_cbranch_scc1 A_SLOWL")
    setC(P)
    for i in range(16):
        a(f"v_mov_b32 v{O+i}, 0")
    a("s_mov_b32 s44, 64")
    a("A_SLOW2:")
    a(f"buffer_load_dwordx4 {vr(Kb,4)}, v{vL16}, {sr(28)}, s63 offen sc1")
    a("s_mov_b64 exec, s[40:41]")
    a(f"buffer_load_dwordx4 {vr(Vb,4)}, v{vLV}, {sr(28)}, s63 offen sc1")
    a(f"buffer_load_dwordx4 {vr(Vb+4,4)}, v{vLV}, {sr(28)}, s63 offen offset:512 sc1")
    a("s_mov_b64 exec, -1")
    a("s_add_u32 s63, s63, 2048")
    a("s_waitcnt vmcnt(0)")
    mfma(a, S, Kb, Q, C)
    a("s_nop 15")
    for i in range(16):
        a(f"v_exp_f32 v{S+i}, v{S+i}")
    for i in range(8):
        a(f"v_cvt_pk_bf16_f32 v{P+i}, v{S+2*i}, v{S+2*i+1}")
    mfma(a, O, Vb, P)
    mfma(a, O, Vb + 4, P + 4)
    a("s_sub_u32 s44, s44, 1")
    a("s_cmp_lg_u32 s44, 0")
    a("s_nop 7")
    a("s_cbranch_scc1 A_SLOW2")
    a("s_nop 15")
    a(f"v_rcp_f32 v{S}, v{O+8}")
    a("s_nop 1")
    a("s_branch A_OUT")

    a("P3_LOAD:")
    vT0, vT1 = 4, 5
    gemm_src(a, 1024, vT0, vT1, 6, 7)
    a("s_lshl_b32 s54, s52, 2")
    a("s_lshr_b32 s55, s53, 3")
    a("s_add_u32 s54, s54, s55")
    a("s_and_b32 s56, s53, 7")
    a("s_lshl_b32 s57, s55, 1")
    a("s_add_u32 s57, s57, s56")
    a("s_lshl_b32 s58, s3, 14")
    a("s_lshl_b32 s59, s56, 7")
    a("s_add_u32 s58, s58, s59")
    a("s_lshl_b32 s59, s3, 16")
    a("s_lshl_b32 s60, s54, 11")
    a("s_add_u32 s59, s59, s60")
    a("s_lshl_b32 s60, s3, 11")
    srd(a, 28, pWO, 512 * 1024)
    a("s_lshl_b32 s61, s54, 2")
    a("s_add_u32 s61, s61, s3")
    a("s_lshl_b32 s61, s61, 11")
    a(f"s_add_u32 s61, s61, {F_O}")
    lds_spin(a, "P3_PAST", vF, L_PAST - L_C0F, 1, 110, 62, 2)
    for c in range(8):
        a(f"s_add_u32 s63, s57, {c}")
        a("s_and_b32 s63, s63, 7")
        a("s_lshl_b32 s63, s63, 16")
        a(f"s_add_u32 m0, s60, {c*8192}")
        a("s_add_u32 s63, s63, s58")
        a(f"buffer_load_dwordx4 v{vT0}, {sr(28)}, s63 offen lds")
        a(f"s_add_u32 m0, s60, {c*8192 + 1024}")
        a("s_nop 0")
        a(f"buffer_load_dwordx4 v{vT1}, {sr(28)}, s63 offen lds")
    lds_spin(a, "P3_DONE", vF, L_DONE - L_C0F, 1, 110, 62, 2)
    stamp(a, 9)
    a("v_and_b32 v6, 15, v1")
    a("v_lshlrev_b32 v6, 7, v6")
    poll(a, "P3_POLL", 1, 6, 36, "s61", 8, vTag, 62, 2)
    stamp(a, 10)
    for c in range(8):
        a(f"s_add_u32 s63, s57, {c}")
        a("s_and_b32 s63, s63, 7")
        a("s_lshl_b32 s63, s63, 18")
        a(f"s_add_u32 m0, s60, {c*8192 + 65536}")
        a("s_add_u32 s63, s63, s59")
        a(f"buffer_load_dwordx4 v{vL16}, {sr(32)}, s63 offen sc1 lds")
        a(f"buffer_load_dwordx4 v{vL16}, {sr(32)}, s63 offen offset:1024 sc1 lds")
        if c >= 3 and c % 2 == 1:
            a("s_waitcnt vmcnt(4)")
            a("s_barrier")
    a("s_waitcnt vmcnt(0)")
    a("s_barrier")
    stamp(a, 11)
    endprof(a)
    a("s_endpgm")

    a("P1_M:")
    PD = 3
    vT0, vT1, vD0, vD1, vR0, vR1 = 4, 5, 6, 7, 8, 9
    Tf, Df, acc, tmp = 12, 28, 64, 128
    vKF = 136
    a("s_sub_u32 s48, s3, 8")
    a("s_lshl_b32 s49, s48, 13")
    a(f"s_add_u32 s49, s49, {MREG}")
    a("v_mov_b32 v10, s49")
    a("v_mov_b32 v4, 0")
    a("v_mov_b32 v5, 0")
    for i in range(4):
        a(f"v_mov_b32 v{12+i}, 0")
    a("ds_write_b128 v10, v[12:15] offset:6144")
    a("ds_write_b128 v10, v[12:15] offset:6160")
    a("v_min_u32 v3, 39, v1")
    a("v_lshlrev_b32 v3, 2, v3")
    a(f"v_add_u32 v3, {LF}, v3")
    a("ds_write_b32 v3, v12")
    a(f"v_mov_b32 v3, {F_E}")
    a("s_mov_b32 s60, 0x9e3779b1")
    a(f"v_mov_b32 v6, {L_TAG}")
    a("s_waitcnt lgkmcnt(0)")
    srd(a, 36, pWS, SZ_F, WS_F)
    a(f"buffer_load_dwordx2 {vr(vTag,2)}, v3, {sr(36)}, 0 offen sc1")
    if "nowt" not in OPT:
        a("s_cmp_lt_u32 s53, 24")
        a("s_cbranch_scc1 SVC_W2")
        a("s_and_b32 s56, s53, 7")
        a("s_lshl_b32 s56, s56, 2")
        a("s_add_u32 s56, s56, s48")
        a("s_mul_i32 s57, s56, 43")
        a("s_lshr_b32 s57, s57, 8")
        a("s_mul_i32 s58, s57, 6")
        a("s_sub_u32 s58, s56, s58")
        a("s_lshl_b32 s57, s57, 1")
        a("s_add_u32 s57, s57, s58")
        a("s_add_u32 s57, s57, 1")
        a("s_and_b32 s57, s57, 7")
        a("s_mul_i32 s57, s57, 196608")
        a("s_and_b32 s59, s52, 1")
        a("s_mul_i32 s59, s59, 6")
        a("s_add_u32 s58, s58, s59")
        a("s_lshl_b32 s58, s58, 8")
        a("s_add_u32 s57, s57, s58")
        srd(a, 32, pWQKV, 512 * 3072)
        a("v_mul_u32_u24 v7, 3072, v1")
        a("s_cmp_ge_u32 s56, 24")
        a("s_cbranch_scc1 SVC_W2")
        a(f"buffer_load_dword v8, v7, {sr(32)}, s57 offen{NTW}")
        a(f"buffer_load_dword v9, v7, {sr(32)}, s57 offen offset:128{NTW}")
        a("SVC_W2:")
    a("s_and_b32 s54, s52, 1")
    a("s_lshl_b32 s54, s54, 2")
    a("s_and_b32 s55, s53, 3")
    a("s_add_u32 s54, s54, s55")
    a("s_lshr_b32 s55, s53, 2")
    a("s_lshr_b32 s56, s52, 1")
    a("s_mul_i32 s56, s56, 11")
    a("s_add_u32 s68, s56, 12")
    a("s_lshr_b32 s68, s68, 1")
    a("s_add_u32 s56, s56, 1")
    a("s_lshr_b32 s56, s56, 1")
    a("s_add_u32 s56, s56, s55")
    a("s_and_b32 s50, s48, 1")
    a("s_lshr_b32 s51, s48, 1")
    a("v_lshlrev_b32 v2, 4, v1")
    a("v_lshrrev_b32 v10, 5, v1")
    a("v_and_b32 v11, 31, v1")
    a("v_lshlrev_b32 v11, 4, v11")
    a("v_lshl_add_u32 v3, v10, 13, v11")
    a("s_lshl_b32 s57, s48, 2")
    a(f"s_add_u32 s57, s57, {L_KVF}")
    a(f"v_mov_b32 v{vKF}, s57")
    a(f"v_mov_b32 v{vKF+1}, 1")
    srd(a, 28, pW1, 2048 * 2752)
    srd(a, 32, pWS, 2 * MB, WS_HT)
    srd(a, 40, pWS, 4 * MB, WS_KV)
    a("s_waitcnt vmcnt(0)")
    a(f"v_mul_lo_u32 v{vTag}, v{vTag}, s60")
    a(f"v_add_u32 v{vTag+1}, 0x7f4a7c15, v{vTag+1}")
    a(f"v_add_u32 v{vTag}, 1, v{vTag}")
    a(f"ds_write_b64 v6, {vr(vTag,2)}")
    a("s_waitcnt lgkmcnt(0)")
    a("s_barrier")
    a("s_setprio 3")
    a("s_cmp_ge_u32 s53, 24")
    a("s_cbranch_scc1 M_SVC")
    for c in range(7):
        a("s_barrier")
    stamp(a, 1)

    def htpoll(lab):
        a("s_lshl_b32 s61, s48, 9")
        a("v_lshlrev_b32 v10, 3, v1")
        poll(a, lab, 1, 10, 36, "s61", tmp, vTag, 62, 16)

    def kvrest(lab):
        lds_wait(a, lab + "D", L_C0F, 8, tmp + 4, tmp, 62, 2)
        a("s_lshl_b32 s44, s52, 5")
        a("s_add_u32 s44, s44, s48")
        a("s_lshl_b32 s44, s44, 7")
        a(f"s_add_u32 s44, s44, {F_QKV + 32768}")
        a(f"v_and_b32 v{tmp+4}, 7, v1")
        a(f"v_lshlrev_b32 v{tmp+4}, 9, v{tmp+4}")
        a(f"v_bfe_u32 v{tmp+5}, v1, 3, 1")
        a(f"v_lshl_add_u32 v{tmp+4}, v{tmp+5}, 15, v{tmp+4}")
        poll(a, lab + "C", 1, tmp + 4, 36, "s44", tmp, vTag, 62, 2)
        a("s_lshl_b32 s44, s52, 2")
        a("s_and_b32 s45, s53, 3")
        a("s_add_u32 s44, s44, s45")
        a("s_lshl_b32 s44, s44, 17")
        a("s_lshl_b32 s46, s48, 12")
        a("s_lshr_b32 s45, s53, 2")
        a("s_min_u32 s45, s45, 4")
        a("s_add_u32 s45, s45, 2")
        a("s_lshl_b32 s45, s45, 14")
        for j in range(5):
            a("s_add_u32 s45, s45, 16384")
            a("s_cmp_ge_u32 s45, 0x20000")
            a("s_cselect_b32 s45, 49152, s45")
            a("s_add_u32 s47, s45, s46")
            a("s_mov_b32 m0, s47")
            a("s_add_u32 s47, s47, s44")
            for n in range(4):
                a(f"buffer_load_dwordx4 v2, {sr(40)}, s47 offen offset:{n*1024} sc1 lds")

    a("s_cmp_ge_u32 s56, s68")
    a("s_cbranch_scc1 M_IDLE")
    a(f"s_mul_i32 s57, s48, {512*2752}")
    a("s_lshl_b32 s58, s56, 7")
    a("s_add_u32 s57, s57, s58")
    a("s_lshl_b32 s58, s48, 19")
    a("s_lshl_b32 s59, s54, 10")
    a("s_add_u32 s58, s58, s59")
    a("s_lshl_b32 s60, s51, 6")
    a("s_lshl_b32 s61, s50, 9")
    gemm_src(a, 2752, vT0, vT1, 10, 11)
    a(f"v_xor_b32 v{vD0}, s61, v3")
    a(f"v_xor_b32 v{vD1}, 512, v{vD0}")
    G1 = opt("g1_", 8)
    g1 = Gemm(a, 32, PD, 28, 32, 57, 58, 49, 2752, 16384, True, vT0, vT1, vD0, vD1, vR0, vR1, 512, Tf, Df, acc, " sc1", 63, G1)
    a("s_and_b32 s63, s53, 3")
    a(f"s_mul_i32 s63, s63, {max(1, G1//4)}")
    a(f"s_mul_i32 s62, s55, {max(1, G1//6)}")
    a("s_add_u32 s63, s63, s62")
    gemm_rd(a, 8, vR0, vR1, 49, 60, 10, 11)
    GATE = opt("gate", 3)
    if GATE:
        lds_wait(a, "M_GATE", (L_ISS, L_PUB, L_C0F)[GATE - 1], 4 if GATE < 3 else 8, 10, 11, 62, 2)
    if "kvpre" in OPT:
        htpoll("M_HT")
        kvrest("M_KV0")
        g1.log.extend([("K", 0)] * 20)
    else:
        htpoll("M_HT")
    stamp(a, 2)
    g1.pro_T()
    g1.pro_D()
    KVS = opt("kvs", 0)

    def hook_kv():
        stamp(a, 3)
        a("s_setprio 3")
        kvrest("M_KV1")
        a("s_setprio 0")
        g1.log.extend([("K", 0)] * 20)
        stamp(a, 4)

    def hook_kvf():
        g1.wait_for([("K", 0)])
        a(f"ds_write_b32 v{vKF}, v{vKF+1}")

    if "kvpre" in OPT:
        hook_kvf()
        stamp(a, 3)
        g1.main({16: lambda: stamp(a, 4)})
    else:
        g1.main({KVS: hook_kv, KVS + 3: hook_kvf})
    stamp(a, 5)
    srd(a, 28, pB1, 2752)
    srd(a, 32, pWS, SZ_U, WS_U)
    a("s_lshl_b32 s61, s56, 7")
    a("s_add_u32 s61, s61, s60")
    a("v_lshrrev_b32 v10, 5, v1")
    a("v_lshlrev_b32 v10, 3, v10")
    for g in range(4):
        a(f"buffer_load_dwordx2 {vr(Df+2*g,2)}, v10, {sr(28)}, s61 offen offset:{16*g}")
    mreduce(a, "M1", acc, 49, 0, 10, 11, tmp, Df + 16, 62)
    a("s_mov_b32 s61, 0xffff0000")
    a("s_waitcnt vmcnt(0)")
    for i in range(8):
        a(f"v_lshlrev_b32 v{acc+16+2*i}, 16, v{Df+i}")
        a(f"v_and_b32 v{acc+16+2*i+1}, s61, v{Df+i}")
    for i in range(0, 16, 2):
        a(f"v_pk_add_f32 {vr(acc+i,2)}, {vr(acc+i,2)}, {vr(acc+16+i,2)}")
    gelu(a, acc, acc + 16, acc + 32, 16, 61)
    for i in range(8):
        a(f"v_cvt_pk_bf16_f32 v{Tf+i}, v{acc+2*i}, v{acc+2*i+1}")
    a("s_lshl_b32 s61, s56, 16")
    a("s_lshl_b32 s62, s51, 15")
    a("s_add_u32 s61, s61, s62")
    a("s_add_u32 s61, s61, s59")
    a("s_add_u32 s62, s61, 16384")
    a(f"buffer_store_dwordx4 {vr(Tf,4)}, v{vD0}, {sr(32)}, s61 offen sc1")
    a(f"buffer_store_dwordx4 {vr(Tf+4,4)}, v{vD0}, {sr(32)}, s62 offen sc1")
    a("s_lshl_b32 s61, s56, 2")
    a("s_add_u32 s61, s61, s48")
    a("s_lshl_b32 s61, s61, 3")
    a("s_add_u32 s61, s61, s59")
    a("s_lshl_b32 s61, s61, 4")
    a(f"s_add_u32 s61, s61, {F_U}")
    publish(a, 36, 61, vTag, 10)
    a("s_branch M_2")

    a("M_SVC:")
    stamp(a, 1)
    a("s_and_b32 s57, s53, 7")
    a("s_lshl_b32 s58, s48, 5")
    a("s_add_u32 s57, s57, s58")
    a("s_sub_u32 s58, s56, s55")
    a("s_lshl_b32 s58, s58, 7")
    a(f"s_mul_i32 s59, s57, {16*2752}")
    a("s_add_u32 s58, s58, s59")
    a("s_lshl_b32 s59, s57, 14")
    a("s_and_b32 s60, s52, 1")
    a("s_lshl_b32 s60, s60, 12")
    a("s_add_u32 s59, s59, s60")
    a("v_lshrrev_b32 v4, 3, v1")
    a("v_mul_u32_u24 v4, 2752, v4")
    a("v_and_b32 v5, 7, v1")
    a("v_min_u32 v5, 6, v5")
    a("v_lshl_add_u32 v4, v5, 7, v4")
    a(f"v_add_u32 v5, {8*2752}, v4")
    a("v_lshrrev_b32 v6, 5, v1")
    a("v_lshlrev_b32 v6, 13, v6")
    a("v_and_b32 v7, 31, v1")
    a("v_lshl_add_u32 v6, v7, 7, v6")

    def tw(g):
        a(f"buffer_load_dword v{Tf+3*g}, v4, {sr(28)}, s58 offen{NTM}")
        a(f"buffer_load_dword v{Tf+3*g+1}, v5, {sr(28)}, s58 offen{NTM}")
        a(f"s_add_u32 s58, s58, {128*2752}")

    def th(g):
        a(f"buffer_load_dword v{Tf+3*g+2}, v6, {sr(32)}, s59 offen sc1")
        a(f"s_add_u32 s59, s59, {8*16384}")

    NE, NW = opt("ne", 0), opt("nw", 1)
    for g in range(NE):
        tw(g)
    a("s_barrier")
    stamp(a, 2)
    for g in range(NE, NW):
        tw(g)
    a("s_waitcnt vmcnt(0)")
    a(f"ds_write_b32 v{vKF}, v{vKF+1} offset:{L_PUB-L_KVF}")
    stamp(a, 3)
    a("M_IDLE:")
    kvrest("M_KV2")
    a("s_waitcnt vmcnt(0)")
    a(f"ds_write_b32 v{vKF}, v{vKF+1}")
    stamp(a, 4)
    a("s_cmp_lt_u32 s53, 24")
    a("s_cbranch_scc1 M_IDLE2")
    htpoll("M_HT2")
    for g in range(4):
        th(g)
        if g + NW < 4:
            tw(g + NW)
    stamp(a, 5)
    srd(a, 28, pW2, 1376 * 4096)
    a("s_and_b32 s57, s53, 7")
    a("s_lshl_b32 s57, s57, 2")
    a("s_add_u32 s57, s57, s48")
    a(f"s_mul_i32 s58, s57, {43*4096}")
    a("s_lshl_b32 s59, s52, 9")
    a("s_add_u32 s58, s58, s59")
    a("v_lshrrev_b32 v10, 2, v1")
    a("v_lshlrev_b32 v10, 12, v10")
    a("v_and_b32 v11, 3, v1")
    a("v_lshl_add_u32 v10, v11, 7, v10")
    for j in range(3):
        a(f"buffer_load_dword v{Tf+12+j}, v10, {sr(28)}, s58 offen{NTM}")
        a("s_add_u32 s58, s58, 65536")
    srd(a, 28, pWO, 512 * 1024)
    a("s_lshl_b32 s58, s57, 14")
    a("v_lshlrev_b32 v10, 7, v1")
    a(f"buffer_load_dword v{Tf+15}, v10, {sr(28)}, s58 offen")
    a("s_add_u32 s58, s58, 8192")
    a(f"buffer_load_dword v{Tf+11}, v10, {sr(28)}, s58 offen")
    a("s_waitcnt vmcnt(0)")
    a("M_IDLE2:")
    srd(a, 32, pWS, SZ_U, WS_U)
    a("M_2:")
    stamp(a, 6)
    srd(a, 28, pW2, 1376 * 4096)
    a("s_and_b32 s54, s53, 7")
    a("s_lshr_b32 s55, s53, 3")
    a("s_lshl_b32 s56, s52, 2")
    a("s_add_u32 s56, s56, s55")
    a(f"s_mul_i32 s57, s48, {22*16*4096}")
    a("s_lshl_b32 s58, s56, 7")
    a("s_add_u32 s57, s57, s58")
    a(f"s_mul_i32 s58, s48, {22*16384}")
    a("s_lshl_b32 s59, s54, 10")
    a("s_add_u32 s58, s58, s59")
    a("s_lshl_b32 s60, s50, 6")
    a("s_lshl_b32 s61, s51, 9")
    gemm_src(a, 4096, vT0, vT1, 10, 11)
    a(f"v_xor_b32 v{vD0}, s61, v3")
    a(f"v_xor_b32 v{vD1}, 512, v{vD0}")
    g2 = Gemm(a, opt("m2n", 22), PD, 28, 32, 57, 58, 49, 4096, 16384, False, vT0, vT1, vD0, vD1, vR0, vR1, 1024, Tf, Df, acc, " sc1", 63, opt("g2_", 4))
    a("s_add_u32 s63, s55, s54")
    g2.pro_T()
    gemm_rd(a, 4, vR0, vR1, 49, 60, 10, 11)
    a("s_lshl_b32 s61, s2, 4")
    a("s_add_u32 s61, s61, s48")
    a("s_cmp_lg_u32 s61, 0")
    a("s_cbranch_scc1 M_NOE")
    a("v_lshrrev_b32 v10, 4, v1")
    a("v_lshlrev_b32 v10, 13, v10")
    a("v_and_b32 v11, 15, v1")
    a("v_lshl_add_u32 v10, v11, 8, v10")
    for t in range(3):
        a(f"s_mov_b32 s61, {F_QKV + 32768*t}")
        poll(a, f"M_E{t}", 1, 10, 36, "s61", tmp, vTag, 62, 8)
    a("v_lshlrev_b32 v10, 5, v1")
    poll(a, "M_E3", 1, 10, 36, "0", tmp, vTag, 62, 8)
    a("v_lshlrev_b32 v10, 20, v1")
    a(f"s_mov_b32 s61, {F_E}")
    a(f"buffer_store_dwordx2 {vr(vTag,2)}, v10, {sr(36)}, s61 offen sc1")
    a("M_NOE:")
    a("s_mul_i32 s61, s48, 11")
    a("s_lshr_b32 s61, s61, 1")
    a("s_lshl_b32 s61, s61, 5")
    a("s_add_u32 s61, s61, s59")
    a("s_lshl_b32 s61, s61, 4")
    a(f"s_add_u32 s61, s61, {F_U}")
    a("v_min_u32 v10, 23, v1")
    a("v_lshlrev_b32 v10, 7, v10")
    poll(a, "M_U", 1, 10, 36, "s61", tmp, vTag, 62, 8)
    stamp(a, 7)
    g2.pro_D()
    g2.main()
    stamp(a, 8)
    srd(a, 28, pB2, 4096)
    srd(a, 32, pWS, 8192, WS_G)
    a("s_lshl_b32 s61, s56, 7")
    a("s_add_u32 s61, s61, s60")
    a("s_lshl_b32 s62, s61, 1")
    a("v_and_b32 v10, 31, v1")
    a("v_lshlrev_b32 v11, 2, v10")
    a("v_lshlrev_b32 v10, 1, v10")
    a(f"buffer_load_ushort v{Df}, v10, {sr(28)}, s61 offen")
    a(f"buffer_load_dword v{Df+1}, v11, {sr(32)}, s62 offen sc1")
    mreduce(a, "M2", acc, 49, 16, 10, 11, tmp, Df + 16, 62)
    a("s_waitcnt vmcnt(0)")
    G, Y = Df + 1, acc
    a(f"v_lshlrev_b32 v{Df}, 16, v{Df}")
    a(f"v_sub_f32 v{Df+2}, 1.0, v{G}")
    a(f"v_mul_f32 v{Df}, v{Df}, v{Df+2}")
    for i in range(16):
        a(f"v_fma_f32 v{Y+i}, v{Y+i}, v{Df+2}, v{Df}")
    stamp(a, 9)

    vR, vO = 4, 5
    Wf, Of, A3 = 96, 128, 80
    a("s_lshl_b32 s60, s51, 6")
    gemm_rd(a, 4, vR, None, None, 60, 10, 11)
    a("s_lshl_b32 s60, s50, 10")
    a("s_add_u32 s60, s60, 65536")
    a(f"v_add_u32 v{vO}, s60, v2")
    srd(a, 28, pOUT, 2 * MB)
    a("v_and_b32 v9, 31, v1")
    a("v_lshlrev_b32 v9, 10, v9")
    a("v_lshrrev_b32 v10, 5, v1")
    a("v_lshl_add_u32 v9, v10, 4, v9")
    a("s_lshl_b32 s57, s56, 16")
    a("s_lshl_b32 s58, s50, 15")
    a("s_add_u32 s57, s57, s58")
    a("s_lshl_b32 s58, s54, 7")
    a("s_add_u32 s57, s57, s58")
    a("s_lshl_b32 s58, s51, 6")
    a("s_add_u32 s57, s57, s58")

    def rd3(t):
        off = t * 2048
        r, o = vR, vO
        b = t % 8
        a(f"ds_read_b64_tr_b16 {vr(Wf+4*b,2)}, v{r} offset:{off}")
        a(f"ds_read_b64_tr_b16 {vr(Wf+4*b+2,2)}, v{r} offset:{off+1024}")
        a(f"ds_read_b128 {vr(Of+4*b,4)}, v{o} offset:{off}")

    for c in range(4):
        a("s_barrier")
        if c in (0, 3):
            stamp(a, 10 + c // 3)
        for j in range(4):
            rd3(8 * c + j)
        for j in range(8):
            t = 8 * c + j
            if j + 4 < 8:
                rd3(t + 4)
            a(f"s_waitcnt lgkmcnt({3*min(4, 7-j)})")
            mfma(a, A3, Wf + 4 * j, Of + 4 * j, "0" if t == 0 else None)
    stamp(a, 12)
    for i in range(16):
        a(f"v_fmac_f32 v{Y+i}, v{A3+i}, v{G}")
    for i in range(8):
        a(f"v_cvt_pk_bf16_f32 v{Tf+i}, v{Y+2*i}, v{Y+2*i+1}")
    for p in range(2):
        a(f"v_permlane32_swap_b32 v{Tf+4*p}, v{Tf+4*p+2}")
        a(f"v_permlane32_swap_b32 v{Tf+4*p+1}, v{Tf+4*p+3}")
        a(f"buffer_store_dwordx4 {vr(Tf+4*p,4)}, v9, {sr(28)}, s57 offen offset:{32*p}")
    endprof(a)
    a("s_endpgm")
    return dict(name=nm, vgpr=168, grid=256, block=768, lds=163840)


def build(path, verbose=False, aslist=False):
    ref = open("cdna_kernels/" + NAME + ".s.ref").read().split("\n")
    hdr = [l for l in ref if l.startswith(";") and "@launch" not in l and "Override launch" not in l and "grid=ceil" not in l]
    a = Asm()
    i = kernel(a)
    a.fix(verbose)
    s = "\n".join(hdr) + "\n"
    if aslist:
        s += f"; @launch kernel={i['name']} grid=({i['grid']},1,1) block=({i['block']},1,1) lds={i['lds']}\n"
    else:
        s += f"; @launch grid=({i['grid']},1,1) block=({i['block']},1,1) lds={i['lds']}\n"
    s += '.amdgcn_target "amdgcn-amd-amdhsa--gfx950"\n.text\n'
    s += a.text()
    s += '.section .rodata,"a"\n'
    s += f""".p2align 6
.amdhsa_kernel {i['name']}
  .amdhsa_next_free_vgpr {i['vgpr']}
  .amdhsa_next_free_sgpr {102 if PROF or opt('cal', -1) >= 0 else 70}
  .amdhsa_accum_offset {i['vgpr']}
  .amdhsa_group_segment_fixed_size 0
  .amdhsa_kernarg_size 96
  .amdhsa_user_sgpr_count 2
  .amdhsa_user_sgpr_kernarg_segment_ptr 1
  .amdhsa_system_sgpr_workgroup_id_x 1
.end_amdhsa_kernel
"""
    open(path, "w").write(s)


if __name__ == "__main__":
    out = sys.argv[1] if len(sys.argv) > 1 and not sys.argv[1][0] in "-+" else "cdna_kernels/" + NAME + ".s"
    PROF = "-p" in sys.argv
    OPT = set(x[1:] for x in sys.argv if x.startswith("+"))
    build(out, verbose="-v" in sys.argv, aslist="-l" in sys.argv)
```

```python
import sys, math, struct
from asmlib import Asm

NAME = "gated_mix__softmax_full_mha__mixer_token_mlp__prompt"
MB = 1 << 20
WS_Q, WS_KV, WS_HT, WS_U, WS_O, WS_G, WS_F = 0, 2 * MB, 6 * MB, 8 * MB, 10 * MB, 14 * MB, 15 * MB
SZ_U = 172 * 8192
F_HT, F_E, F_QKV, F_U, F_O = 0, 8192, 131072, 262144, 524288
SZ_F = 786432
PROF = False
OPT = set()
WS_P = 16 * MB
LOG2E = math.log2(math.e)
pX, pWQKV, pWO, pW1, pB1, pW2, pB2, pGW, pOUT, pWS = 4, 6, 8, 12, 14, 16, 18, 20, 22, 26
MREG = 131072
LF = MREG + 6144 + 64
L_KVF, L_PUB, L_C0F, L_DONE, L_PAST, L_C1F, L_ISS, L_TAG = LF, LF + 16, LF + 32, LF + 64, LF + 96, LF + 128, LF + 144, LF + 160
PR1, PR0 = 4, 2
pDBG = 24


def f32(x):
    return "0x%08x" % struct.unpack("<I", struct.pack("<f", x))[0]


def srd(a, d, base, size, add=0):
    if add:
        a(f"s_add_u32 s{d}, s{base}, {hex(add)}")
        a(f"s_addc_u32 s{d+1}, s{base+1}, 0")
    else:
        a(f"s_mov_b32 s{d}, s{base}")
        a(f"s_mov_b32 s{d+1}, s{base+1}")
    a(f"s_mov_b32 s{d+2}, {hex(size)}")
    a(f"s_mov_b32 s{d+3}, 0x20000")


def vr(b, n):
    return f"v[{b}:{b+n-1}]"


def sr(b, n=4):
    return f"s[{b}:{b+n-1}]"


def mfma(a, D, A, B, C=None):
    c = vr(D, 16) if C is None else (C if isinstance(C, str) else vr(C, 16))
    a(f"v_mfma_f32_32x32x16_bf16 {vr(D,16)}, {vr(A,4)}, {vr(B,4)}, {c}")


def MT():
    return "s_memrealtime" if "rt" in OPT else "s_memtime"


def stamp(a, i):
    if opt("cal", -1) == i:
        a("s_memrealtime s[70:71]")
    if opt("ca_", -1) == i:
        a("s_memtime s[76:77]")
    if opt("cb_", -1) == i:
        a("s_memtime s[78:79]")
    if PROF:
        a(f"{MT()} s[{72+2*i}:{73+2*i}]")


_cal = [0]


def endprof(a, n=12):
    if opt("cal", -1) >= 0:
        _cal[0] += 1
        L = f"CAL{_cal[0]}"
        if opt("cal", -1) == 13:
            a("s_memrealtime s[70:71]")
        a("s_cmp_lg_u32 s2, 3")
        a(f"s_cbranch_scc1 {L}_X")
        a(f"s_cmp_lg_u32 s3, {opt('cw', 0)}")
        a(f"s_cbranch_scc1 {L}_X")
        a("s_mov_b32 s74, 400000")
        if opt("ca_", -1) >= 0:
            a("s_waitcnt lgkmcnt(0)")
            a("s_sub_u32 s78, s78, s76")
            a("s_lshr_b32 s78, s78, 3")
            a("s_add_u32 s70, s70, s78")
            a("s_sub_u32 s70, s70, 5000")
        a(f"{L}:")
        a("s_memrealtime s[72:73]")
        a("s_waitcnt lgkmcnt(0)")
        a("s_sub_u32 s74, s74, 1")
        a(f"s_cbranch_scc1 {L}_X")
        a("s_sub_u32 s72, s72, s70")
        a("s_cmp_lt_u32 s72, %d" % (8500 if opt("ca_", -1) >= 0 else 3500))
        a(f"s_cbranch_scc1 {L}")
        a(f"{L}_X:")
    if not PROF:
        return
    a("s_waitcnt vmcnt(0)")
    a(f"{MT()} s[{72+2*(n+1)}:{73+2*(n+1)}]")
    a("s_memrealtime s[100:101]")
    a("s_mov_b64 exec, -1")
    srd(a, 28, pWS, MB, WS_P)
    a("s_lshl_b32 s52, s2, 4")
    a("s_add_u32 s52, s52, s3")
    a("s_lshl_b32 s52, s52, 7")
    a("s_waitcnt lgkmcnt(0)")
    a("v_mov_b32 v2, 0")
    a("v_mov_b32 v3, s70")
    a("buffer_store_dword v3, v2, s[28:31], s52 offen")
    a("v_mov_b32 v3, s100")
    a("buffer_store_dword v3, v2, s[28:31], s52 offen offset:4")
    for i in range(1, n + 2):
        a(f"s_sub_u32 s53, s{72+2*i}, s72")
        a("v_mov_b32 v3, s53")
        a(f"buffer_store_dword v3, v2, s[28:31], s52 offen offset:{4+4*i}")


def gemm_src(a, strideT, vT0, vT1, t0, t1):
    a(f"v_lshrrev_b32 v{t0}, 3, v1")
    a(f"v_mul_u32_u24 v{t0}, {strideT}, v{t0}")
    a(f"v_bfe_u32 v{t1}, v1, 4, 1")
    a(f"v_lshlrev_b32 v{t1}, 2, v{t1}")
    a(f"v_xor_b32 v{t1}, v{t1}, v1")
    a(f"v_and_b32 v{t1}, 7, v{t1}")
    a(f"v_lshl_add_u32 v{vT0}, v{t1}, 4, v{t0}")
    a(f"v_add_u32 v{vT1}, {8*strideT}, v{vT0}")


def gemm_rd(a, hmul, vR0, vR1, sL, sSwap, t0, t1):
    a(f"v_lshrrev_b32 v{t0}, 5, v1")
    a(f"v_mul_u32_u24 v{t0}, {hmul}, v{t0}")
    a(f"v_bfe_u32 v{t1}, v1, 2, 2")
    a(f"v_add_u32 v{t0}, v{t0}, v{t1}")
    a(f"v_lshlrev_b32 v{t0}, 7, v{t0}")
    a(f"v_bfe_u32 v{t1}, v1, 3, 1")
    a(f"v_lshl_add_u32 v{t0}, v{t1}, 6, v{t0}")
    a(f"v_bfe_u32 v{t1}, v1, 4, 1")
    a(f"v_lshl_add_u32 v{t0}, v{t1}, 5, v{t0}")
    a(f"v_and_b32 v{t1}, 3, v1")
    a(f"v_lshl_add_u32 v{t0}, v{t1}, 3, v{t0}")
    if sL is None:
        a(f"v_xor_b32 v{vR0}, s{sSwap}, v{t0}")
        return
    a(f"v_xor_b32 v{t0}, s{sSwap}, v{t0}")
    a(f"v_add_u32 v{vR0}, s{sL}, v{t0}")
    a(f"v_xor_b32 v{t0}, 64, v{t0}")
    a(f"v_add_u32 v{vR1}, s{sL}, v{t0}")


def lds_spin(a, lab, vaddr, off, want, vt, cnt, sleep=1):
    a(f"s_mov_b32 s{cnt}, 0x100000")
    a(f"{lab}:")
    a(f"ds_read_b32 v{vt}, v{vaddr} offset:{off}")
    a("s_waitcnt lgkmcnt(0)")
    a(f"v_cmp_ne_u32 vcc, {want}, v{vt}")
    a(f"s_sub_u32 s{cnt}, s{cnt}, 1")
    a(f"s_cbranch_scc1 {lab}_X")
    a(f"s_cbranch_vccz {lab}_X")
    a(f"s_sleep {sleep}")
    a(f"s_branch {lab}")
    a(f"{lab}_X:")


def poll(a, lab, n, vaddr, sF, soff, vt, vTag, cnt, sleep, extra=None, mask=None, save=None):
    a(f"s_mov_b32 s{cnt}, 0x40000")
    a(f"{lab}:")
    if n == 1:
        a(f"buffer_load_dwordx2 {vr(vt,2)}, v{vaddr}, {sr(sF)}, {soff} offen sc1")
    else:
        a(f"buffer_load_dwordx4 {vr(vt,4)}, v{vaddr}, {sr(sF)}, {soff} offen sc1")
    if n == 4:
        a(f"buffer_load_dwordx4 {vr(vt+4,4)}, v{vaddr}, {sr(sF)}, {soff} offen offset:16 sc1")
    a("s_waitcnt vmcnt(0)")
    if extra:
        a(extra)
    for i in range(2 * n):
        a(f"v_xor_b32 v{vt+i}, v{vt+i}, v{vTag + i % 2}")
    k = 2 * n
    i = 1
    while i < k:
        if i + 1 < k:
            a(f"v_or3_b32 v{vt}, v{vt}, v{vt+i}, v{vt+i+1}")
            i += 2
        else:
            a(f"v_or_b32 v{vt}, v{vt}, v{vt+i}")
            i += 1
    a(f"v_cmp_ne_u32 vcc, 0, v{vt}")
    a(f"s_sub_u32 s{cnt}, s{cnt}, 1")
    a(f"s_cbranch_scc1 {lab}_X")
    if mask is None:
        a(f"s_cbranch_vccz {lab}_X")
    else:
        a(f"s_and_b32 s{save}, vcc_lo, {mask}")
        a(f"s_cbranch_scc0 {lab}_X")
    a(f"s_sleep {sleep}")
    a(f"s_branch {lab}")
    a(f"{lab}_X:")
    if mask is not None:
        a(f"s_mov_b32 s{save}, vcc_lo")


def spoll(a, lab, words, dst, sF, sTag, cnt, sleep):
    a(f"s_mov_b32 s{cnt}, 0x40000")
    a(f"{lab}:")
    for i, (so, imm) in enumerate(words):
        a(f"s_buffer_load_dwordx2 s[{dst+2*i}:{dst+2*i+1}], {sr(sF)}, s{so} offset:{imm} glc")
    a("s_waitcnt lgkmcnt(0)")
    for i in range(len(words)):
        a(f"s_xor_b64 s[{dst+2*i}:{dst+2*i+1}], s[{dst+2*i}:{dst+2*i+1}], s[{sTag}:{sTag+1}]")
        if i:
            a(f"s_or_b64 s[{dst}:{dst+1}], s[{dst}:{dst+1}], s[{dst+2*i}:{dst+2*i+1}]")
    a(f"s_cbranch_scc0 {lab}_X")
    a(f"s_sub_u32 s{cnt}, s{cnt}, 1")
    a(f"s_cbranch_scc1 {lab}_X")
    a(f"s_sleep {sleep}")
    a(f"s_branch {lab}")
    a(f"{lab}_X:")


def publish(a, sF, soff, vTag, vt):
    a(f"v_lshlrev_b32 v{vt}, 20, v1")
    a("s_waitcnt vmcnt(0)")
    a(f"buffer_store_dwordx2 {vr(vTag,2)}, v{vt}, {sr(sF)}, s{soff} offen sc1")


def get_tag(a, vTag, vt):
    a(f"v_mov_b32 v{vt}, {L_TAG}")
    a(f"ds_read_b64 {vr(vTag,2)}, v{vt}")


def opt(name, default):
    return next((int(o[len(name):]) for o in OPT if o.startswith(name)), default)


def lds_wait(a, lab, base, n, vA, vt, cnt, sleep=1):
    a(f"v_and_b32 v{vA}, {n-1}, v1")
    a(f"v_lshlrev_b32 v{vA}, 2, v{vA}")
    a(f"v_add_u32 v{vA}, {base}, v{vA}")
    lds_spin(a, lab, vA, 0, 1, vt, cnt, sleep)


class Gemm:
    def __init__(s, a, nsteps, P, srdT, srdD, sT, sD, sL, strideT, stepD, t_is_A, vT0, vT1, vD0, vD1, vR0, vR1, qoff,
                 Tf, Df, acc, dflags, sW, G):
        s.__dict__.update(locals())
        s.log = []

    def idx(s, i, dst, base, stride):
        a = s.a
        g0 = i // s.G * s.G
        gs = min(s.G, s.nsteps - g0)
        assert gs & (gs - 1) == 0
        a(f"s_add_u32 s{dst}, s{s.sW}, {i - g0}")
        a(f"s_and_b32 s{dst}, s{dst}, {gs - 1}")
        a(f"s_add_u32 s{dst}, s{dst}, {g0}")
        a(f"s_mul_i32 s{dst}, s{dst}, {stride}")
        a(f"s_add_u32 s{dst}, s{dst}, s{base}")

    def LD1(s, i, half):
        if i >= s.nsteps:
            return
        if "nold" in OPT and i > 3:
            s.a("s_sleep 1")
            return
        d = s.Df + 8 * (i % (s.P + 1)) + 4 * half
        if not half:
            s.idx(i, s.sW + 2, s.sD, s.stepD)
        s.a(f"buffer_load_dwordx4 {vr(d,4)}, v{(s.vD0, s.vD1)[half]}, {sr(s.srdD)}, s{s.sW+2} offen{s.dflags}")
        s.log.append(("D", i))

    def DMA1(s, i, half):
        if i >= s.nsteps:
            return
        if "nold" in OPT and i > 3:
            s.a("s_sleep 1")
            return
        a = s.a
        sl = (i % s.P) * 2048 + 1024 * half
        a(f"s_add_u32 m0, s{s.sL}, {sl}")
        if not half:
            s.idx(i, s.sW + 1, s.sT, 16 * s.strideT)
        else:
            a("s_nop 0")
        a(f"buffer_load_dwordx4 v{(s.vT0, s.vT1)[half]}, {sr(s.srdT)}, s{s.sW+1} offen{' nt' if 'ntt' in OPT else ''} lds")
        s.log.append(("T", i))

    def rd(s, i):
        sl = (i % s.P) * 2048
        t = s.Tf + 8 * (i % 2)
        for b, vR in ((0, s.vR0), (1, s.vR1)):
            for q in range(2):
                s.a(f"ds_read_b64_tr_b16 {vr(t+4*b+2*q,2)}, v{vR} offset:{sl+q*s.qoff}")

    def wait_for(s, items):
        if "nold" in OPT:
            s.a("s_waitcnt vmcnt(0)")
            return
        last = max(idx for idx, it in enumerate(s.log) if it in items)
        s.a(f"s_waitcnt vmcnt({min(63, len(s.log) - 1 - last)})")

    def pro_T(s):
        for j in range(s.P):
            s.DMA1(j, 0)
            s.DMA1(j, 1)

    def pro_D(s):
        for j in range(s.P):
            s.LD1(j, 0)
            s.LD1(j, 1)

    def main(s, hooks={}):
        a = s.a
        s.wait_for([("T", 0)])
        s.rd(0)
        a("s_waitcnt lgkmcnt(0)")
        s.DMA1(s.P, 0)
        s.DMA1(s.P, 1)
        if "mp3" not in OPT:
            a("s_setprio 0")
        n = s.nsteps
        for i in range(n):
            if i in hooks:
                hooks[i]()
            need = [("D", i)] + ([("T", i + 1)] if i + 1 < n else [])
            s.wait_for(need)
            t, d = s.Tf + 8 * (i % 2), s.Df + 8 * (i % (s.P + 1))
            for k in range(4):
                x, y = k // 2, k % 2
                C = "0" if i == 0 else None
                if "nomm" in OPT and i > 0:
                    pass
                elif s.t_is_A:
                    mfma(a, s.acc + 16 * k, t + 4 * x, d + 4 * y, C)
                else:
                    mfma(a, s.acc + 16 * k, d + 4 * x, t + 4 * y, C)
                if k == 0:
                    if i + 1 < n:
                        s.rd(i + 1)
                    s.LD1(i + s.P, 0)
                elif k == 1:
                    s.LD1(i + s.P, 1)
                elif k == 2:
                    if i + 1 < n:
                        a("s_waitcnt lgkmcnt(0)")
                    s.DMA1(i + 1 + s.P, 0)
                else:
                    s.DMA1(i + 1 + s.P, 1)
        a("s_setprio 3")


def gelu(a, X, T, U, n, s0):
    k = math.sqrt(2 / math.pi)
    a(f"v_mov_b32 v{U}, {f32(-2*k*LOG2E)}")
    a(f"v_mov_b32 v{U+1}, {f32(-2*k*LOG2E)}")
    a(f"v_mov_b32 v{U+2}, {f32(-2*k*LOG2E*0.044715)}")
    a(f"v_mov_b32 v{U+3}, {f32(-2*k*LOG2E*0.044715)}")
    a(f"v_mov_b32 v{U+4}, 1.0")
    a(f"v_mov_b32 v{U+5}, 1.0")
    for i in range(0, n, 2):
        a(f"v_pk_mul_f32 {vr(T+i,2)}, {vr(X+i,2)}, {vr(X+i,2)}")
    for i in range(0, n, 2):
        a(f"v_pk_fma_f32 {vr(T+i,2)}, {vr(T+i,2)}, {vr(U+2,2)}, {vr(U,2)}")
    for i in range(0, n, 2):
        a(f"v_pk_mul_f32 {vr(T+i,2)}, {vr(T+i,2)}, {vr(X+i,2)}")
    for i in range(n):
        a(f"v_exp_f32 v{T+i}, v{T+i}")
    for i in range(0, n, 2):
        a(f"v_pk_add_f32 {vr(T+i,2)}, {vr(T+i,2)}, {vr(U+4,2)}")
    for i in range(n):
        a(f"v_rcp_f32 v{T+i}, v{T+i}")
    for i in range(0, n, 2):
        a(f"v_pk_mul_f32 {vr(X+i,2)}, {vr(X+i,2)}, {vr(T+i,2)}")


def mreduce(a, tag, acc, sL, fl, vA, vB, vT, R, cnt):
    a(f"v_lshlrev_b32 v{vA}, 4, v1")
    a(f"v_add_u32 v{vA}, s{sL}, v{vA}")
    a(f"v_mov_b32 v{vB}, s{sL}")
    a(f"v_mov_b32 v{vT+1}, 1")
    a("s_nop 7")
    wr, rdb = {1: 0, 2: 1, 3: 3}, {1: 1, 2: 3, 3: 0}

    def add():
        for i in range(0, 16, 2):
            a(f"v_pk_add_f32 {vr(acc+i,2)}, {vr(acc+i,2)}, {vr(R+i,2)}")

    for r in (1, 2, 3):
        if wr[r]:
            a(f"v_xor_b32 v{vT+2}, {8192*wr[r]}, v{vA}")
        for i in range(4):
            a(f"ds_write_b128 v{vT+2 if wr[r] else vA}, {vr(acc+16*r+4*i,4)} offset:{1024*i}")
        a(f"v_xor_b32 v{vT+3}, {8192*r}, v{vB}")
        if r > 1:
            add()
        a("s_waitcnt lgkmcnt(0)")
        a(f"ds_write_b32 v{vB}, v{vT+1} offset:{6144+fl+4*(r-1)}")
        lds_spin(a, f"{tag}_R{r}", vT + 3, 6144 + fl + 4 * (r - 1), 1, vT, cnt)
        if rdb[r]:
            a(f"v_xor_b32 v{vT+2}, {8192*rdb[r]}, v{vA}")
        for i in range(4):
            a(f"ds_read_b128 {vr(R+4*i,4)}, v{vT+2 if rdb[r] else vA} offset:{1024*i}")
        a("s_waitcnt lgkmcnt(0)")
    add()


def kernel(a):
    global PROF, PR1, PR0
    PR1, PR0 = opt("pa", 4), opt("pb", 2)
    nm = NAME + "_kernel"
    a.raw(f".globl {nm}")
    a.raw(".p2align 8")
    a.raw(f".type {nm},@function")
    a(f"{nm}:")
    if PROF:
        a("s_memrealtime s[70:71]")
        a(f"{MT()} s[72:73]")
    stamp(a, 0) if not PROF else None
    SLOT, NS = 32768, 4
    NTX = " nt" if "ntx" in OPT else ""
    NTW = " nt" if "ntw" in OPT else ""
    NTM = " nt" if "ntm" in OPT else ""
    vTag = 166
    a("s_cmp_ge_u32 s2, 256")
    a("s_cbranch_scc1 END")
    a("s_load_dwordx16 s[4:19], s[0:1], 0")
    a("s_load_dwordx8 s[20:27], s[0:1], 64")
    a("v_lshrrev_b32 v2, 6, v0")
    a("v_and_b32 v1, 63, v0")
    a("v_readfirstlane_b32 s3, v2")
    a("s_and_b32 s52, s2, 7")
    a("s_lshr_b32 s53, s2, 3")
    a("s_mul_i32 s55, s53, 43")
    a("s_lshr_b32 s55, s55, 8")
    a("s_mul_i32 s56, s55, 6")
    a("s_sub_u32 s56, s53, s56")
    a("s_lshl_b32 s58, s55, 1")
    a("s_add_u32 s58, s58, s56")
    a("s_lshr_b32 s54, s52, 1")
    a("s_lshl_b32 s54, s54, 2")
    a("s_add_u32 s54, s54, s55")
    a("s_and_b32 s55, s52, 1")
    a("s_mul_i32 s55, s55, 6")
    a("s_add_u32 s55, s55, s56")
    a("s_cmp_ge_u32 s3, 8")
    a("s_cbranch_scc1 P1_M")
    a("s_cmp_ge_u32 s53, 24")
    a("s_cbranch_scc1 SVC")
    a("s_cmp_ge_u32 s3, 4")
    a("s_cbranch_scc1 P1_LOAD")

    vXA, vWA = 10, 18
    Fb = 112
    acc = 48
    a("s_and_b32 s56, s3, 1")
    a("s_lshr_b32 s57, s3, 1")
    a("s_lshl_b32 s59, s56, 13")
    a("v_and_b32 v2, 31, v1")
    a("v_lshrrev_b32 v3, 5, v1")
    a("v_bfe_u32 v9, v1, 1, 3")
    a("v_lshlrev_b32 v2, 7, v2")
    a("v_add_u32 v2, s59, v2")
    for kk in range(4):
        a(f"v_add_u32 v30, {2*kk}, v3")
        a("v_xor_b32 v30, v30, v9")
        a(f"v_lshl_add_u32 v{vXA+kk}, v30, 4, v2")
        a(f"v_add_u32 v{vXA+4+kk}, {2*SLOT}, v{vXA+kk}")
    a("s_lshl_b32 s59, s57, 13")
    a("s_add_u32 s59, s59, 16384")
    a("s_mov_b32 s60, 0")
    gemm_rd(a, 8, vWA, vWA + 1, 59, 60, 2, 9)
    a(f"v_add_u32 v{vWA+2}, {2*SLOT}, v{vWA}")
    a(f"v_add_u32 v{vWA+3}, {2*SLOT}, v{vWA+1}")
    a("s_and_b32 s59, s55, 3")
    a("s_lshl_b32 s59, s59, 1")
    a("s_add_u32 s59, s59, s57")
    a("s_lshl_b32 s60, s54, 1")
    a("s_add_u32 s60, s60, s56")
    a("s_lshr_b32 s61, s55, 2")
    a("s_lshl_b32 s62, s61, 8")
    a("s_lshl_b32 s63, s59, 5")
    a("s_add_u32 s62, s62, s63")
    a("s_add_u32 s62, s62, s60")
    a("s_lshl_b32 s62, s62, 7")
    a(f"s_add_u32 s62, s62, {F_QKV}")
    a("s_lshl_b32 s63, s59, 18")
    a("s_lshl_b32 s64, s60, 11")
    a("s_add_u32 s63, s63, s64")
    a("s_lshl_b32 s64, s63, 1")
    a(f"s_add_u32 s64, s64, {WS_KV - WS_Q}")
    a("s_cmp_eq_u32 s61, 0")
    a("s_cselect_b32 s63, s63, s64")
    a("s_cselect_b32 s65, 1, 2")
    a(f"s_cselect_b32 s66, {f32(0.25*LOG2E)}, 1.0")
    a("s_mov_b32 s67, s66")
    a("s_lshl_b32 s64, s65, 16")
    a("s_lshl_b32 s65, s65, 10")
    a("v_lshlrev_b32 v2, 4, v1")
    a("v_bfe_u32 v9, v1, 4, 1")
    a("v_lshlrev_b32 v9, 17, v9")
    a("v_lshl_add_u32 v9, v3, 8, v9")
    a("v_and_b32 v30, 15, v1")
    a("v_lshl_add_u32 v9, v30, 4, v9")
    a("s_lshl_b32 s59, s3, 2")
    a(f"s_add_u32 s59, s59, {L_PUB}")
    a("v_mov_b32 v31, s59")
    a("v_mov_b32 v30, 1")
    a("s_waitcnt lgkmcnt(0)")
    srd(a, 28, pWS, 6 * MB, WS_Q)
    srd(a, 36, pWS, SZ_F, WS_F)
    a("s_cmp_eq_u32 s61, 2")
    a("s_cbranch_scc1 P1_V")

    def reads(t):
        c, kk = t // 4, t % 4
        s = c % NS
        st, so = s // 2, (s % 2) * SLOT
        f = Fb + 16 * (t % 3)
        r = []
        for b in range(2):
            r.append(f"ds_read_b128 {vr(f+4*b,4)}, v{vXA+4*st+kk} offset:{so+b*4096}")
            for q in range(2):
                r.append(f"ds_read_b64_tr_b16 {vr(f+8+4*b+2*q,2)}, v{vWA+2*st+b} offset:{so+kk*2048+q*512}")
        return r

    def p1main(vtype):
        a("s_barrier")
        stamp(a, 1)
        for t in range(2):
            for x in reads(t):
                a(x)
        for t in range(32):
            if t % 4 == 2 and t + 2 < 32:
                a("s_barrier")
            a(f"s_waitcnt lgkmcnt({6 if t + 1 < 32 else 0})")
            rr = reads(t + 2) if t + 2 < 32 else []
            f = Fb + 16 * (t % 3)
            for j in range(4):
                cb, tb = j // 2, j % 2
                X, W = f + 4 * tb, f + 8 + 4 * cb
                if vtype:
                    mfma(a, acc + 16 * j, X, W, "0" if t == 0 else None)
                else:
                    mfma(a, acc + 16 * j, W, X, "0" if t == 0 else None)
                for x in rr[(0, 2, 4, 6)[j]:(2, 4, 6, 6)[j]]:
                    a(x)
        stamp(a, 2)
        get_tag(a, vTag, 32)
        for j in range(4):
            cb, tb = j // 2, j % 2
            if j == 0:
                a("s_mov_b32 s59, s63")
            elif j == 1:
                a("s_add_u32 s59, s63, s65")
            elif j == 2:
                a("s_lshl_b32 s60, s64, 1")
                a("s_add_u32 s63, s63, s60")
                a("s_mov_b32 s59, s63")
            else:
                a("s_add_u32 s59, s63, s65")
            a("s_add_u32 s60, s59, s64")
            for hf in range(2):
                A0, r = acc + 16 * j + 8 * hf, Fb + 8 * j + 4 * hf
                if not vtype:
                    for i in range(0, 8, 2):
                        a(f"v_pk_mul_f32 {vr(A0+i,2)}, {vr(A0+i,2)}, s[66:67]")
                for i in range(4):
                    a(f"v_cvt_pk_bf16_f32 v{r+i}, v{A0+2*i}, v{A0+2*i+1}")
                if vtype:
                    a(f"buffer_store_dwordx4 {vr(r,4)}, v9, {sr(28)}, s59 offen offset:{1024+512*hf} sc1")
                else:
                    a(f"buffer_store_dwordx4 {vr(r,4)}, v2, {sr(28)}, s{59+hf} offen sc1")

    p1main(False)
    a("s_branch P1_PUB")
    a("P1_V:")
    p1main(True)
    a("P1_PUB:")
    a(f"ds_write_b32 v31, v30 offset:{L_ISS-L_PUB}")
    a("s_waitcnt lgkmcnt(0)")
    publish(a, 36, 62, vTag, 32)
    a("ds_write_b32 v31, v30")
    stamp(a, 3)
    a("s_branch ATT")

    a("SVC:")
    NR = 4
    raw, gwr, X, GW, SUM, DOT = 4, 20, 24, 56, 64, 68
    a("s_lshl_b32 s56, s52, 3")
    a("s_and_b32 s57, s53, 7")
    a("s_add_u32 s56, s56, s57")
    a("s_lshl_b32 s56, s56, 3")
    a("s_add_u32 s56, s56, s3")
    a("s_lshl_b32 s57, s56, 12")
    a("v_lshlrev_b32 v2, 4, v1")
    a("s_waitcnt lgkmcnt(0)")
    srd(a, 28, pX, 2 * MB)
    srd(a, 32, pGW, 1024)
    for r in range(NR):
        a(f"buffer_load_dwordx4 {vr(raw+4*r,4)}, v2, {sr(28)}, s57 offen offset:{r*1024}")
    a(f"buffer_load_dwordx4 {vr(gwr,4)}, v2, {sr(32)}, 0 offen")
    srd(a, 28, pWS, 2 * MB, WS_HT)
    srd(a, 32, pWS, 8192, WS_G)
    srd(a, 36, pWS, SZ_F, WS_F)
    a("s_mov_b32 s59, 0xffff0000")
    a("s_lshr_b32 s60, s3, 1")
    a("s_lshl_b32 s60, s60, 13")
    a("s_add_u32 s60, s60, 65536")
    a("s_and_b32 s61, s3, 1")
    a("s_lshl_b32 s62, s61, 3")
    a("s_add_u32 s62, s62, s60")
    a("s_lshl_b32 s61, s61, 12")
    a("s_add_u32 s61, s61, s60")
    a("v_lshlrev_b32 v72, 7, v1")
    a("v_and_b32 v73, 7, v1")
    a("v_lshl_add_u32 v72, v73, 4, v72")
    a("v_add_u32 v72, s62, v72")
    a("v_lshrrev_b32 v74, 3, v1")
    a("v_xor_b32 v73, v73, v74")
    a("v_lshlrev_b32 v74, 7, v74")
    a("v_lshl_add_u32 v73, v73, 4, v74")
    a("v_add_u32 v73, s61, v73")
    a("s_waitcnt vmcnt(0)")
    stamp(a, 1)
    for i in range(4):
        a(f"v_lshlrev_b32 v{GW+2*i}, 16, v{gwr+i}")
        a(f"v_and_b32 v{GW+2*i+1}, s59, v{gwr+i}")
    for r in range(NR):
        for i in range(4):
            a(f"v_lshlrev_b32 v{X+8*r+2*i}, 16, v{raw+4*r+i}")
            a(f"v_and_b32 v{X+8*r+2*i+1}, s59, v{raw+4*r+i}")
    T = raw
    for r in range(NR):
        a(f"v_pk_add_f32 {vr(T+4*r,2)}, {vr(X+8*r,2)}, {vr(X+8*r+2,2)}")
        a(f"v_pk_mul_f32 {vr(T+4*r+2,2)}, {vr(X+8*r,2)}, {vr(GW,2)}")
    for e in (2, 4, 6):
        for r in range(NR):
            if e >= 4:
                a(f"v_pk_add_f32 {vr(T+4*r,2)}, {vr(T+4*r,2)}, {vr(X+8*r+e,2)}")
            a(f"v_pk_fma_f32 {vr(T+4*r+2,2)}, {vr(X+8*r+e,2)}, {vr(GW+e,2)}, {vr(T+4*r+2,2)}")
    for r in range(NR):
        a(f"v_add_f32 v{SUM+r}, v{T+4*r}, v{T+4*r+1}")
        a(f"v_add_f32 v{DOT+r}, v{T+4*r+2}, v{T+4*r+3}")

    def reduce(regs):
        for mod in ("row_shr:1 row_mask:0xf", "row_shr:2 row_mask:0xf", "row_shr:4 row_mask:0xf", "row_shr:8 row_mask:0xf",
                    "row_bcast:15 row_mask:0xa", "row_bcast:31 row_mask:0xc"):
            for r in regs:
                a(f"v_add_f32_dpp v{r}, v{r}, v{r} {mod} bank_mask:0xf")

    reduce(list(range(SUM, SUM + NR)))
    for r in range(NR):
        a(f"v_mul_f32 v{SUM+r}, {f32(1/512)}, v{SUM+r}")
    for r in range(NR):
        a(f"v_readlane_b32 s{40+r}, v{SUM+r}, 63")
    for e in range(8):
        for r in range(NR):
            a(f"v_subrev_f32 v{X+8*r+e}, s{40+r}, v{X+8*r+e}")
    for r in range(NR):
        a(f"v_pk_mul_f32 {vr(T+4*r,2)}, {vr(X+8*r,2)}, {vr(X+8*r,2)}")
    for e in (2, 4, 6):
        for r in range(NR):
            a(f"v_pk_fma_f32 {vr(T+4*r,2)}, {vr(X+8*r+e,2)}, {vr(X+8*r+e,2)}, {vr(T+4*r,2)}")
    for r in range(NR):
        a(f"v_add_f32 v{SUM+r}, v{T+4*r}, v{T+4*r+1}")
    reduce(list(range(SUM, SUM + NR)))
    a(f"v_mov_b32 v3, {f32(1e-5)}")
    a(f"s_mov_b32 s60, {f32(1/512)}")
    for r in range(NR):
        a(f"v_fma_f32 v{SUM+r}, v{SUM+r}, s60, v3")
    for r in range(NR):
        a(f"v_rsq_f32 v{SUM+r}, v{SUM+r}")
    a("s_nop 0")
    for r in range(NR):
        a(f"v_readlane_b32 s{40+r}, v{SUM+r}, 63")
    for e in range(8):
        for r in range(NR):
            a(f"v_mul_f32 v{X+8*r+e}, s{40+r}, v{X+8*r+e}")
        for p in range(2):
            a(f"v_cvt_pk_bf16_f32 v{raw+2*e+p}, v{X+16*p+e}, v{X+16*p+8+e}")
        a(f"v_xor_b32 v{GW+e}, {16*e}, v72")
        a(f"ds_write_b64 v{GW+e}, {vr(raw+2*e,2)}")
    a("s_waitcnt lgkmcnt(0)")
    a("s_barrier")
    for j in range(4):
        a(f"ds_read_b128 {vr(X+4*j,4)}, v73 offset:{j*1024}")
    get_tag(a, vTag, 3)
    for j in range(4):
        a(f"s_waitcnt lgkmcnt({4-j})")
        a(f"buffer_store_dwordx4 {vr(X+4*j,4)}, v2, {sr(28)}, s57 offen offset:{j*1024} sc1")
    reduce(list(range(DOT, DOT + NR)))
    for r in range(NR):
        a(f"v_mul_f32 v{DOT+r}, {f32(-LOG2E)}, v{DOT+r}")
    for r in range(NR):
        a(f"v_exp_f32 v{DOT+r}, v{DOT+r}")
    for r in range(NR):
        a(f"v_add_f32 v{DOT+r}, 1.0, v{DOT+r}")
    for r in range(NR):
        a(f"v_rcp_f32 v{DOT+r}, v{DOT+r}")
    a("s_lshl_b32 s60, s56, 4")
    a("v_mov_b32 v3, 0")
    a("s_mov_b32 exec_lo, 0")
    a("s_mov_b32 exec_hi, 0x80000000")
    a(f"buffer_store_dwordx4 {vr(DOT,4)}, v3, {sr(32)}, s60 offen sc1")
    a("s_mov_b64 exec, -1")
    stamp(a, 2)
    a("s_waitcnt vmcnt(0) lgkmcnt(0)")
    a("s_barrier")
    a("s_cmp_lg_u32 s3, 0")
    a("s_cbranch_scc1 SVC_P")
    a("s_lshl_b32 s60, s56, 4")
    publish(a, 36, 60, vTag, 3)
    a("SVC_P:")
    a("s_barrier")
    stamp(a, 3)
    a("s_branch L_TAIL")

    a("P1_LOAD:")
    vX0, vT0, vT1 = 4, 8, 9
    a("s_sub_u32 s59, s3, 4")
    a("v_lshrrev_b32 v2, 3, v1")
    a("v_and_b32 v3, 7, v1")
    a("v_lshrrev_b32 v20, 4, v1")
    a("v_xor_b32 v3, v3, v20")
    a("v_lshlrev_b32 v2, 10, v2")
    a(f"v_lshl_add_u32 v{vX0}, v3, 4, v2")
    a(f"v_xor_b32 v3, 4, v3")
    a(f"v_lshl_add_u32 v{vX0+1}, v3, 4, v2")
    a(f"v_add_u32 v{vX0+1}, 8192, v{vX0+1}")
    a(f"v_add_u32 v{vX0+2}, 16384, v{vX0}")
    a(f"v_add_u32 v{vX0+3}, 16384, v{vX0+1}")
    gemm_src(a, 3072, vT0, vT1, 2, 3)
    a("s_lshl_b32 s60, s54, 17")
    a("s_lshl_b32 s61, s59, 15")
    a("s_add_u32 s60, s60, s61")
    a("s_mul_i32 s61, s59, 49152")
    a("s_lshl_b32 s62, s55, 8")
    a("s_add_u32 s61, s61, s62")
    a("s_lshl_b32 s62, s59, 12")
    a("s_lshl_b32 s65, s59, 11")
    a("s_waitcnt lgkmcnt(0)")
    srd(a, 28, pX, 2 * MB)
    srd(a, 32, pWQKV, 512 * 3072)

    def dma(c):
        sl = (c % NS) * SLOT
        for t in ["s_and_b32 s58, s58, 7", "s_lshl_b32 s63, s58, 7", "s_add_u32 s63, s63, s60",
                  "s_mul_i32 s64, s58, 196608", "s_add_u32 s64, s64, s61", "s_add_u32 s58, s58, 1"]:
            a(t)
        def dx():
            for n in range(4):
                a(f"s_add_u32 m0, s62, {sl + n*1024}")
                a("s_nop 0")
                a(f"buffer_load_dwordx4 v{vX0+n}, {sr(28)}, s63 offen{NTX} lds")

        def dw():
            for n, v in enumerate((vT0, vT1)):
                for hf in range(2):
                    a(f"s_add_u32 m0, s65, {sl + 16384 + hf*(8192-128) + n*1024}")
                    a("s_nop 0")
                    a(f"buffer_load_dwordx4 v{v}, {sr(32)}, s64 offen offset:{hf*128}{NTW} lds")
        if c == 1 and "wfirst" in OPT:
            dw(); dx()
        else:
            dx(); dw()

    if "p1st" in OPT:
        stamp(a, 3)
    dma(0)
    if "p1st" in OPT:
        stamp(a, 4)
    a(f"s_waitcnt vmcnt({opt('fw', 4)})")
    if "p1st" in OPT:
        stamp(a, 5)
    for c in range(8):
        if c + 1 < 8:
            dma(c + 1)
            a("s_waitcnt vmcnt(8)")
        else:
            a("s_waitcnt vmcnt(0)")
        if "p1st" in OPT and c >= 1:
            stamp(a, 5 + c)
        a("s_barrier")
        if c == 0:
            stamp(a, 1)
    stamp(a, 2)
    if "p1st" in OPT:
        PROF = False
    a("L_TAIL:")
    get_tag(a, vTag, 2)
    srd(a, 28, pWS, 6 * MB, WS_Q)
    srd(a, 36, pWS, SZ_F, WS_F)
    lds_wait(a, "L_ISSW", L_PUB, 4, 3, 4, 62, 2)

    a("ATT:")
    Q, C, S, P, O, Kb, Vb = 4, 8, 24, 56, 64, 80, 88
    vL16, vLV, vK, vV, vOne, vF = 2, 3, 104, 105, 106, 107
    a("s_lshl_b32 s54, s52, 2")
    a("s_and_b32 s55, s53, 3")
    a("s_add_u32 s54, s54, s55")
    a("s_lshr_b32 s55, s53, 2")
    a("s_lshl_b32 s56, s55, 3")
    a("s_add_u32 s56, s56, s3")
    a("s_lshl_b32 s57, s54, 16")
    a("s_lshl_b32 s58, s56, 10")
    a("s_add_u32 s57, s57, s58")
    a("s_lshl_b32 s58, s3, 11")
    a("s_lshl_b32 s59, s54, 17")
    a("s_add_u32 s59, s59, s58")
    a(f"s_add_u32 s59, s59, {WS_KV - WS_Q}")
    a("s_lshl_b32 s60, s52, 5")
    a("s_lshr_b32 s61, s3, 1")
    a("s_add_u32 s60, s60, s61")
    a("s_lshl_b32 s60, s60, 7")
    a(f"s_add_u32 s60, s60, {F_QKV}")
    a("s_lshl_b32 s61, s55, 9")
    a("v_and_b32 v110, 1, v1")
    a("v_add_u32 v110, 1, v110")
    a("v_lshlrev_b32 v110, 15, v110")
    a("v_bfe_u32 v109, v1, 1, 2")
    a("v_lshl_add_u32 v112, v109, 9, v110")
    a("s_and_b32 s63, s3, 3")
    a("s_lshr_b32 s62, s3, 1")
    a("s_sub_u32 s63, s63, s62")
    a("s_lshl_b32 s63, s63, 7")
    a("v_add_u32 v110, s63, v112")
    a("v_cmp_ne_u32 vcc, 0, v109")
    a("s_nop 0")
    a("v_cndmask_b32 v112, v112, v110, vcc")
    a("v_mov_b32 v110, s61")
    a("v_cmp_eq_u32 vcc, 3, v109")
    a("s_nop 0")
    a("v_cndmask_b32 v112, v112, v110, vcc")
    a("v_lshrrev_b32 v3, 5, v1")
    a(f"v_lshlrev_b32 v{vL16}, 4, v1")
    a("v_lshlrev_b32 v3, 8, v3")
    a("v_and_b32 v104, 15, v1")
    a("v_lshl_add_u32 v3, v104, 4, v3")
    a(f"v_add_u32 v{vLV}, 1024, v3")
    a(f"v_mov_b32 v{vK}, v{vL16}")
    a(f"v_mov_b32 v{vV}, v{vLV}")
    a("s_mov_b32 s40, 0x0000ffff")
    a("s_mov_b32 s41, 0x0000ffff")
    a(f"v_and_b32 v{vOne}, 27, v1")
    a(f"v_cmp_eq_u32 vcc, 16, v{vOne}")
    a(f"v_mov_b32 v{vOne}, 0x3f803f80")
    a(f"v_cndmask_b32 v{vOne}, 0, v{vOne}, vcc")
    for i in range(16):
        a(f"v_mov_b32 v{Vb+i}, v{vOne}")
    for i in range(16):
        a(f"v_mov_b32 v{O+i}, 0")
    for i in range(4):
        a(f"v_mov_b32 v{P+4+i}, 0")
    a("s_lshl_b32 s63, s3, 2")
    a(f"s_add_u32 s63, s63, {L_C0F}")
    a("v_mov_b32 v108, s63")
    a("v_mov_b32 v109, 1")
    a(f"v_and_b32 v{vF}, 7, v1")
    a(f"v_lshlrev_b32 v{vF}, 2, v{vF}")
    a(f"v_add_u32 v{vF}, {L_C0F}, v{vF}")
    a("v_and_b32 v111, 3, v1")
    a("v_lshlrev_b32 v111, 2, v111")
    a(f"v_add_u32 v111, {L_KVF}, v111")
    KW, VW = 32768, 65536
    poll(a, "A_POLL", 1, 112, 36, "s60", S, vTag, 62, opt("as", 2), mask=0xc3, save=61)
    stamp(a, 4)
    a("s_mov_b32 m0, s58")
    a("s_setprio 2")
    a(f"buffer_load_dwordx4 v{vL16}, {sr(28)}, s59 offen sc1 lds")
    a(f"buffer_load_dwordx4 {vr(Q,4)}, v{vL16}, {sr(28)}, s57 offen sc1")
    a(f"buffer_load_dwordx4 v{vL16}, {sr(28)}, s59 offen offset:1024 sc1 lds")
    a("s_waitcnt vmcnt(0)")
    a("ds_write_b32 v108, v109")
    lds_spin(a, "A_C0", vF, 0, 1, 110, 62)
    a("s_cmp_lt_u32 s3, 4")
    a("s_cbranch_scc1 A_C12")
    a("s_cmp_eq_u32 s61, 0")
    a("s_cbranch_scc1 A_POLL2_X")
    poll(a, "A_POLL2", 1, 112, 36, "s60", S, vTag, 62, 2)
    a("s_sub_u32 s59, s59, s58")
    a("s_and_b32 s58, s3, 3")
    a("s_lshl_b32 s58, s58, 12")
    a("s_add_u32 s59, s59, s58")
    for c in (1, 2):
        a(f"s_add_u32 m0, s58, {16384*c}")
        a("s_add_u32 s59, s59, 16384")
        for n in range(4):
            a(f"buffer_load_dwordx4 v{vL16}, {sr(28)}, s59 offen offset:{1024*n} sc1 lds")
    a("s_waitcnt vmcnt(0)")
    a(f"ds_write_b32 v108, v109 offset:{L_C1F-L_C0F-16}")
    a("A_C12:")
    stamp(a, 5)

    def rdK(buf, off):
        a(f"ds_read_b128 {vr(Kb+4*buf,4)}, v{vK} offset:{off}")

    def rdV(buf, off):
        a("s_mov_b64 exec, s[40:41]")
        a(f"ds_read_b128 {vr(Vb+8*buf,4)}, v{vV} offset:{off}")
        a(f"ds_read_b128 {vr(Vb+8*buf+4,4)}, v{vV} offset:{off+512}")
        a("s_mov_b64 exec, -1")

    def setC(src):
        a(f"v_mov_b32 v{src+1}, v{src}")
        a(f"v_permlane32_swap_b32 v{src}, v{src+1}")
        a(f"v_max_f32 v{src}, v{src}, v{src+1}")
        a(f"v_sub_f32 v{C}, 0, v{src}")
        for i in range(1, 16):
            a(f"v_mov_b32 v{C+i}, v{C}")

    srd(a, 32, pWS, 2 * MB, WS_O)
    rdK(0, 0)
    rdK(1, 2048)
    rdV(0, 0)
    a("s_waitcnt lgkmcnt(3)")
    mfma(a, S, Kb, Q, "0")
    a(f"v_max3_f32 v{S}, v{S}, v{S+1}, v{S+2}")
    for i in range(3, 15, 2):
        a(f"v_max3_f32 v{S}, v{S}, v{S+i}, v{S+i+1}")
    a(f"v_max_f32 v{S}, v{S}, v{S+15}")
    setC(S)
    mfma(a, S, Kb, Q, C)
    a("s_mov_b32 s43, 16384")
    a("s_mov_b32 s44, 8")
    a(f"s_mov_b32 s45, {(1<<8)|(1<<6)|(1<<PR1)|(1<<PR0)}")

    def tile(i):
        b = i % 2
        Sc, Sn = S + 16 * b, S + 16 * (1 - b)
        e = lambda k: a(f"v_exp_f32 v{Sc+k}, v{Sc+k}")
        c = lambda k: a(f"v_cvt_pk_bf16_f32 v{P+k}, v{Sc+2*k}, v{Sc+2*k+1}")
        e(0); e(1)
        mfma(a, O, Vb + 8 * (1 - b) + 4, P + 4)
        for k in range(2, 8):
            e(k)
        a("s_waitcnt lgkmcnt(2)")
        mfma(a, Sn, Kb + 4 * (1 - b), Q, C)
        if i == 6:
            a("s_bitcmp1_b32 s45, s44")
            a(f"v_add_u32 v{vK}, s43, v{vL16}")
            a("s_cbranch_scc1 A_EVENT")
            a("A_BACK:")
        rdK(b, ((i + 2) % 8) * 2048)
        for k in range(4):
            c(k)
        for k in range(8, 12):
            e(k)
        a("s_waitcnt lgkmcnt(1)")
        mfma(a, O, Vb + 8 * b, P)
        if i == 7:
            a(f"v_add_u32 v{vV}, s43, v{vLV}")
            a("s_add_u32 s43, s43, 16384")
            a("s_and_b32 s43, s43, 0x1ffff")
        rdV(1 - b, ((i + 1) % 8) * 2048)
        for k in range(12, 16):
            e(k)
        if i == 7:
            a("s_sub_u32 s44, s44, 1")
            a("s_cmp_lg_u32 s44, 0")
        for k in range(4, 8):
            c(k)

    a("s_nop 7")
    a.raw(".p2align 6")
    a("A_LOOP:")
    for i in range(8):
        tile(i)
    a("s_cbranch_scc1 A_LOOP")
    stamp(a, 7)
    a("s_nop 1")
    mfma(a, O, Vb + 8 + 4, P + 4)
    a("s_waitcnt lgkmcnt(0)")
    a(f"v_mov_b32 v{S+2}, {f32(2.0**30)}")
    a(f"v_mov_b32 v{S+3}, {f32(2.0**120)}")
    a("s_lshr_b32 s59, s56, 1")
    a("s_lshl_b32 s59, s59, 2")
    a("s_and_b32 s60, s53, 3")
    a("s_add_u32 s59, s59, s60")
    a("s_lshl_b32 s59, s59, 3")
    a("s_add_u32 s59, s59, s52")
    a("s_lshl_b32 s59, s59, 1")
    a("s_and_b32 s60, s3, 1")
    a("s_add_u32 s59, s59, s60")
    a("s_lshl_b32 s59, s59, 7")
    a(f"s_add_u32 s59, s59, {F_O}")
    a(f"v_rcp_f32 v{S}, v{O+8}")
    a(f"v_max3_f32 v{S+1}, |v{O}|, |v{O+1}|, |v{O+2}|")
    a(f"v_max3_f32 v{S+1}, v{S+1}, |v{O+3}|, |v{O+4}|")
    a(f"v_max3_f32 v{S+1}, v{S+1}, |v{O+5}|, |v{O+6}|")
    a(f"v_max_f32 v{S+1}, v{S+1}, |v{O+7}|")
    a(f"v_cmp_nle_f32 vcc, v{O+8}, v{S+2}")
    a(f"v_cmp_nle_f32 s[46:47], v{S+1}, v{S+3}")
    a("s_or_b64 vcc, vcc, s[46:47]")
    a(f"ds_write_b32 v108, v109 offset:{L_DONE-L_C0F}")
    a("s_cbranch_vccnz A_SLOW")
    a("A_OUT:")
    for i in range(8):
        a(f"v_mul_f32 v{O+i}, v{O+i}, v{S}")
    for i in range(4):
        a(f"v_cvt_pk_bf16_f32 v{P+i}, v{O+2*i}, v{O+2*i+1}")
    a(f"buffer_store_dwordx4 {vr(P,4)}, v{vL16}, {sr(32)}, s57 offen sc1")
    publish(a, 36, 59, vTag, 110)
    stamp(a, 8)
    if "p1st" in OPT:
        PROF = True
    a("s_cmp_lt_u32 s3, 4")
    a("s_cbranch_scc1 P3_LOAD")
    endprof(a)
    a("END:")
    a("s_endpgm")
    a("A_EVENT:")
    a("s_cmp_eq_u32 s44, 8")
    a("s_cbranch_scc0 A_EV1")
    if "evst" in OPT:
        stamp(a, 1)
    lds_spin(a, "A_KVW1", 111, L_C1F - L_KVF, 1, 110, 62, 2)
    if "evst" in OPT:
        stamp(a, 3)
    a("s_branch A_BACK")
    a("A_EV1:")
    a("s_cmp_eq_u32 s44, 6")
    a("s_cbranch_scc0 A_EV2")
    if "evst" in OPT:
        stamp(a, 4)
    lds_spin(a, "A_KVW2", 111, 0, 1, 110, 62, 2)
    if "p1st" not in OPT:
        stamp(a, 6)
    a("s_branch A_BACK")
    a("A_EV2:")
    a("s_setprio 1")
    a(f"ds_write_b32 v108, v109 offset:{L_PAST-L_C0F}")
    a(f"s_cmp_eq_u32 s44, {PR1}")
    a("s_cbranch_scc1 A_BACK")
    a("s_setprio 0")
    a("s_branch A_BACK")
    a("A_SLOW:")
    a("s_lshl_b32 s63, s54, 17")
    a(f"s_add_u32 s63, s63, {WS_KV - WS_Q}")
    a("s_mov_b32 s61, s63")
    a(f"v_mov_b32 v{P}, 0xff800000")
    a("s_mov_b32 s44, 64")
    a("A_SLOWL:")
    a(f"buffer_load_dwordx4 {vr(Kb,4)}, v{vL16}, {sr(28)}, s61 offen sc1")
    a("s_add_u32 s61, s61, 2048")
    a("s_waitcnt vmcnt(0)")
    mfma(a, S, Kb, Q, "0")
    a("s_nop 15")
    for i in range(0, 16, 2):
        a(f"v_max3_f32 v{P}, v{P}, v{S+i}, v{S+i+1}")
    a("s_sub_u32 s44, s44, 1")
    a("s_cmp_lg_u32 s44, 0")
    a("s_cbranch_scc1 A_SLOWL")
    setC(P)
    for i in range(16):
        a(f"v_mov_b32 v{O+i}, 0")
    a("s_mov_b32 s44, 64")
    a("A_SLOW2:")
    a(f"buffer_load_dwordx4 {vr(Kb,4)}, v{vL16}, {sr(28)}, s63 offen sc1")
    a("s_mov_b64 exec, s[40:41]")
    a(f"buffer_load_dwordx4 {vr(Vb,4)}, v{vLV}, {sr(28)}, s63 offen sc1")
    a(f"buffer_load_dwordx4 {vr(Vb+4,4)}, v{vLV}, {sr(28)}, s63 offen offset:512 sc1")
    a("s_mov_b64 exec, -1")
    a("s_add_u32 s63, s63, 2048")
    a("s_waitcnt vmcnt(0)")
    mfma(a, S, Kb, Q, C)
    a("s_nop 15")
    for i in range(16):
        a(f"v_exp_f32 v{S+i}, v{S+i}")
    for i in range(8):
        a(f"v_cvt_pk_bf16_f32 v{P+i}, v{S+2*i}, v{S+2*i+1}")
    mfma(a, O, Vb, P)
    mfma(a, O, Vb + 4, P + 4)
    a("s_sub_u32 s44, s44, 1")
    a("s_cmp_lg_u32 s44, 0")
    a("s_nop 7")
    a("s_cbranch_scc1 A_SLOW2")
    a("s_nop 15")
    a(f"v_rcp_f32 v{S}, v{O+8}")
    a("s_nop 1")
    a("s_branch A_OUT")

    a("P3_LOAD:")
    vT0, vT1 = 4, 5
    gemm_src(a, 1024, vT0, vT1, 6, 7)
    a("s_lshl_b32 s54, s52, 2")
    a("s_lshr_b32 s55, s53, 3")
    a("s_add_u32 s54, s54, s55")
    a("s_and_b32 s56, s53, 7")
    a("s_lshl_b32 s57, s55, 1")
    a("s_add_u32 s57, s57, s56")
    a("s_lshl_b32 s58, s3, 14")
    a("s_lshl_b32 s59, s56, 7")
    a("s_add_u32 s58, s58, s59")
    a("s_lshl_b32 s59, s3, 16")
    a("s_lshl_b32 s60, s54, 11")
    a("s_add_u32 s59, s59, s60")
    a("s_lshl_b32 s60, s3, 11")
    srd(a, 28, pWO, 512 * 1024)
    a("s_lshl_b32 s61, s54, 2")
    a("s_add_u32 s61, s61, s3")
    a("s_lshl_b32 s61, s61, 11")
    a(f"s_add_u32 s61, s61, {F_O}")
    lds_spin(a, "P3_PAST", vF, L_PAST - L_C0F, 1, 110, 62, 2)
    for c in range(8):
        a(f"s_add_u32 s63, s57, {c}")
        a("s_and_b32 s63, s63, 7")
        a("s_lshl_b32 s63, s63, 16")
        a(f"s_add_u32 m0, s60, {c*8192}")
        a("s_add_u32 s63, s63, s58")
        a(f"buffer_load_dwordx4 v{vT0}, {sr(28)}, s63 offen lds")
        a(f"s_add_u32 m0, s60, {c*8192 + 1024}")
        a("s_nop 0")
        a(f"buffer_load_dwordx4 v{vT1}, {sr(28)}, s63 offen lds")
    lds_spin(a, "P3_DONE", vF, L_DONE - L_C0F, 1, 110, 62, 2)
    stamp(a, 9)
    a("v_and_b32 v6, 15, v1")
    a("v_lshlrev_b32 v6, 7, v6")
    poll(a, "P3_POLL", 1, 6, 36, "s61", 8, vTag, 62, 2)
    stamp(a, 10)
    for c in range(8):
        a(f"s_add_u32 s63, s57, {c}")
        a("s_and_b32 s63, s63, 7")
        a("s_lshl_b32 s63, s63, 18")
        a(f"s_add_u32 m0, s60, {c*8192 + 65536}")
        a("s_add_u32 s63, s63, s59")
        a(f"buffer_load_dwordx4 v{vL16}, {sr(32)}, s63 offen sc1 lds")
        a(f"buffer_load_dwordx4 v{vL16}, {sr(32)}, s63 offen offset:1024 sc1 lds")
        if c >= 3 and c % 2 == 1:
            a("s_waitcnt vmcnt(4)")
            a("s_barrier")
    a("s_waitcnt vmcnt(0)")
    a("s_barrier")
    stamp(a, 11)
    endprof(a)
    a("s_endpgm")

    a("P1_M:")
    PD = 3
    vT0, vT1, vD0, vD1, vR0, vR1 = 4, 5, 6, 7, 8, 9
    Tf, Df, acc, tmp = 12, 28, 64, 128
    vKF = 136
    a("s_sub_u32 s48, s3, 8")
    a("s_lshl_b32 s49, s48, 13")
    a(f"s_add_u32 s49, s49, {MREG}")
    a("v_mov_b32 v10, s49")
    a("v_mov_b32 v4, 0")
    a("v_mov_b32 v5, 0")
    for i in range(4):
        a(f"v_mov_b32 v{12+i}, 0")
    a("ds_write_b128 v10, v[12:15] offset:6144")
    a("ds_write_b128 v10, v[12:15] offset:6160")
    a("v_min_u32 v3, 39, v1")
    a("v_lshlrev_b32 v3, 2, v3")
    a(f"v_add_u32 v3, {LF}, v3")
    a("ds_write_b32 v3, v12")
    a(f"v_mov_b32 v3, {F_E}")
    a("s_mov_b32 s60, 0x9e3779b1")
    a(f"v_mov_b32 v6, {L_TAG}")
    a("s_waitcnt lgkmcnt(0)")
    srd(a, 36, pWS, SZ_F, WS_F)
    a(f"buffer_load_dwordx2 {vr(vTag,2)}, v3, {sr(36)}, 0 offen sc1")
    if "nowt" not in OPT:
        a("s_cmp_lt_u32 s53, 24")
        a("s_cbranch_scc1 SVC_W2")
        a("s_and_b32 s56, s53, 7")
        a("s_lshl_b32 s56, s56, 2")
        a("s_add_u32 s56, s56, s48")
        a("s_mul_i32 s57, s56, 43")
        a("s_lshr_b32 s57, s57, 8")
        a("s_mul_i32 s58, s57, 6")
        a("s_sub_u32 s58, s56, s58")
        a("s_lshl_b32 s57, s57, 1")
        a("s_add_u32 s57, s57, s58")
        a("s_add_u32 s57, s57, 1")
        a("s_and_b32 s57, s57, 7")
        a("s_mul_i32 s57, s57, 196608")
        a("s_and_b32 s59, s52, 1")
        a("s_mul_i32 s59, s59, 6")
        a("s_add_u32 s58, s58, s59")
        a("s_lshl_b32 s58, s58, 8")
        a("s_add_u32 s57, s57, s58")
        srd(a, 32, pWQKV, 512 * 3072)
        a("v_mul_u32_u24 v7, 3072, v1")
        a("s_cmp_ge_u32 s56, 24")
        a("s_cbranch_scc1 SVC_W2")
        a(f"buffer_load_dword v8, v7, {sr(32)}, s57 offen{NTW}")
        a(f"buffer_load_dword v9, v7, {sr(32)}, s57 offen offset:128{NTW}")
        a("SVC_W2:")
    a("s_and_b32 s54, s52, 1")
    a("s_lshl_b32 s54, s54, 2")
    a("s_and_b32 s55, s53, 3")
    a("s_add_u32 s54, s54, s55")
    a("s_lshr_b32 s55, s53, 2")
    a("s_lshr_b32 s56, s52, 1")
    a("s_mul_i32 s56, s56, 11")
    a("s_add_u32 s68, s56, 12")
    a("s_lshr_b32 s68, s68, 1")
    a("s_add_u32 s56, s56, 1")
    a("s_lshr_b32 s56, s56, 1")
    a("s_add_u32 s56, s56, s55")
    a("s_and_b32 s50, s48, 1")
    a("s_lshr_b32 s51, s48, 1")
    a("v_lshlrev_b32 v2, 4, v1")
    a("v_lshrrev_b32 v10, 5, v1")
    a("v_and_b32 v11, 31, v1")
    a("v_lshlrev_b32 v11, 4, v11")
    a("v_lshl_add_u32 v3, v10, 13, v11")
    a("s_lshl_b32 s57, s48, 2")
    a(f"s_add_u32 s57, s57, {L_KVF}")
    a(f"v_mov_b32 v{vKF}, s57")
    a(f"v_mov_b32 v{vKF+1}, 1")
    srd(a, 28, pW1, 2048 * 2752)
    srd(a, 32, pWS, 2 * MB, WS_HT)
    srd(a, 40, pWS, 4 * MB, WS_KV)
    a("s_waitcnt vmcnt(0)")
    a(f"v_mul_lo_u32 v{vTag}, v{vTag}, s60")
    a(f"v_add_u32 v{vTag+1}, 0x7f4a7c15, v{vTag+1}")
    a(f"v_add_u32 v{vTag}, 1, v{vTag}")
    a(f"ds_write_b64 v6, {vr(vTag,2)}")
    a("s_waitcnt lgkmcnt(0)")
    a("s_barrier")
    a("s_setprio 3")
    a("s_cmp_ge_u32 s53, 24")
    a("s_cbranch_scc1 M_SVC")
    for c in range(7):
        a("s_barrier")
    stamp(a, 1)

    def htpoll(lab):
        a("s_lshl_b32 s61, s48, 11")
        a("v_and_b32 v10, 15, v1")
        a("v_lshlrev_b32 v10, 7, v10")
        poll(a, lab, 1, 10, 36, "s61", tmp, vTag, 62, 4)

    def kvrest(lab):
        lds_wait(a, lab + "D", L_C0F, 8, tmp + 4, tmp, 62, 2)
        a("s_lshl_b32 s44, s52, 5")
        a("s_add_u32 s44, s44, s48")
        a("s_lshl_b32 s44, s44, 7")
        a(f"s_add_u32 s44, s44, {F_QKV + 32768}")
        a(f"v_and_b32 v{tmp+4}, 7, v1")
        a(f"v_lshlrev_b32 v{tmp+4}, 9, v{tmp+4}")
        a(f"v_bfe_u32 v{tmp+5}, v1, 3, 1")
        a(f"v_lshl_add_u32 v{tmp+4}, v{tmp+5}, 15, v{tmp+4}")
        poll(a, lab + "C", 1, tmp + 4, 36, "s44", tmp, vTag, 62, 2)
        a("s_lshl_b32 s44, s52, 2")
        a("s_and_b32 s45, s53, 3")
        a("s_add_u32 s44, s44, s45")
        a("s_lshl_b32 s44, s44, 17")
        a("s_lshl_b32 s46, s48, 12")
        a("s_lshr_b32 s45, s53, 2")
        a("s_min_u32 s45, s45, 4")
        a("s_add_u32 s45, s45, 2")
        a("s_lshl_b32 s45, s45, 14")
        for j in range(5):
            a("s_add_u32 s45, s45, 16384")
            a("s_cmp_ge_u32 s45, 0x20000")
            a("s_cselect_b32 s45, 49152, s45")
            a("s_add_u32 s47, s45, s46")
            a("s_mov_b32 m0, s47")
            a("s_add_u32 s47, s47, s44")
            for n in range(4):
                a(f"buffer_load_dwordx4 v2, {sr(40)}, s47 offen offset:{n*1024} sc1 lds")

    a("s_cmp_ge_u32 s56, s68")
    a("s_cbranch_scc1 M_IDLE")
    a(f"s_mul_i32 s57, s48, {512*2752}")
    a("s_lshl_b32 s58, s56, 7")
    a("s_add_u32 s57, s57, s58")
    a("s_lshl_b32 s58, s48, 19")
    a("s_lshl_b32 s59, s54, 10")
    a("s_add_u32 s58, s58, s59")
    a("s_lshl_b32 s60, s51, 6")
    a("s_lshl_b32 s61, s50, 9")
    gemm_src(a, 2752, vT0, vT1, 10, 11)
    a(f"v_xor_b32 v{vD0}, s61, v3")
    a(f"v_xor_b32 v{vD1}, 512, v{vD0}")
    G1 = opt("g1_", 8)
    g1 = Gemm(a, 32, PD, 28, 32, 57, 58, 49, 2752, 16384, True, vT0, vT1, vD0, vD1, vR0, vR1, 512, Tf, Df, acc, " sc1", 63, G1)
    a("s_and_b32 s63, s53, 3")
    a(f"s_mul_i32 s63, s63, {max(1, G1//4)}")
    a(f"s_mul_i32 s62, s55, {max(1, G1//6)}")
    a("s_add_u32 s63, s63, s62")
    gemm_rd(a, 8, vR0, vR1, 49, 60, 10, 11)
    GATE = opt("gate", 3)
    if GATE:
        lds_wait(a, "M_GATE", (L_ISS, L_PUB, L_C0F)[GATE - 1], 4 if GATE < 3 else 8, 10, 11, 62, 2)
    if "kvpre" in OPT:
        htpoll("M_HT")
        kvrest("M_KV0")
        g1.log.extend([("K", 0)] * 20)
    else:
        htpoll("M_HT")
    stamp(a, 2)
    g1.pro_T()
    g1.pro_D()
    KVS = opt("kvs", 0)

    def hook_kv():
        stamp(a, 3)
        a("s_setprio 3")
        kvrest("M_KV1")
        a("s_setprio 0")
        g1.log.extend([("K", 0)] * 20)
        stamp(a, 4)

    def hook_kvf():
        g1.wait_for([("K", 0)])
        a(f"ds_write_b32 v{vKF}, v{vKF+1}")

    if "kvpre" in OPT:
        hook_kvf()
        stamp(a, 3)
        g1.main({16: lambda: stamp(a, 4)})
    else:
        g1.main({KVS: hook_kv, KVS + 3: hook_kvf})
    stamp(a, 5)
    srd(a, 28, pB1, 2752)
    srd(a, 32, pWS, SZ_U, WS_U)
    a("s_lshl_b32 s61, s56, 7")
    a("s_add_u32 s61, s61, s60")
    a("v_lshrrev_b32 v10, 5, v1")
    a("v_lshlrev_b32 v10, 3, v10")
    for g in range(4):
        a(f"buffer_load_dwordx2 {vr(Df+2*g,2)}, v10, {sr(28)}, s61 offen offset:{16*g}")
    mreduce(a, "M1", acc, 49, 0, 10, 11, tmp, Df + 16, 62)
    a("s_mov_b32 s61, 0xffff0000")
    a("s_waitcnt vmcnt(0)")
    for i in range(8):
        a(f"v_lshlrev_b32 v{acc+16+2*i}, 16, v{Df+i}")
        a(f"v_and_b32 v{acc+16+2*i+1}, s61, v{Df+i}")
    for i in range(0, 16, 2):
        a(f"v_pk_add_f32 {vr(acc+i,2)}, {vr(acc+i,2)}, {vr(acc+16+i,2)}")
    gelu(a, acc, acc + 16, acc + 32, 16, 61)
    for i in range(8):
        a(f"v_cvt_pk_bf16_f32 v{Tf+i}, v{acc+2*i}, v{acc+2*i+1}")
    a("s_lshl_b32 s61, s56, 16")
    a("s_lshl_b32 s62, s51, 15")
    a("s_add_u32 s61, s61, s62")
    a("s_add_u32 s61, s61, s59")
    a("s_add_u32 s62, s61, 16384")
    a(f"buffer_store_dwordx4 {vr(Tf,4)}, v{vD0}, {sr(32)}, s61 offen sc1")
    a(f"buffer_store_dwordx4 {vr(Tf+4,4)}, v{vD0}, {sr(32)}, s62 offen sc1")
    a("s_lshl_b32 s61, s56, 2")
    a("s_add_u32 s61, s61, s48")
    a("s_lshl_b32 s61, s61, 3")
    a("s_add_u32 s61, s61, s59")
    a("s_lshl_b32 s61, s61, 4")
    a(f"s_add_u32 s61, s61, {F_U}")
    publish(a, 36, 61, vTag, 10)
    a("s_branch M_2")

    a("M_SVC:")
    stamp(a, 1)
    a("s_and_b32 s57, s53, 7")
    a("s_lshl_b32 s58, s48, 5")
    a("s_add_u32 s57, s57, s58")
    a("s_sub_u32 s58, s56, s55")
    a("s_lshl_b32 s58, s58, 7")
    a(f"s_mul_i32 s59, s57, {16*2752}")
    a("s_add_u32 s58, s58, s59")
    a("s_lshl_b32 s59, s57, 14")
    a("s_and_b32 s60, s52, 1")
    a("s_lshl_b32 s60, s60, 12")
    a("s_add_u32 s59, s59, s60")
    a("v_lshrrev_b32 v4, 3, v1")
    a("v_mul_u32_u24 v4, 2752, v4")
    a("v_and_b32 v5, 7, v1")
    a("v_min_u32 v5, 6, v5")
    a("v_lshl_add_u32 v4, v5, 7, v4")
    a(f"v_add_u32 v5, {8*2752}, v4")
    a("v_lshrrev_b32 v6, 5, v1")
    a("v_lshlrev_b32 v6, 13, v6")
    a("v_and_b32 v7, 31, v1")
    a("v_lshl_add_u32 v6, v7, 7, v6")

    def tw(g):
        a(f"buffer_load_dword v{Tf+3*g}, v4, {sr(28)}, s58 offen{NTM}")
        a(f"buffer_load_dword v{Tf+3*g+1}, v5, {sr(28)}, s58 offen{NTM}")
        a(f"s_add_u32 s58, s58, {128*2752}")

    def th(g):
        a(f"buffer_load_dword v{Tf+3*g+2}, v6, {sr(32)}, s59 offen sc1")
        a(f"s_add_u32 s59, s59, {8*16384}")

    NE, NW = opt("ne", 0), opt("nw", 1)
    for g in range(NE):
        tw(g)
    a("s_barrier")
    a("s_barrier")
    stamp(a, 2)
    for g in range(NE, NW):
        tw(g)
    NH = opt("nh", 0)
    if NH:
        htpoll("M_HT3")
        for g in range(NH):
            th(g)
    a("s_waitcnt vmcnt(0)")
    a(f"ds_write_b32 v{vKF}, v{vKF+1} offset:{L_PUB-L_KVF}")
    stamp(a, 3)
    a("M_IDLE:")
    kvrest("M_KV2")
    a("s_waitcnt vmcnt(0)")
    a(f"ds_write_b32 v{vKF}, v{vKF+1}")
    stamp(a, 4)
    a("s_cmp_lt_u32 s53, 24")
    a("s_cbranch_scc1 M_IDLE2")
    if not NH:
        htpoll("M_HT2")
    for g in range(4):
        if g + NH < 4:
            th(g + NH)
        if g + NW < 4:
            tw(g + NW)
    stamp(a, 5)
    srd(a, 28, pW2, 1376 * 4096)
    a("s_and_b32 s57, s53, 7")
    a("s_lshl_b32 s57, s57, 2")
    a("s_add_u32 s57, s57, s48")
    a(f"s_mul_i32 s58, s57, {43*4096}")
    a("s_lshl_b32 s59, s52, 9")
    a("s_add_u32 s58, s58, s59")
    a("v_lshrrev_b32 v10, 2, v1")
    a("v_lshlrev_b32 v10, 12, v10")
    a("v_and_b32 v11, 3, v1")
    a("v_lshl_add_u32 v10, v11, 7, v10")
    for j in range(3):
        a(f"buffer_load_dword v{Tf+12+j}, v10, {sr(28)}, s58 offen{NTM}")
        a("s_add_u32 s58, s58, 65536")
    srd(a, 28, pWO, 512 * 1024)
    a("s_lshl_b32 s58, s57, 14")
    a("v_lshlrev_b32 v10, 7, v1")
    a(f"buffer_load_dword v{Tf+15}, v10, {sr(28)}, s58 offen")
    a("s_add_u32 s58, s58, 8192")
    a(f"buffer_load_dword v{Tf+11}, v10, {sr(28)}, s58 offen")
    a("s_waitcnt vmcnt(0)")
    a("M_IDLE2:")
    srd(a, 32, pWS, SZ_U, WS_U)
    a("M_2:")
    stamp(a, 6)
    srd(a, 28, pW2, 1376 * 4096)
    a("s_and_b32 s54, s53, 7")
    a("s_lshr_b32 s55, s53, 3")
    a("s_lshl_b32 s56, s52, 2")
    a("s_add_u32 s56, s56, s55")
    a(f"s_mul_i32 s57, s48, {22*16*4096}")
    a("s_lshl_b32 s58, s56, 7")
    a("s_add_u32 s57, s57, s58")
    a(f"s_mul_i32 s58, s48, {22*16384}")
    a("s_lshl_b32 s59, s54, 10")
    a("s_add_u32 s58, s58, s59")
    a("s_lshl_b32 s60, s50, 6")
    a("s_lshl_b32 s61, s51, 9")
    gemm_src(a, 4096, vT0, vT1, 10, 11)
    a(f"v_xor_b32 v{vD0}, s61, v3")
    a(f"v_xor_b32 v{vD1}, 512, v{vD0}")
    g2 = Gemm(a, opt("m2n", 22), PD, 28, 32, 57, 58, 49, 4096, 16384, False, vT0, vT1, vD0, vD1, vR0, vR1, 1024, Tf, Df, acc, " sc1", 63, opt("g2_", 4))
    a("s_add_u32 s63, s55, s54")
    g2.pro_T()
    gemm_rd(a, 4, vR0, vR1, 49, 60, 10, 11)
    a("s_lshl_b32 s61, s2, 4")
    a("s_add_u32 s61, s61, s48")
    a("s_cmp_lg_u32 s61, 0")
    a("s_cbranch_scc1 M_NOE")
    a("v_lshrrev_b32 v10, 4, v1")
    a("v_lshlrev_b32 v10, 13, v10")
    a("v_and_b32 v11, 15, v1")
    a("v_lshl_add_u32 v10, v11, 8, v10")
    for t in range(3):
        a(f"s_mov_b32 s61, {F_QKV + 32768*t}")
        poll(a, f"M_E{t}", 1, 10, 36, "s61", tmp, vTag, 62, 8)
    a("v_lshlrev_b32 v10, 7, v1")
    poll(a, "M_E3", 1, 10, 36, "0", tmp, vTag, 62, 8)
    a("v_lshlrev_b32 v10, 20, v1")
    a(f"s_mov_b32 s61, {F_E}")
    a(f"buffer_store_dwordx2 {vr(vTag,2)}, v10, {sr(36)}, s61 offen sc1")
    a("M_NOE:")
    a("s_mul_i32 s61, s48, 11")
    a("s_lshr_b32 s61, s61, 1")
    a("s_lshl_b32 s61, s61, 5")
    a("s_add_u32 s61, s61, s59")
    a("s_lshl_b32 s61, s61, 4")
    a(f"s_add_u32 s61, s61, {F_U}")
    a("v_min_u32 v10, 23, v1")
    a("v_lshlrev_b32 v10, 7, v10")
    poll(a, "M_U", 1, 10, 36, "s61", tmp, vTag, 62, 8)
    stamp(a, 7)
    g2.pro_D()
    g2.main()
    stamp(a, 8)
    srd(a, 28, pB2, 4096)
    srd(a, 32, pWS, 8192, WS_G)
    a("s_lshl_b32 s61, s56, 7")
    a("s_add_u32 s61, s61, s60")
    a("s_lshl_b32 s62, s61, 1")
    a("v_and_b32 v10, 31, v1")
    a("v_lshlrev_b32 v11, 2, v10")
    a("v_lshlrev_b32 v10, 1, v10")
    a(f"buffer_load_ushort v{Df}, v10, {sr(28)}, s61 offen")
    a(f"buffer_load_dword v{Df+1}, v11, {sr(32)}, s62 offen sc1")
    mreduce(a, "M2", acc, 49, 16, 10, 11, tmp, Df + 16, 62)
    a("s_waitcnt vmcnt(0)")
    G, Y = Df + 1, acc
    a(f"v_lshlrev_b32 v{Df}, 16, v{Df}")
    a(f"v_sub_f32 v{Df+2}, 1.0, v{G}")
    a(f"v_mul_f32 v{Df}, v{Df}, v{Df+2}")
    for i in range(16):
        a(f"v_fma_f32 v{Y+i}, v{Y+i}, v{Df+2}, v{Df}")
    stamp(a, 9)

    vR, vO = 4, 5
    Wf, Of, A3 = 96, 128, 80
    a("s_lshl_b32 s60, s51, 6")
    gemm_rd(a, 4, vR, None, None, 60, 10, 11)
    a("s_lshl_b32 s60, s50, 10")
    a("s_add_u32 s60, s60, 65536")
    a(f"v_add_u32 v{vO}, s60, v2")
    srd(a, 28, pOUT, 2 * MB)
    a("v_and_b32 v9, 31, v1")
    a("v_lshlrev_b32 v9, 10, v9")
    a("v_lshrrev_b32 v10, 5, v1")
    a("v_lshl_add_u32 v9, v10, 4, v9")
    a("s_lshl_b32 s57, s56, 16")
    a("s_lshl_b32 s58, s50, 15")
    a("s_add_u32 s57, s57, s58")
    a("s_lshl_b32 s58, s54, 7")
    a("s_add_u32 s57, s57, s58")
    a("s_lshl_b32 s58, s51, 6")
    a("s_add_u32 s57, s57, s58")

    def rd3(t):
        off = t * 2048
        r, o = vR, vO
        b = t % 8
        a(f"ds_read_b64_tr_b16 {vr(Wf+4*b,2)}, v{r} offset:{off}")
        a(f"ds_read_b64_tr_b16 {vr(Wf+4*b+2,2)}, v{r} offset:{off+1024}")
        a(f"ds_read_b128 {vr(Of+4*b,4)}, v{o} offset:{off}")

    for c in range(4):
        a("s_barrier")
        if c in (0, 3):
            stamp(a, 10 + c // 3)
        for j in range(4):
            rd3(8 * c + j)
        for j in range(8):
            t = 8 * c + j
            if j + 4 < 8:
                rd3(t + 4)
            a(f"s_waitcnt lgkmcnt({3*min(4, 7-j)})")
            mfma(a, A3, Wf + 4 * j, Of + 4 * j, "0" if t == 0 else None)
    stamp(a, 12)
    for i in range(16):
        a(f"v_fmac_f32 v{Y+i}, v{A3+i}, v{G}")
    for i in range(8):
        a(f"v_cvt_pk_bf16_f32 v{Tf+i}, v{Y+2*i}, v{Y+2*i+1}")
    for p in range(2):
        a(f"v_permlane32_swap_b32 v{Tf+4*p}, v{Tf+4*p+2}")
        a(f"v_permlane32_swap_b32 v{Tf+4*p+1}, v{Tf+4*p+3}")
        a(f"buffer_store_dwordx4 {vr(Tf+4*p,4)}, v9, {sr(28)}, s57 offen offset:{32*p}")
    endprof(a)
    a("s_endpgm")
    return dict(name=nm, vgpr=168, grid=256, block=768, lds=163840)


def build(path, verbose=False, aslist=False):
    ref = open("cdna_kernels/" + NAME + ".s.ref").read().split("\n")
    hdr = [l for l in ref if l.startswith(";") and "@launch" not in l and "Override launch" not in l and "grid=ceil" not in l]
    a = Asm()
    i = kernel(a)
    a.fix(verbose)
    s = "\n".join(hdr) + "\n"
    if aslist:
        s += f"; @launch kernel={i['name']} grid=({i['grid']},1,1) block=({i['block']},1,1) lds={i['lds']}\n"
    else:
        s += f"; @launch grid=({i['grid']},1,1) block=({i['block']},1,1) lds={i['lds']}\n"
    s += '.amdgcn_target "amdgcn-amd-amdhsa--gfx950"\n.text\n'
    s += a.text()
    s += '.section .rodata,"a"\n'
    s += f""".p2align 6
.amdhsa_kernel {i['name']}
  .amdhsa_next_free_vgpr {i['vgpr']}
  .amdhsa_next_free_sgpr {102 if PROF or opt('cal', -1) >= 0 else 70}
  .amdhsa_accum_offset {i['vgpr']}
  .amdhsa_group_segment_fixed_size 0
  .amdhsa_kernarg_size 96
  .amdhsa_user_sgpr_count 2
  .amdhsa_user_sgpr_kernarg_segment_ptr 1
  .amdhsa_system_sgpr_workgroup_id_x 1
.end_amdhsa_kernel
"""
    open(path, "w").write(s)


if __name__ == "__main__":
    out = sys.argv[1] if len(sys.argv) > 1 and not sys.argv[1][0] in "-+" else "cdna_kernels/" + NAME + ".s"
    PROF = "-p" in sys.argv
    OPT = set(x[1:] for x in sys.argv if x.startswith("+"))
    build(out, verbose="-v" in sys.argv, aslist="-l" in sys.argv)
```

```python
import sys, math, struct
from asmlib import Asm

NAME = "gated_mix__softmax_full_mha__mixer_token_mlp__prompt"
MB = 1 << 20
WS_Q, WS_KV, WS_HT, WS_U, WS_O, WS_G, WS_F = 0, 2 * MB, 6 * MB, 8 * MB, 10 * MB, 14 * MB, 15 * MB
SZ_U = 172 * 8192
F_HT, F_E, F_QKV, F_U, F_O = 0, 8192, 131072, 262144, 524288
SZ_F = 786432
PROF = False
OPT = set()
WS_P = 16 * MB
LOG2E = math.log2(math.e)
pX, pWQKV, pWO, pW1, pB1, pW2, pB2, pGW, pOUT, pWS = 4, 6, 8, 12, 14, 16, 18, 20, 22, 26
MREG = 131072
LF = MREG + 6144 + 64
L_KVF, L_PUB, L_C0F, L_DONE, L_PAST, L_C1F, L_ISS, L_TAG = LF, LF + 16, LF + 32, LF + 64, LF + 96, LF + 128, LF + 144, LF + 192
L_M2 = LF + 160
PR1, PR0 = 4, 2
pDBG = 24


def f32(x):
    return "0x%08x" % struct.unpack("<I", struct.pack("<f", x))[0]


def srd(a, d, base, size, add=0):
    if add:
        a(f"s_add_u32 s{d}, s{base}, {hex(add)}")
        a(f"s_addc_u32 s{d+1}, s{base+1}, 0")
    else:
        a(f"s_mov_b32 s{d}, s{base}")
        a(f"s_mov_b32 s{d+1}, s{base+1}")
    a(f"s_mov_b32 s{d+2}, {hex(size)}")
    a(f"s_mov_b32 s{d+3}, 0x20000")


def vr(b, n):
    return f"v[{b}:{b+n-1}]"


def sr(b, n=4):
    return f"s[{b}:{b+n-1}]"


def mfma(a, D, A, B, C=None):
    c = vr(D, 16) if C is None else (C if isinstance(C, str) else vr(C, 16))
    a(f"v_mfma_f32_32x32x16_bf16 {vr(D,16)}, {vr(A,4)}, {vr(B,4)}, {c}")


def MT():
    return "s_memrealtime" if "rt" in OPT else "s_memtime"


def stamp(a, i):
    if opt("cal", -1) == i:
        a("s_memrealtime s[70:71]")
    if opt("ca_", -1) == i:
        a("s_memtime s[76:77]")
    if opt("cb_", -1) == i:
        a("s_memtime s[78:79]")
    if PROF:
        a(f"{MT()} s[{72+2*i}:{73+2*i}]")


_cal = [0]


def endprof(a, n=12):
    if opt("cal", -1) >= 0:
        _cal[0] += 1
        L = f"CAL{_cal[0]}"
        if opt("cal", -1) == 13:
            a("s_memrealtime s[70:71]")
        a("s_cmp_lg_u32 s2, 3")
        a(f"s_cbranch_scc1 {L}_X")
        a(f"s_cmp_lg_u32 s3, {opt('cw', 0)}")
        a(f"s_cbranch_scc1 {L}_X")
        a("s_mov_b32 s74, 400000")
        if opt("ca_", -1) >= 0:
            a("s_waitcnt lgkmcnt(0)")
            a("s_sub_u32 s78, s78, s76")
            a("s_lshr_b32 s78, s78, 3")
            a("s_add_u32 s70, s70, s78")
            a("s_sub_u32 s70, s70, 5000")
        a(f"{L}:")
        a("s_memrealtime s[72:73]")
        a("s_waitcnt lgkmcnt(0)")
        a("s_sub_u32 s74, s74, 1")
        a(f"s_cbranch_scc1 {L}_X")
        a("s_sub_u32 s72, s72, s70")
        a("s_cmp_lt_u32 s72, %d" % (8500 if opt("ca_", -1) >= 0 else 3500))
        a(f"s_cbranch_scc1 {L}")
        a(f"{L}_X:")
    if not PROF:
        return
    a("s_waitcnt vmcnt(0)")
    a(f"{MT()} s[{72+2*(n+1)}:{73+2*(n+1)}]")
    a("s_memrealtime s[100:101]")
    a("s_mov_b64 exec, -1")
    srd(a, 28, pWS, MB, WS_P)
    a("s_lshl_b32 s52, s2, 4")
    a("s_add_u32 s52, s52, s3")
    a("s_lshl_b32 s52, s52, 7")
    a("s_waitcnt lgkmcnt(0)")
    a("v_mov_b32 v2, 0")
    a("v_mov_b32 v3, s70")
    a("buffer_store_dword v3, v2, s[28:31], s52 offen")
    a("v_mov_b32 v3, s100")
    a("buffer_store_dword v3, v2, s[28:31], s52 offen offset:4")
    for i in range(1, n + 2):
        a(f"s_sub_u32 s53, s{72+2*i}, s72")
        a("v_mov_b32 v3, s53")
        a(f"buffer_store_dword v3, v2, s[28:31], s52 offen offset:{4+4*i}")


def gemm_src(a, strideT, vT0, vT1, t0, t1):
    a(f"v_lshrrev_b32 v{t0}, 3, v1")
    a(f"v_mul_u32_u24 v{t0}, {strideT}, v{t0}")
    a(f"v_bfe_u32 v{t1}, v1, 4, 1")
    a(f"v_lshlrev_b32 v{t1}, 2, v{t1}")
    a(f"v_xor_b32 v{t1}, v{t1}, v1")
    a(f"v_and_b32 v{t1}, 7, v{t1}")
    a(f"v_lshl_add_u32 v{vT0}, v{t1}, 4, v{t0}")
    a(f"v_add_u32 v{vT1}, {8*strideT}, v{vT0}")


def gemm_rd(a, hmul, vR0, vR1, sL, sSwap, t0, t1):
    a(f"v_lshrrev_b32 v{t0}, 5, v1")
    a(f"v_mul_u32_u24 v{t0}, {hmul}, v{t0}")
    a(f"v_bfe_u32 v{t1}, v1, 2, 2")
    a(f"v_add_u32 v{t0}, v{t0}, v{t1}")
    a(f"v_lshlrev_b32 v{t0}, 7, v{t0}")
    a(f"v_bfe_u32 v{t1}, v1, 3, 1")
    a(f"v_lshl_add_u32 v{t0}, v{t1}, 6, v{t0}")
    a(f"v_bfe_u32 v{t1}, v1, 4, 1")
    a(f"v_lshl_add_u32 v{t0}, v{t1}, 5, v{t0}")
    a(f"v_and_b32 v{t1}, 3, v1")
    a(f"v_lshl_add_u32 v{t0}, v{t1}, 3, v{t0}")
    if sL is None:
        a(f"v_xor_b32 v{vR0}, s{sSwap}, v{t0}")
        return
    a(f"v_xor_b32 v{t0}, s{sSwap}, v{t0}")
    a(f"v_add_u32 v{vR0}, s{sL}, v{t0}")
    a(f"v_xor_b32 v{t0}, 64, v{t0}")
    a(f"v_add_u32 v{vR1}, s{sL}, v{t0}")


def lds_spin(a, lab, vaddr, off, want, vt, cnt, sleep=1):
    a(f"s_mov_b32 s{cnt}, 0x100000")
    a(f"{lab}:")
    a(f"ds_read_b32 v{vt}, v{vaddr} offset:{off}")
    a("s_waitcnt lgkmcnt(0)")
    a(f"v_cmp_ne_u32 vcc, {want}, v{vt}")
    a(f"s_sub_u32 s{cnt}, s{cnt}, 1")
    a(f"s_cbranch_scc1 {lab}_X")
    a(f"s_cbranch_vccz {lab}_X")
    a(f"s_sleep {sleep}")
    a(f"s_branch {lab}")
    a(f"{lab}_X:")


def poll(a, lab, n, vaddr, sF, soff, vt, vTag, cnt, sleep, extra=None, mask=None, save=None):
    a(f"s_mov_b32 s{cnt}, 0x40000")
    a(f"{lab}:")
    if n == 1:
        a(f"buffer_load_dwordx2 {vr(vt,2)}, v{vaddr}, {sr(sF)}, {soff} offen sc1")
    else:
        a(f"buffer_load_dwordx4 {vr(vt,4)}, v{vaddr}, {sr(sF)}, {soff} offen sc1")
    if n == 4:
        a(f"buffer_load_dwordx4 {vr(vt+4,4)}, v{vaddr}, {sr(sF)}, {soff} offen offset:16 sc1")
    a("s_waitcnt vmcnt(0)")
    if extra:
        a(extra)
    for i in range(2 * n):
        a(f"v_xor_b32 v{vt+i}, v{vt+i}, v{vTag + i % 2}")
    k = 2 * n
    i = 1
    while i < k:
        if i + 1 < k:
            a(f"v_or3_b32 v{vt}, v{vt}, v{vt+i}, v{vt+i+1}")
            i += 2
        else:
            a(f"v_or_b32 v{vt}, v{vt}, v{vt+i}")
            i += 1
    a(f"v_cmp_ne_u32 vcc, 0, v{vt}")
    a(f"s_sub_u32 s{cnt}, s{cnt}, 1")
    a(f"s_cbranch_scc1 {lab}_X")
    if mask is None:
        a(f"s_cbranch_vccz {lab}_X")
    else:
        a(f"s_and_b32 s{save}, vcc_lo, {mask}")
        a(f"s_cbranch_scc0 {lab}_X")
    a(f"s_sleep {sleep}")
    a(f"s_branch {lab}")
    a(f"{lab}_X:")
    if mask is not None:
        a(f"s_mov_b32 s{save}, vcc_lo")


def spoll(a, lab, words, dst, sF, sTag, cnt, sleep):
    a(f"s_mov_b32 s{cnt}, 0x40000")
    a(f"{lab}:")
    for i, (so, imm) in enumerate(words):
        a(f"s_buffer_load_dwordx2 s[{dst+2*i}:{dst+2*i+1}], {sr(sF)}, s{so} offset:{imm} glc")
    a("s_waitcnt lgkmcnt(0)")
    for i in range(len(words)):
        a(f"s_xor_b64 s[{dst+2*i}:{dst+2*i+1}], s[{dst+2*i}:{dst+2*i+1}], s[{sTag}:{sTag+1}]")
        if i:
            a(f"s_or_b64 s[{dst}:{dst+1}], s[{dst}:{dst+1}], s[{dst+2*i}:{dst+2*i+1}]")
    a(f"s_cbranch_scc0 {lab}_X")
    a(f"s_sub_u32 s{cnt}, s{cnt}, 1")
    a(f"s_cbranch_scc1 {lab}_X")
    a(f"s_sleep {sleep}")
    a(f"s_branch {lab}")
    a(f"{lab}_X:")


def publish(a, sF, soff, vTag, vt):
    a(f"v_lshlrev_b32 v{vt}, 20, v1")
    a("s_waitcnt vmcnt(0)")
    a(f"buffer_store_dwordx2 {vr(vTag,2)}, v{vt}, {sr(sF)}, s{soff} offen sc1")


def get_tag(a, vTag, vt):
    a(f"v_mov_b32 v{vt}, {L_TAG}")
    a(f"ds_read_b64 {vr(vTag,2)}, v{vt}")


def opt(name, default):
    return next((int(o[len(name):]) for o in OPT if o.startswith(name)), default)


def lds_wait(a, lab, base, n, vA, vt, cnt, sleep=1):
    a(f"v_and_b32 v{vA}, {n-1}, v1")
    a(f"v_lshlrev_b32 v{vA}, 2, v{vA}")
    a(f"v_add_u32 v{vA}, {base}, v{vA}")
    lds_spin(a, lab, vA, 0, 1, vt, cnt, sleep)


class Gemm:
    def __init__(s, a, nsteps, P, srdT, srdD, sT, sD, sL, strideT, stepD, t_is_A, vT0, vT1, vD0, vD1, vR0, vR1, qoff,
                 Tf, Df, acc, dflags, sW, G):
        s.__dict__.update(locals())
        s.log = []

    def idx(s, i, dst, base, stride):
        a = s.a
        g0 = i // s.G * s.G
        gs = min(s.G, s.nsteps - g0)
        assert gs & (gs - 1) == 0
        a(f"s_add_u32 s{dst}, s{s.sW}, {i - g0}")
        a(f"s_and_b32 s{dst}, s{dst}, {gs - 1}")
        a(f"s_add_u32 s{dst}, s{dst}, {g0}")
        a(f"s_mul_i32 s{dst}, s{dst}, {stride}")
        a(f"s_add_u32 s{dst}, s{dst}, s{base}")

    def LD1(s, i, half):
        if i >= s.nsteps:
            return
        if "nold" in OPT and i > 3:
            s.a("s_sleep 1")
            return
        d = s.Df + 8 * (i % (s.P + 1)) + 4 * half
        if not half:
            s.idx(i, s.sW + 2, s.sD, s.stepD)
        s.a(f"buffer_load_dwordx4 {vr(d,4)}, v{(s.vD0, s.vD1)[half]}, {sr(s.srdD)}, s{s.sW+2} offen{s.dflags}")
        s.log.append(("D", i))

    def DMA1(s, i, half):
        if i >= s.nsteps:
            return
        if "nold" in OPT and i > 3:
            s.a("s_sleep 1")
            return
        a = s.a
        sl = (i % s.P) * 2048 + 1024 * half
        a(f"s_add_u32 m0, s{s.sL}, {sl}")
        if not half:
            s.idx(i, s.sW + 1, s.sT, 16 * s.strideT)
        else:
            a("s_nop 0")
        a(f"buffer_load_dwordx4 v{(s.vT0, s.vT1)[half]}, {sr(s.srdT)}, s{s.sW+1} offen{' nt' if 'ntt' in OPT else ''} lds")
        s.log.append(("T", i))

    def rd(s, i):
        sl = (i % s.P) * 2048
        t = s.Tf + 8 * (i % 2)
        for b, vR in ((0, s.vR0), (1, s.vR1)):
            for q in range(2):
                s.a(f"ds_read_b64_tr_b16 {vr(t+4*b+2*q,2)}, v{vR} offset:{sl+q*s.qoff}")

    def wait_for(s, items):
        if "nold" in OPT:
            s.a("s_waitcnt vmcnt(0)")
            return
        last = max(idx for idx, it in enumerate(s.log) if it in items)
        s.a(f"s_waitcnt vmcnt({min(63, len(s.log) - 1 - last)})")

    def pro_T(s):
        for j in range(s.P):
            s.DMA1(j, 0)
            s.DMA1(j, 1)

    def pro_D(s):
        for j in range(s.P):
            s.LD1(j, 0)
            s.LD1(j, 1)

    def main(s, hooks={}):
        a = s.a
        s.wait_for([("T", 0)])
        s.rd(0)
        a("s_waitcnt lgkmcnt(0)")
        s.DMA1(s.P, 0)
        s.DMA1(s.P, 1)
        if "mp3" not in OPT:
            a("s_setprio 0")
        n = s.nsteps
        for i in range(n):
            if i in hooks:
                hooks[i]()
            need = [("D", i)] + ([("T", i + 1)] if i + 1 < n else [])
            s.wait_for(need)
            t, d = s.Tf + 8 * (i % 2), s.Df + 8 * (i % (s.P + 1))
            for k in range(4):
                x, y = k // 2, k % 2
                C = "0" if i == 0 else None
                if "nomm" in OPT and i > 0:
                    pass
                elif s.t_is_A:
                    mfma(a, s.acc + 16 * k, t + 4 * x, d + 4 * y, C)
                else:
                    mfma(a, s.acc + 16 * k, d + 4 * x, t + 4 * y, C)
                if k == 0:
                    if i + 1 < n:
                        s.rd(i + 1)
                    s.LD1(i + s.P, 0)
                elif k == 1:
                    s.LD1(i + s.P, 1)
                elif k == 2:
                    if i + 1 < n:
                        a("s_waitcnt lgkmcnt(0)")
                    s.DMA1(i + 1 + s.P, 0)
                else:
                    s.DMA1(i + 1 + s.P, 1)
        a("s_setprio 3")


def gelu(a, X, T, U, n, s0):
    k = math.sqrt(2 / math.pi)
    a(f"v_mov_b32 v{U}, {f32(-2*k*LOG2E)}")
    a(f"v_mov_b32 v{U+1}, {f32(-2*k*LOG2E)}")
    a(f"v_mov_b32 v{U+2}, {f32(-2*k*LOG2E*0.044715)}")
    a(f"v_mov_b32 v{U+3}, {f32(-2*k*LOG2E*0.044715)}")
    a(f"v_mov_b32 v{U+4}, 1.0")
    a(f"v_mov_b32 v{U+5}, 1.0")
    for i in range(0, n, 2):
        a(f"v_pk_mul_f32 {vr(T+i,2)}, {vr(X+i,2)}, {vr(X+i,2)}")
    for i in range(0, n, 2):
        a(f"v_pk_fma_f32 {vr(T+i,2)}, {vr(T+i,2)}, {vr(U+2,2)}, {vr(U,2)}")
    for i in range(0, n, 2):
        a(f"v_pk_mul_f32 {vr(T+i,2)}, {vr(T+i,2)}, {vr(X+i,2)}")
    for i in range(n):
        a(f"v_exp_f32 v{T+i}, v{T+i}")
    for i in range(0, n, 2):
        a(f"v_pk_add_f32 {vr(T+i,2)}, {vr(T+i,2)}, {vr(U+4,2)}")
    for i in range(n):
        a(f"v_rcp_f32 v{T+i}, v{T+i}")
    for i in range(0, n, 2):
        a(f"v_pk_mul_f32 {vr(X+i,2)}, {vr(X+i,2)}, {vr(T+i,2)}")


def mreduce(a, tag, acc, sL, fl, vA, vB, vT, R, cnt):
    a(f"v_lshlrev_b32 v{vA}, 4, v1")
    a(f"v_add_u32 v{vA}, s{sL}, v{vA}")
    a(f"v_mov_b32 v{vB}, s{sL}")
    a(f"v_mov_b32 v{vT+1}, 1")
    a("s_nop 7")
    wr, rdb = {1: 0, 2: 1, 3: 3}, {1: 1, 2: 3, 3: 0}

    def add():
        for i in range(0, 16, 2):
            a(f"v_pk_add_f32 {vr(acc+i,2)}, {vr(acc+i,2)}, {vr(R+i,2)}")

    for r in (1, 2, 3):
        if wr[r]:
            a(f"v_xor_b32 v{vT+2}, {8192*wr[r]}, v{vA}")
        for i in range(4):
            a(f"ds_write_b128 v{vT+2 if wr[r] else vA}, {vr(acc+16*r+4*i,4)} offset:{1024*i}")
        a(f"v_xor_b32 v{vT+3}, {8192*r}, v{vB}")
        if r > 1:
            add()
        a("s_waitcnt lgkmcnt(0)")
        a(f"ds_write_b32 v{vB}, v{vT+1} offset:{6144+fl+4*(r-1)}")
        lds_spin(a, f"{tag}_R{r}", vT + 3, 6144 + fl + 4 * (r - 1), 1, vT, cnt)
        if rdb[r]:
            a(f"v_xor_b32 v{vT+2}, {8192*rdb[r]}, v{vA}")
        for i in range(4):
            a(f"ds_read_b128 {vr(R+4*i,4)}, v{vT+2 if rdb[r] else vA} offset:{1024*i}")
        a("s_waitcnt lgkmcnt(0)")
    add()


def kernel(a):
    global PROF, PR1, PR0
    PR1, PR0 = opt("pa", 4), opt("pb", 2)
    nm = NAME + "_kernel"
    a.raw(f".globl {nm}")
    a.raw(".p2align 8")
    a.raw(f".type {nm},@function")
    a(f"{nm}:")
    if PROF:
        a("s_memrealtime s[70:71]")
        a(f"{MT()} s[72:73]")
    stamp(a, 0) if not PROF else None
    SLOT, NS = 32768, 4
    NTX = " nt" if "ntx" in OPT else ""
    NTW = " nt" if "ntw" in OPT else ""
    NTM = " nt" if "ntm" in OPT else ""
    vTag = 166
    a("s_cmp_ge_u32 s2, 256")
    a("s_cbranch_scc1 END")
    a("s_load_dwordx16 s[4:19], s[0:1], 0")
    a("s_load_dwordx8 s[20:27], s[0:1], 64")
    a("v_lshrrev_b32 v2, 6, v0")
    a("v_and_b32 v1, 63, v0")
    a("v_readfirstlane_b32 s3, v2")
    a("s_and_b32 s52, s2, 7")
    a("s_lshr_b32 s53, s2, 3")
    a("s_mul_i32 s55, s53, 43")
    a("s_lshr_b32 s55, s55, 8")
    a("s_mul_i32 s56, s55, 6")
    a("s_sub_u32 s56, s53, s56")
    a("s_lshl_b32 s58, s55, 1")
    a("s_add_u32 s58, s58, s56")
    a("s_lshr_b32 s54, s52, 1")
    a("s_lshl_b32 s54, s54, 2")
    a("s_add_u32 s54, s54, s55")
    a("s_and_b32 s55, s52, 1")
    a("s_mul_i32 s55, s55, 6")
    a("s_add_u32 s55, s55, s56")
    a("s_cmp_ge_u32 s3, 8")
    a("s_cbranch_scc1 P1_M")
    a("s_cmp_ge_u32 s53, 24")
    a("s_cbranch_scc1 SVC")
    a("s_cmp_ge_u32 s3, 4")
    a("s_cbranch_scc1 P1_LOAD")

    vXA, vWA = 10, 18
    Fb = 112
    acc = 48
    a("s_and_b32 s56, s3, 1")
    a("s_lshr_b32 s57, s3, 1")
    a("s_lshl_b32 s59, s56, 13")
    a("v_and_b32 v2, 31, v1")
    a("v_lshrrev_b32 v3, 5, v1")
    a("v_bfe_u32 v9, v1, 1, 3")
    a("v_lshlrev_b32 v2, 7, v2")
    a("v_add_u32 v2, s59, v2")
    for kk in range(4):
        a(f"v_add_u32 v30, {2*kk}, v3")
        a("v_xor_b32 v30, v30, v9")
        a(f"v_lshl_add_u32 v{vXA+kk}, v30, 4, v2")
        a(f"v_add_u32 v{vXA+4+kk}, {2*SLOT}, v{vXA+kk}")
    a("s_lshl_b32 s59, s57, 13")
    a("s_add_u32 s59, s59, 16384")
    a("s_mov_b32 s60, 0")
    gemm_rd(a, 8, vWA, vWA + 1, 59, 60, 2, 9)
    a(f"v_add_u32 v{vWA+2}, {2*SLOT}, v{vWA}")
    a(f"v_add_u32 v{vWA+3}, {2*SLOT}, v{vWA+1}")
    a("s_and_b32 s59, s55, 3")
    a("s_lshl_b32 s59, s59, 1")
    a("s_add_u32 s59, s59, s57")
    a("s_lshl_b32 s60, s54, 1")
    a("s_add_u32 s60, s60, s56")
    a("s_lshr_b32 s61, s55, 2")
    a("s_lshl_b32 s62, s61, 8")
    a("s_lshl_b32 s63, s59, 5")
    a("s_add_u32 s62, s62, s63")
    a("s_add_u32 s62, s62, s60")
    a("s_lshl_b32 s62, s62, 7")
    a(f"s_add_u32 s62, s62, {F_QKV}")
    a("s_lshl_b32 s63, s59, 18")
    a("s_lshl_b32 s64, s60, 11")
    a("s_add_u32 s63, s63, s64")
    a("s_lshl_b32 s64, s63, 1")
    a(f"s_add_u32 s64, s64, {WS_KV - WS_Q}")
    a("s_cmp_eq_u32 s61, 0")
    a("s_cselect_b32 s63, s63, s64")
    a("s_cselect_b32 s65, 1, 2")
    a(f"s_cselect_b32 s66, {f32(0.25*LOG2E)}, 1.0")
    a("s_mov_b32 s67, s66")
    a("s_lshl_b32 s64, s65, 16")
    a("s_lshl_b32 s65, s65, 10")
    a("v_lshlrev_b32 v2, 4, v1")
    a("v_bfe_u32 v9, v1, 4, 1")
    a("v_lshlrev_b32 v9, 17, v9")
    a("v_lshl_add_u32 v9, v3, 8, v9")
    a("v_and_b32 v30, 15, v1")
    a("v_lshl_add_u32 v9, v30, 4, v9")
    a("s_lshl_b32 s59, s3, 2")
    a(f"s_add_u32 s59, s59, {L_PUB}")
    a("v_mov_b32 v31, s59")
    a("v_mov_b32 v30, 1")
    a("s_waitcnt lgkmcnt(0)")
    srd(a, 28, pWS, 6 * MB, WS_Q)
    srd(a, 36, pWS, SZ_F, WS_F)
    a("s_cmp_eq_u32 s61, 2")
    a("s_cbranch_scc1 P1_V")

    def reads(t):
        c, kk = t // 4, t % 4
        s = c % NS
        st, so = s // 2, (s % 2) * SLOT
        f = Fb + 16 * (t % 3)
        r = []
        for b in range(2):
            r.append(f"ds_read_b128 {vr(f+4*b,4)}, v{vXA+4*st+kk} offset:{so+b*4096}")
            for q in range(2):
                r.append(f"ds_read_b64_tr_b16 {vr(f+8+4*b+2*q,2)}, v{vWA+2*st+b} offset:{so+kk*2048+q*512}")
        return r

    def p1main(vtype):
        a("s_barrier")
        stamp(a, 1)
        for t in range(2):
            for x in reads(t):
                a(x)
        for t in range(32):
            if t % 4 == 2 and t + 2 < 32:
                a("s_barrier")
            a(f"s_waitcnt lgkmcnt({6 if t + 1 < 32 else 0})")
            rr = reads(t + 2) if t + 2 < 32 else []
            f = Fb + 16 * (t % 3)
            for j in range(4):
                cb, tb = j // 2, j % 2
                X, W = f + 4 * tb, f + 8 + 4 * cb
                if vtype:
                    mfma(a, acc + 16 * j, X, W, "0" if t == 0 else None)
                else:
                    mfma(a, acc + 16 * j, W, X, "0" if t == 0 else None)
                for x in rr[(0, 2, 4, 6)[j]:(2, 4, 6, 6)[j]]:
                    a(x)
        stamp(a, 2)
        get_tag(a, vTag, 32)
        for j in range(4):
            cb, tb = j // 2, j % 2
            if j == 0:
                a("s_mov_b32 s59, s63")
            elif j == 1:
                a("s_add_u32 s59, s63, s65")
            elif j == 2:
                a("s_lshl_b32 s60, s64, 1")
                a("s_add_u32 s63, s63, s60")
                a("s_mov_b32 s59, s63")
            else:
                a("s_add_u32 s59, s63, s65")
            a("s_add_u32 s60, s59, s64")
            for hf in range(2):
                A0, r = acc + 16 * j + 8 * hf, Fb + 8 * j + 4 * hf
                if not vtype:
                    for i in range(0, 8, 2):
                        a(f"v_pk_mul_f32 {vr(A0+i,2)}, {vr(A0+i,2)}, s[66:67]")
                for i in range(4):
                    a(f"v_cvt_pk_bf16_f32 v{r+i}, v{A0+2*i}, v{A0+2*i+1}")
                if vtype:
                    a(f"buffer_store_dwordx4 {vr(r,4)}, v9, {sr(28)}, s59 offen offset:{1024+512*hf} sc1")
                else:
                    a(f"buffer_store_dwordx4 {vr(r,4)}, v2, {sr(28)}, s{59+hf} offen sc1")

    p1main(False)
    a("s_branch P1_PUB")
    a("P1_V:")
    p1main(True)
    a("P1_PUB:")
    a(f"ds_write_b32 v31, v30 offset:{L_ISS-L_PUB}")
    a("s_waitcnt lgkmcnt(0)")
    publish(a, 36, 62, vTag, 32)
    a("ds_write_b32 v31, v30")
    stamp(a, 3)
    a("s_branch ATT")

    a("SVC:")
    NR = 4
    raw, gwr, X, GW, SUM, DOT = 4, 20, 24, 56, 64, 68
    a("s_lshl_b32 s56, s52, 3")
    a("s_and_b32 s57, s53, 7")
    a("s_add_u32 s56, s56, s57")
    a("s_lshl_b32 s56, s56, 3")
    a("s_add_u32 s56, s56, s3")
    a("s_lshl_b32 s57, s56, 12")
    a("v_lshlrev_b32 v2, 4, v1")
    a("s_waitcnt lgkmcnt(0)")
    srd(a, 28, pX, 2 * MB)
    srd(a, 32, pGW, 1024)
    for r in range(NR):
        a(f"buffer_load_dwordx4 {vr(raw+4*r,4)}, v2, {sr(28)}, s57 offen offset:{r*1024}")
    a(f"buffer_load_dwordx4 {vr(gwr,4)}, v2, {sr(32)}, 0 offen")
    srd(a, 28, pWS, 2 * MB, WS_HT)
    srd(a, 32, pWS, 8192, WS_G)
    srd(a, 36, pWS, SZ_F, WS_F)
    a("s_mov_b32 s59, 0xffff0000")
    a("s_lshr_b32 s60, s3, 1")
    a("s_lshl_b32 s60, s60, 13")
    a("s_add_u32 s60, s60, 65536")
    a("s_and_b32 s61, s3, 1")
    a("s_lshl_b32 s62, s61, 3")
    a("s_add_u32 s62, s62, s60")
    a("s_lshl_b32 s61, s61, 12")
    a("s_add_u32 s61, s61, s60")
    a("v_lshlrev_b32 v72, 7, v1")
    a("v_and_b32 v73, 7, v1")
    a("v_lshl_add_u32 v72, v73, 4, v72")
    a("v_add_u32 v72, s62, v72")
    a("v_lshrrev_b32 v74, 3, v1")
    a("v_xor_b32 v73, v73, v74")
    a("v_lshlrev_b32 v74, 7, v74")
    a("v_lshl_add_u32 v73, v73, 4, v74")
    a("v_add_u32 v73, s61, v73")
    a("s_waitcnt vmcnt(0)")
    stamp(a, 1)
    for i in range(4):
        a(f"v_lshlrev_b32 v{GW+2*i}, 16, v{gwr+i}")
        a(f"v_and_b32 v{GW+2*i+1}, s59, v{gwr+i}")
    for r in range(NR):
        for i in range(4):
            a(f"v_lshlrev_b32 v{X+8*r+2*i}, 16, v{raw+4*r+i}")
            a(f"v_and_b32 v{X+8*r+2*i+1}, s59, v{raw+4*r+i}")
    T = raw
    for r in range(NR):
        a(f"v_pk_add_f32 {vr(T+4*r,2)}, {vr(X+8*r,2)}, {vr(X+8*r+2,2)}")
        a(f"v_pk_mul_f32 {vr(T+4*r+2,2)}, {vr(X+8*r,2)}, {vr(GW,2)}")
    for e in (2, 4, 6):
        for r in range(NR):
            if e >= 4:
                a(f"v_pk_add_f32 {vr(T+4*r,2)}, {vr(T+4*r,2)}, {vr(X+8*r+e,2)}")
            a(f"v_pk_fma_f32 {vr(T+4*r+2,2)}, {vr(X+8*r+e,2)}, {vr(GW+e,2)}, {vr(T+4*r+2,2)}")
    for r in range(NR):
        a(f"v_add_f32 v{SUM+r}, v{T+4*r}, v{T+4*r+1}")
        a(f"v_add_f32 v{DOT+r}, v{T+4*r+2}, v{T+4*r+3}")

    def reduce(regs):
        for mod in ("row_shr:1 row_mask:0xf", "row_shr:2 row_mask:0xf", "row_shr:4 row_mask:0xf", "row_shr:8 row_mask:0xf",
                    "row_bcast:15 row_mask:0xa", "row_bcast:31 row_mask:0xc"):
            for r in regs:
                a(f"v_add_f32_dpp v{r}, v{r}, v{r} {mod} bank_mask:0xf")

    reduce(list(range(SUM, SUM + NR)))
    for r in range(NR):
        a(f"v_mul_f32 v{SUM+r}, {f32(1/512)}, v{SUM+r}")
    for r in range(NR):
        a(f"v_readlane_b32 s{40+r}, v{SUM+r}, 63")
    for e in range(8):
        for r in range(NR):
            a(f"v_subrev_f32 v{X+8*r+e}, s{40+r}, v{X+8*r+e}")
    for r in range(NR):
        a(f"v_pk_mul_f32 {vr(T+4*r,2)}, {vr(X+8*r,2)}, {vr(X+8*r,2)}")
    for e in (2, 4, 6):
        for r in range(NR):
            a(f"v_pk_fma_f32 {vr(T+4*r,2)}, {vr(X+8*r+e,2)}, {vr(X+8*r+e,2)}, {vr(T+4*r,2)}")
    for r in range(NR):
        a(f"v_add_f32 v{SUM+r}, v{T+4*r}, v{T+4*r+1}")
    reduce(list(range(SUM, SUM + NR)))
    a(f"v_mov_b32 v3, {f32(1e-5)}")
    a(f"s_mov_b32 s60, {f32(1/512)}")
    for r in range(NR):
        a(f"v_fma_f32 v{SUM+r}, v{SUM+r}, s60, v3")
    for r in range(NR):
        a(f"v_rsq_f32 v{SUM+r}, v{SUM+r}")
    a("s_nop 0")
    for r in range(NR):
        a(f"v_readlane_b32 s{40+r}, v{SUM+r}, 63")
    for e in range(8):
        for r in range(NR):
            a(f"v_mul_f32 v{X+8*r+e}, s{40+r}, v{X+8*r+e}")
        for p in range(2):
            a(f"v_cvt_pk_bf16_f32 v{raw+2*e+p}, v{X+16*p+e}, v{X+16*p+8+e}")
        a(f"v_xor_b32 v{GW+e}, {16*e}, v72")
        a(f"ds_write_b64 v{GW+e}, {vr(raw+2*e,2)}")
    a("s_waitcnt lgkmcnt(0)")
    a("s_barrier")
    for j in range(4):
        a(f"ds_read_b128 {vr(X+4*j,4)}, v73 offset:{j*1024}")
    get_tag(a, vTag, 3)
    for j in range(4):
        a(f"s_waitcnt lgkmcnt({4-j})")
        a(f"buffer_store_dwordx4 {vr(X+4*j,4)}, v2, {sr(28)}, s57 offen offset:{j*1024} sc1")
    reduce(list(range(DOT, DOT + NR)))
    for r in range(NR):
        a(f"v_mul_f32 v{DOT+r}, {f32(-LOG2E)}, v{DOT+r}")
    for r in range(NR):
        a(f"v_exp_f32 v{DOT+r}, v{DOT+r}")
    for r in range(NR):
        a(f"v_add_f32 v{DOT+r}, 1.0, v{DOT+r}")
    for r in range(NR):
        a(f"v_rcp_f32 v{DOT+r}, v{DOT+r}")
    a("s_lshl_b32 s60, s56, 4")
    a("v_mov_b32 v3, 0")
    a("s_mov_b32 exec_lo, 0")
    a("s_mov_b32 exec_hi, 0x80000000")
    a(f"buffer_store_dwordx4 {vr(DOT,4)}, v3, {sr(32)}, s60 offen sc1")
    a("s_mov_b64 exec, -1")
    stamp(a, 2)
    a("s_waitcnt vmcnt(0) lgkmcnt(0)")
    a("s_barrier")
    a("s_cmp_lg_u32 s3, 0")
    a("s_cbranch_scc1 SVC_P")
    a("s_lshl_b32 s60, s56, 4")
    publish(a, 36, 60, vTag, 3)
    a("SVC_P:")
    a("s_barrier")
    stamp(a, 3)
    a("s_branch L_TAIL")

    a("P1_LOAD:")
    vX0, vT0, vT1 = 4, 8, 9
    a("s_sub_u32 s59, s3, 4")
    a("v_lshrrev_b32 v2, 3, v1")
    a("v_and_b32 v3, 7, v1")
    a("v_lshrrev_b32 v20, 4, v1")
    a("v_xor_b32 v3, v3, v20")
    a("v_lshlrev_b32 v2, 10, v2")
    a(f"v_lshl_add_u32 v{vX0}, v3, 4, v2")
    a(f"v_xor_b32 v3, 4, v3")
    a(f"v_lshl_add_u32 v{vX0+1}, v3, 4, v2")
    a(f"v_add_u32 v{vX0+1}, 8192, v{vX0+1}")
    a(f"v_add_u32 v{vX0+2}, 16384, v{vX0}")
    a(f"v_add_u32 v{vX0+3}, 16384, v{vX0+1}")
    gemm_src(a, 3072, vT0, vT1, 2, 3)
    a("s_lshl_b32 s60, s54, 17")
    a("s_lshl_b32 s61, s59, 15")
    a("s_add_u32 s60, s60, s61")
    a("s_mul_i32 s61, s59, 49152")
    a("s_lshl_b32 s62, s55, 8")
    a("s_add_u32 s61, s61, s62")
    a("s_lshl_b32 s62, s59, 12")
    a("s_lshl_b32 s65, s59, 11")
    a("s_waitcnt lgkmcnt(0)")
    srd(a, 28, pX, 2 * MB)
    srd(a, 32, pWQKV, 512 * 3072)

    def dma(c):
        sl = (c % NS) * SLOT
        for t in ["s_and_b32 s58, s58, 7", "s_lshl_b32 s63, s58, 7", "s_add_u32 s63, s63, s60",
                  "s_mul_i32 s64, s58, 196608", "s_add_u32 s64, s64, s61", "s_add_u32 s58, s58, 1"]:
            a(t)
        def dx():
            for n in range(4):
                a(f"s_add_u32 m0, s62, {sl + n*1024}")
                a("s_nop 0")
                a(f"buffer_load_dwordx4 v{vX0+n}, {sr(28)}, s63 offen{NTX} lds")

        def dw():
            for n, v in enumerate((vT0, vT1)):
                for hf in range(2):
                    a(f"s_add_u32 m0, s65, {sl + 16384 + hf*(8192-128) + n*1024}")
                    a("s_nop 0")
                    a(f"buffer_load_dwordx4 v{v}, {sr(32)}, s64 offen offset:{hf*128}{NTW} lds")
        if c == 1 and "wfirst" in OPT:
            dw(); dx()
        else:
            dx(); dw()

    if "p1st" in OPT:
        stamp(a, 3)
    dma(0)
    if "p1st" in OPT:
        stamp(a, 4)
    a(f"s_waitcnt vmcnt({opt('fw', 4)})")
    if "p1st" in OPT:
        stamp(a, 5)
    for c in range(8):
        if c + 1 < 8:
            dma(c + 1)
            a("s_waitcnt vmcnt(8)")
        else:
            a("s_waitcnt vmcnt(0)")
        if "p1st" in OPT and c >= 1:
            stamp(a, 5 + c)
        a("s_barrier")
        if c == 0:
            stamp(a, 1)
    stamp(a, 2)
    if "p1st" in OPT:
        PROF = False
    a("L_TAIL:")
    get_tag(a, vTag, 2)
    srd(a, 28, pWS, 6 * MB, WS_Q)
    srd(a, 36, pWS, SZ_F, WS_F)
    lds_wait(a, "L_ISSW", L_PUB, 4, 3, 4, 62, 2)

    a("ATT:")
    Q, C, S, P, O, Kb, Vb = 4, 8, 24, 56, 64, 80, 88
    vL16, vLV, vK, vV, vOne, vF = 2, 3, 104, 105, 106, 107
    a("s_lshl_b32 s54, s52, 2")
    a("s_and_b32 s55, s53, 3")
    a("s_add_u32 s54, s54, s55")
    a("s_lshr_b32 s55, s53, 2")
    a("s_lshl_b32 s56, s55, 3")
    a("s_add_u32 s56, s56, s3")
    a("s_lshl_b32 s57, s54, 16")
    a("s_lshl_b32 s58, s56, 10")
    a("s_add_u32 s57, s57, s58")
    a("s_lshl_b32 s58, s3, 11")
    a("s_lshl_b32 s59, s54, 17")
    a("s_add_u32 s59, s59, s58")
    a(f"s_add_u32 s59, s59, {WS_KV - WS_Q}")
    a("s_lshl_b32 s60, s52, 5")
    a("s_lshr_b32 s61, s3, 1")
    a("s_add_u32 s60, s60, s61")
    a("s_lshl_b32 s60, s60, 7")
    a(f"s_add_u32 s60, s60, {F_QKV}")
    a("s_lshl_b32 s61, s55, 9")
    a("v_and_b32 v110, 1, v1")
    a("v_add_u32 v110, 1, v110")
    a("v_lshlrev_b32 v110, 15, v110")
    a("v_bfe_u32 v109, v1, 1, 2")
    a("v_lshl_add_u32 v112, v109, 9, v110")
    a("s_and_b32 s63, s3, 3")
    a("s_lshr_b32 s62, s3, 1")
    a("s_sub_u32 s63, s63, s62")
    a("s_lshl_b32 s63, s63, 7")
    a("v_add_u32 v110, s63, v112")
    a("v_cmp_ne_u32 vcc, 0, v109")
    a("s_nop 0")
    a("v_cndmask_b32 v112, v112, v110, vcc")
    a("v_mov_b32 v110, s61")
    a("v_cmp_eq_u32 vcc, 3, v109")
    a("s_nop 0")
    a("v_cndmask_b32 v112, v112, v110, vcc")
    a("v_lshrrev_b32 v3, 5, v1")
    a(f"v_lshlrev_b32 v{vL16}, 4, v1")
    a("v_lshlrev_b32 v3, 8, v3")
    a("v_and_b32 v104, 15, v1")
    a("v_lshl_add_u32 v3, v104, 4, v3")
    a(f"v_add_u32 v{vLV}, 1024, v3")
    a(f"v_mov_b32 v{vK}, v{vL16}")
    a(f"v_mov_b32 v{vV}, v{vLV}")
    a("s_mov_b32 s40, 0x0000ffff")
    a("s_mov_b32 s41, 0x0000ffff")
    a(f"v_and_b32 v{vOne}, 27, v1")
    a(f"v_cmp_eq_u32 vcc, 16, v{vOne}")
    a(f"v_mov_b32 v{vOne}, 0x3f803f80")
    a(f"v_cndmask_b32 v{vOne}, 0, v{vOne}, vcc")
    for i in range(16):
        a(f"v_mov_b32 v{Vb+i}, v{vOne}")
    for i in range(16):
        a(f"v_mov_b32 v{O+i}, 0")
    for i in range(4):
        a(f"v_mov_b32 v{P+4+i}, 0")
    a("s_lshl_b32 s63, s3, 2")
    a(f"s_add_u32 s63, s63, {L_C0F}")
    a("v_mov_b32 v108, s63")
    a("v_mov_b32 v109, 1")
    a(f"v_and_b32 v{vF}, 7, v1")
    a(f"v_lshlrev_b32 v{vF}, 2, v{vF}")
    a(f"v_add_u32 v{vF}, {L_C0F}, v{vF}")
    a("v_and_b32 v111, 3, v1")
    a("v_lshlrev_b32 v111, 2, v111")
    a(f"v_add_u32 v111, {L_KVF}, v111")
    KW, VW = 32768, 65536
    poll(a, "A_POLL", 1, 112, 36, "s60", S, vTag, 62, opt("as", 2), mask=0xc3, save=61)
    stamp(a, 4)
    a("s_mov_b32 m0, s58")
    a("s_setprio 2")
    a(f"buffer_load_dwordx4 v{vL16}, {sr(28)}, s59 offen sc1 lds")
    a(f"buffer_load_dwordx4 {vr(Q,4)}, v{vL16}, {sr(28)}, s57 offen sc1")
    a(f"buffer_load_dwordx4 v{vL16}, {sr(28)}, s59 offen offset:1024 sc1 lds")
    a("s_waitcnt vmcnt(0)")
    a("ds_write_b32 v108, v109")
    lds_spin(a, "A_C0", vF, 0, 1, 110, 62)
    a("s_cmp_lt_u32 s3, 4")
    a("s_cbranch_scc1 A_C12")
    a("s_cmp_eq_u32 s61, 0")
    a("s_cbranch_scc1 A_POLL2_X")
    poll(a, "A_POLL2", 1, 112, 36, "s60", S, vTag, 62, 2)
    a("s_sub_u32 s59, s59, s58")
    a("s_and_b32 s58, s3, 3")
    a("s_lshl_b32 s58, s58, 12")
    a("s_add_u32 s59, s59, s58")
    for c in (1, 2):
        a(f"s_add_u32 m0, s58, {16384*c}")
        a("s_add_u32 s59, s59, 16384")
        for n in range(4):
            a(f"buffer_load_dwordx4 v{vL16}, {sr(28)}, s59 offen offset:{1024*n} sc1 lds")
    a("s_waitcnt vmcnt(0)")
    a(f"ds_write_b32 v108, v109 offset:{L_C1F-L_C0F-16}")
    a("A_C12:")
    stamp(a, 5)

    def rdK(buf, off):
        a(f"ds_read_b128 {vr(Kb+4*buf,4)}, v{vK} offset:{off}")

    def rdV(buf, off):
        a("s_mov_b64 exec, s[40:41]")
        a(f"ds_read_b128 {vr(Vb+8*buf,4)}, v{vV} offset:{off}")
        a(f"ds_read_b128 {vr(Vb+8*buf+4,4)}, v{vV} offset:{off+512}")
        a("s_mov_b64 exec, -1")

    def setC(src):
        a(f"v_mov_b32 v{src+1}, v{src}")
        a(f"v_permlane32_swap_b32 v{src}, v{src+1}")
        a(f"v_max_f32 v{src}, v{src}, v{src+1}")
        a(f"v_sub_f32 v{C}, 0, v{src}")
        for i in range(1, 16):
            a(f"v_mov_b32 v{C+i}, v{C}")

    srd(a, 32, pWS, 2 * MB, WS_O)
    rdK(0, 0)
    rdK(1, 2048)
    rdV(0, 0)
    a("s_waitcnt lgkmcnt(3)")
    mfma(a, S, Kb, Q, "0")
    a(f"v_max3_f32 v{S}, v{S}, v{S+1}, v{S+2}")
    for i in range(3, 15, 2):
        a(f"v_max3_f32 v{S}, v{S}, v{S+i}, v{S+i+1}")
    a(f"v_max_f32 v{S}, v{S}, v{S+15}")
    setC(S)
    mfma(a, S, Kb, Q, C)
    a("s_mov_b32 s43, 16384")
    a("s_mov_b32 s44, 8")
    a(f"s_mov_b32 s45, {(1<<8)|(1<<6)|(1<<PR1)|(1<<PR0)}")

    def tile(i):
        b = i % 2
        Sc, Sn = S + 16 * b, S + 16 * (1 - b)
        e = lambda k: a(f"v_exp_f32 v{Sc+k}, v{Sc+k}")
        c = lambda k: a(f"v_cvt_pk_bf16_f32 v{P+k}, v{Sc+2*k}, v{Sc+2*k+1}")
        e(0); e(1)
        mfma(a, O, Vb + 8 * (1 - b) + 4, P + 4)
        for k in range(2, 8):
            e(k)
        a("s_waitcnt lgkmcnt(2)")
        mfma(a, Sn, Kb + 4 * (1 - b), Q, C)
        if i == 6:
            a("s_bitcmp1_b32 s45, s44")
            a(f"v_add_u32 v{vK}, s43, v{vL16}")
            a("s_cbranch_scc1 A_EVENT")
            a("A_BACK:")
        rdK(b, ((i + 2) % 8) * 2048)
        for k in range(4):
            c(k)
        for k in range(8, 12):
            e(k)
        a("s_waitcnt lgkmcnt(1)")
        mfma(a, O, Vb + 8 * b, P)
        if i == 7:
            a(f"v_add_u32 v{vV}, s43, v{vLV}")
            a("s_add_u32 s43, s43, 16384")
            a("s_and_b32 s43, s43, 0x1ffff")
        rdV(1 - b, ((i + 1) % 8) * 2048)
        for k in range(12, 16):
            e(k)
        if i == 7:
            a("s_sub_u32 s44, s44, 1")
            a("s_cmp_lg_u32 s44, 0")
        for k in range(4, 8):
            c(k)

    a("s_nop 7")
    a.raw(".p2align 6")
    a("A_LOOP:")
    for i in range(8):
        tile(i)
    a("s_cbranch_scc1 A_LOOP")
    stamp(a, 7)
    a("s_nop 1")
    mfma(a, O, Vb + 8 + 4, P + 4)
    a("s_waitcnt lgkmcnt(0)")
    a(f"v_mov_b32 v{S+2}, {f32(2.0**30)}")
    a(f"v_mov_b32 v{S+3}, {f32(2.0**120)}")
    a("s_lshr_b32 s59, s56, 1")
    a("s_lshl_b32 s59, s59, 2")
    a("s_and_b32 s60, s53, 3")
    a("s_add_u32 s59, s59, s60")
    a("s_lshl_b32 s59, s59, 3")
    a("s_add_u32 s59, s59, s52")
    a("s_lshl_b32 s59, s59, 1")
    a("s_and_b32 s60, s3, 1")
    a("s_add_u32 s59, s59, s60")
    a("s_lshl_b32 s59, s59, 7")
    a(f"s_add_u32 s59, s59, {F_O}")
    a(f"v_rcp_f32 v{S}, v{O+8}")
    a(f"v_max3_f32 v{S+1}, |v{O}|, |v{O+1}|, |v{O+2}|")
    a(f"v_max3_f32 v{S+1}, v{S+1}, |v{O+3}|, |v{O+4}|")
    a(f"v_max3_f32 v{S+1}, v{S+1}, |v{O+5}|, |v{O+6}|")
    a(f"v_max_f32 v{S+1}, v{S+1}, |v{O+7}|")
    a(f"v_cmp_nle_f32 vcc, v{O+8}, v{S+2}")
    a(f"v_cmp_nle_f32 s[46:47], v{S+1}, v{S+3}")
    a("s_or_b64 vcc, vcc, s[46:47]")
    a(f"ds_write_b32 v108, v109 offset:{L_DONE-L_C0F}")
    a("s_cbranch_vccnz A_SLOW")
    a("A_OUT:")
    for i in range(8):
        a(f"v_mul_f32 v{O+i}, v{O+i}, v{S}")
    for i in range(4):
        a(f"v_cvt_pk_bf16_f32 v{P+i}, v{O+2*i}, v{O+2*i+1}")
    a(f"buffer_store_dwordx4 {vr(P,4)}, v{vL16}, {sr(32)}, s57 offen sc1")
    publish(a, 36, 59, vTag, 110)
    stamp(a, 8)
    if "p1st" in OPT:
        PROF = True
    a("s_cmp_lt_u32 s3, 4")
    a("s_cbranch_scc1 P3_LOAD")
    endprof(a)
    a("END:")
    a("s_endpgm")
    a("A_EVENT:")
    a("s_cmp_eq_u32 s44, 8")
    a("s_cbranch_scc0 A_EV1")
    if "evst" in OPT:
        stamp(a, 1)
    lds_spin(a, "A_KVW1", 111, L_C1F - L_KVF, 1, 110, 62, 2)
    if "evst" in OPT:
        stamp(a, 3)
    a("s_branch A_BACK")
    a("A_EV1:")
    a("s_cmp_eq_u32 s44, 6")
    a("s_cbranch_scc0 A_EV2")
    if "evst" in OPT:
        stamp(a, 4)
    lds_spin(a, "A_KVW2", 111, 0, 1, 110, 62, 2)
    if "p1st" not in OPT:
        stamp(a, 6)
    a("s_branch A_BACK")
    a("A_EV2:")
    a("s_setprio 1")
    a(f"ds_write_b32 v108, v109 offset:{L_PAST-L_C0F}")
    a(f"s_cmp_eq_u32 s44, {PR1}")
    a("s_cbranch_scc1 A_BACK")
    a("s_setprio 0")
    a("s_branch A_BACK")
    a("A_SLOW:")
    a("s_lshl_b32 s63, s54, 17")
    a(f"s_add_u32 s63, s63, {WS_KV - WS_Q}")
    a("s_mov_b32 s61, s63")
    a(f"v_mov_b32 v{P}, 0xff800000")
    a("s_mov_b32 s44, 64")
    a("A_SLOWL:")
    a(f"buffer_load_dwordx4 {vr(Kb,4)}, v{vL16}, {sr(28)}, s61 offen sc1")
    a("s_add_u32 s61, s61, 2048")
    a("s_waitcnt vmcnt(0)")
    mfma(a, S, Kb, Q, "0")
    a("s_nop 15")
    for i in range(0, 16, 2):
        a(f"v_max3_f32 v{P}, v{P}, v{S+i}, v{S+i+1}")
    a("s_sub_u32 s44, s44, 1")
    a("s_cmp_lg_u32 s44, 0")
    a("s_cbranch_scc1 A_SLOWL")
    setC(P)
    for i in range(16):
        a(f"v_mov_b32 v{O+i}, 0")
    a("s_mov_b32 s44, 64")
    a("A_SLOW2:")
    a(f"buffer_load_dwordx4 {vr(Kb,4)}, v{vL16}, {sr(28)}, s63 offen sc1")
    a("s_mov_b64 exec, s[40:41]")
    a(f"buffer_load_dwordx4 {vr(Vb,4)}, v{vLV}, {sr(28)}, s63 offen sc1")
    a(f"buffer_load_dwordx4 {vr(Vb+4,4)}, v{vLV}, {sr(28)}, s63 offen offset:512 sc1")
    a("s_mov_b64 exec, -1")
    a("s_add_u32 s63, s63, 2048")
    a("s_waitcnt vmcnt(0)")
    mfma(a, S, Kb, Q, C)
    a("s_nop 15")
    for i in range(16):
        a(f"v_exp_f32 v{S+i}, v{S+i}")
    for i in range(8):
        a(f"v_cvt_pk_bf16_f32 v{P+i}, v{S+2*i}, v{S+2*i+1}")
    mfma(a, O, Vb, P)
    mfma(a, O, Vb + 4, P + 4)
    a("s_sub_u32 s44, s44, 1")
    a("s_cmp_lg_u32 s44, 0")
    a("s_nop 7")
    a("s_cbranch_scc1 A_SLOW2")
    a("s_nop 15")
    a(f"v_rcp_f32 v{S}, v{O+8}")
    a("s_nop 1")
    a("s_branch A_OUT")

    a("P3_LOAD:")
    vT0, vT1 = 4, 5
    gemm_src(a, 1024, vT0, vT1, 6, 7)
    a("s_lshl_b32 s54, s52, 2")
    a("s_lshr_b32 s55, s53, 3")
    a("s_add_u32 s54, s54, s55")
    a("s_and_b32 s56, s53, 7")
    a("s_lshl_b32 s57, s55, 1")
    a("s_add_u32 s57, s57, s56")
    a("s_lshl_b32 s58, s3, 14")
    a("s_lshl_b32 s59, s56, 7")
    a("s_add_u32 s58, s58, s59")
    a("s_lshl_b32 s59, s3, 16")
    a("s_lshl_b32 s60, s54, 11")
    a("s_add_u32 s59, s59, s60")
    a("s_lshl_b32 s60, s3, 11")
    srd(a, 28, pWO, 512 * 1024)
    a("s_lshl_b32 s61, s54, 2")
    a("s_add_u32 s61, s61, s3")
    a("s_lshl_b32 s61, s61, 11")
    a(f"s_add_u32 s61, s61, {F_O}")
    lds_spin(a, "P3_PAST", vF, L_PAST - L_C0F, 1, 110, 62, 2)
    for c in range(8):
        a(f"s_add_u32 s63, s57, {c}")
        a("s_and_b32 s63, s63, 7")
        a("s_lshl_b32 s63, s63, 16")
        a(f"s_add_u32 m0, s60, {c*8192}")
        a("s_add_u32 s63, s63, s58")
        a(f"buffer_load_dwordx4 v{vT0}, {sr(28)}, s63 offen lds")
        a(f"s_add_u32 m0, s60, {c*8192 + 1024}")
        a("s_nop 0")
        a(f"buffer_load_dwordx4 v{vT1}, {sr(28)}, s63 offen lds")
    lds_spin(a, "P3_DONE", vF, L_DONE - L_C0F, 1, 110, 62, 2)
    if "nom2g" not in OPT:
        lds_spin(a, "P3_M2", 111, L_M2 - L_KVF, 1, 110, 62, 2)
    stamp(a, 9)
    a("v_and_b32 v6, 15, v1")
    a("v_lshlrev_b32 v6, 7, v6")
    poll(a, "P3_POLL", 1, 6, 36, "s61", 8, vTag, 62, 2)
    stamp(a, 10)
    for c in range(8):
        a(f"s_add_u32 s63, s57, {c}")
        a("s_and_b32 s63, s63, 7")
        a("s_lshl_b32 s63, s63, 18")
        a(f"s_add_u32 m0, s60, {c*8192 + 65536}")
        a("s_add_u32 s63, s63, s59")
        a(f"buffer_load_dwordx4 v{vL16}, {sr(32)}, s63 offen sc1 lds")
        a(f"buffer_load_dwordx4 v{vL16}, {sr(32)}, s63 offen offset:1024 sc1 lds")
        OH = opt("oh", -1)
        if c == OH:
            a("s_waitcnt vmcnt(0)")
        if "o2" in OPT:
            if c == 1:
                a("s_waitcnt vmcnt(0)")
            if c in (3, 5, 7):
                if c > 3:
                    a("s_waitcnt vmcnt(4)")
                a("s_barrier")
        elif c >= 3 and c % 2 == 1:
            a("s_waitcnt vmcnt(4)")
            a("s_barrier")
    a("s_waitcnt vmcnt(0)")
    a("s_barrier")
    stamp(a, 11)
    endprof(a)
    a("s_endpgm")

    a("P1_M:")
    PD = 3
    vT0, vT1, vD0, vD1, vR0, vR1 = 4, 5, 6, 7, 8, 9
    Tf, Df, acc, tmp = 12, 28, 64, 128
    vKF = 136
    a("s_sub_u32 s48, s3, 8")
    a("s_lshl_b32 s49, s48, 13")
    a(f"s_add_u32 s49, s49, {MREG}")
    a("v_mov_b32 v10, s49")
    a("v_mov_b32 v4, 0")
    a("v_mov_b32 v5, 0")
    for i in range(4):
        a(f"v_mov_b32 v{12+i}, 0")
    a("ds_write_b128 v10, v[12:15] offset:6144")
    a("ds_write_b128 v10, v[12:15] offset:6160")
    a("v_min_u32 v3, 47, v1")
    a("v_lshlrev_b32 v3, 2, v3")
    a(f"v_add_u32 v3, {LF}, v3")
    a("ds_write_b32 v3, v12")
    a(f"v_mov_b32 v3, {F_E}")
    a("s_mov_b32 s60, 0x9e3779b1")
    a(f"v_mov_b32 v6, {L_TAG}")
    a("s_waitcnt lgkmcnt(0)")
    srd(a, 36, pWS, SZ_F, WS_F)
    a(f"buffer_load_dwordx2 {vr(vTag,2)}, v3, {sr(36)}, 0 offen sc1")
    if "tlb" in OPT or "tlbs" in OPT:
        a("s_cmp_lg_u32 s48, 0")
        a("s_cbranch_scc1 M_TLB")
        if "tlbs" in OPT:
            a("s_cmp_lt_u32 s53, 24")
            a("s_cbranch_scc1 M_TLB")
        srd(a, 32, pWS, 14 * MB)
        a("v_lshlrev_b32 v7, 21, v1")
        a("v_add_u32 v7, 0x1fff80, v7")
        a(f"buffer_load_dword v16, v7, {sr(32)}, 0 offen")
        a("v_lshlrev_b32 v7, 21, v1")
        for k, (p, sz) in enumerate(((pOUT, 2 * MB), (pWO, 512 * 1024), (pB1, 2752), (pB2, 4096), (pW1, 2048 * 2752), (pW2, 1376 * 4096))):
            srd(a, 32, p, sz)
            a(f"buffer_load_dword v{17+k}, v7, {sr(32)}, 0 offen")
        a("M_TLB:")
    if "nowt" not in OPT:
        a("s_cmp_lt_u32 s53, 24")
        a("s_cbranch_scc1 SVC_W2")
        a("s_and_b32 s56, s53, 7")
        a("s_lshl_b32 s56, s56, 2")
        a("s_add_u32 s56, s56, s48")
        a("s_mul_i32 s57, s56, 43")
        a("s_lshr_b32 s57, s57, 8")
        a("s_mul_i32 s58, s57, 6")
        a("s_sub_u32 s58, s56, s58")
        a("s_lshl_b32 s57, s57, 1")
        a("s_add_u32 s57, s57, s58")
        a("s_add_u32 s57, s57, 1")
        a("s_and_b32 s57, s57, 7")
        a("s_mul_i32 s57, s57, 196608")
        a("s_and_b32 s59, s52, 1")
        a("s_mul_i32 s59, s59, 6")
        a("s_add_u32 s58, s58, s59")
        a("s_lshl_b32 s58, s58, 8")
        a("s_add_u32 s57, s57, s58")
        srd(a, 32, pWQKV, 512 * 3072)
        a("v_mul_u32_u24 v7, 3072, v1")
        a("s_cmp_ge_u32 s56, 24")
        a("s_cbranch_scc1 SVC_W2")
        a(f"buffer_load_dword v8, v7, {sr(32)}, s57 offen{NTW}")
        a(f"buffer_load_dword v9, v7, {sr(32)}, s57 offen offset:128{NTW}")
        a("SVC_W2:")
    a("s_and_b32 s54, s52, 1")
    a("s_lshl_b32 s54, s54, 2")
    a("s_and_b32 s55, s53, 3")
    a("s_add_u32 s54, s54, s55")
    a("s_lshr_b32 s55, s53, 2")
    a("s_lshr_b32 s56, s52, 1")
    a("s_mul_i32 s56, s56, 11")
    a("s_add_u32 s68, s56, 12")
    a("s_lshr_b32 s68, s68, 1")
    a("s_add_u32 s56, s56, 1")
    a("s_lshr_b32 s56, s56, 1")
    a("s_add_u32 s56, s56, s55")
    a("s_and_b32 s50, s48, 1")
    a("s_lshr_b32 s51, s48, 1")
    a("v_lshlrev_b32 v2, 4, v1")
    a("v_lshrrev_b32 v10, 5, v1")
    a("v_and_b32 v11, 31, v1")
    a("v_lshlrev_b32 v11, 4, v11")
    a("v_lshl_add_u32 v3, v10, 13, v11")
    a("s_lshl_b32 s57, s48, 2")
    a(f"s_add_u32 s57, s57, {L_KVF}")
    a(f"v_mov_b32 v{vKF}, s57")
    a(f"v_mov_b32 v{vKF+1}, 1")
    srd(a, 28, pW1, 2048 * 2752)
    srd(a, 32, pWS, 2 * MB, WS_HT)
    srd(a, 40, pWS, 4 * MB, WS_KV)
    a("s_waitcnt vmcnt(0)")
    a(f"v_mul_lo_u32 v{vTag}, v{vTag}, s60")
    a(f"v_add_u32 v{vTag+1}, 0x7f4a7c15, v{vTag+1}")
    a(f"v_add_u32 v{vTag}, 1, v{vTag}")
    a(f"ds_write_b64 v6, {vr(vTag,2)}")
    a("s_waitcnt lgkmcnt(0)")
    a("s_barrier")
    a("s_setprio 3")
    a("s_cmp_ge_u32 s53, 24")
    a("s_cbranch_scc1 M_SVC")
    for c in range(7):
        a("s_barrier")
    stamp(a, 1)

    def htpoll(lab):
        a("s_lshl_b32 s61, s48, 11")
        a("v_and_b32 v10, 15, v1")
        a("v_lshlrev_b32 v10, 7, v10")
        poll(a, lab, 1, 10, 36, "s61", tmp, vTag, 62, 4)

    def kvrest(lab):
        lds_wait(a, lab + "D", L_C0F, 8, tmp + 4, tmp, 62, 2)
        a("s_lshl_b32 s44, s52, 5")
        a("s_add_u32 s44, s44, s48")
        a("s_lshl_b32 s44, s44, 7")
        a(f"s_add_u32 s44, s44, {F_QKV + 32768}")
        a(f"v_and_b32 v{tmp+4}, 7, v1")
        a(f"v_lshlrev_b32 v{tmp+4}, 9, v{tmp+4}")
        a(f"v_bfe_u32 v{tmp+5}, v1, 3, 1")
        a(f"v_lshl_add_u32 v{tmp+4}, v{tmp+5}, 15, v{tmp+4}")
        poll(a, lab + "C", 1, tmp + 4, 36, "s44", tmp, vTag, 62, 2)
        a("s_lshl_b32 s44, s52, 2")
        a("s_and_b32 s45, s53, 3")
        a("s_add_u32 s44, s44, s45")
        a("s_lshl_b32 s44, s44, 17")
        a("s_lshl_b32 s46, s48, 12")
        a("s_lshr_b32 s45, s53, 2")
        a("s_min_u32 s45, s45, 4")
        a("s_add_u32 s45, s45, 2")
        a("s_lshl_b32 s45, s45, 14")
        for j in range(5):
            a("s_add_u32 s45, s45, 16384")
            a("s_cmp_ge_u32 s45, 0x20000")
            a("s_cselect_b32 s45, 49152, s45")
            a("s_add_u32 s47, s45, s46")
            a("s_mov_b32 m0, s47")
            a("s_add_u32 s47, s47, s44")
            for n in range(4):
                a(f"buffer_load_dwordx4 v2, {sr(40)}, s47 offen offset:{n*1024} sc1 lds")

    a("s_cmp_ge_u32 s56, s68")
    a("s_cbranch_scc1 M_IDLE")
    a(f"s_mul_i32 s57, s48, {512*2752}")
    a("s_lshl_b32 s58, s56, 7")
    a("s_add_u32 s57, s57, s58")
    a("s_lshl_b32 s58, s48, 19")
    a("s_lshl_b32 s59, s54, 10")
    a("s_add_u32 s58, s58, s59")
    a("s_lshl_b32 s60, s51, 6")
    a("s_lshl_b32 s61, s50, 9")
    gemm_src(a, 2752, vT0, vT1, 10, 11)
    a(f"v_xor_b32 v{vD0}, s61, v3")
    a(f"v_xor_b32 v{vD1}, 512, v{vD0}")
    G1 = opt("g1_", 8)
    g1 = Gemm(a, 32, PD, 28, 32, 57, 58, 49, 2752, 16384, True, vT0, vT1, vD0, vD1, vR0, vR1, 512, Tf, Df, acc, " sc1", 63, G1)
    a("s_and_b32 s63, s53, 3")
    a(f"s_mul_i32 s63, s63, {max(1, G1//4)}")
    a(f"s_mul_i32 s62, s55, {max(1, G1//6)}")
    a("s_add_u32 s63, s63, s62")
    gemm_rd(a, 8, vR0, vR1, 49, 60, 10, 11)
    GATE = opt("gate", 3)
    if GATE:
        lds_wait(a, "M_GATE", (L_ISS, L_PUB, L_C0F)[GATE - 1], 4 if GATE < 3 else 8, 10, 11, 62, 2)
    if "kvpre" in OPT:
        htpoll("M_HT")
        kvrest("M_KV0")
        g1.log.extend([("K", 0)] * 20)
    else:
        htpoll("M_HT")
    stamp(a, 2)
    g1.pro_T()
    g1.pro_D()
    KVS = opt("kvs", 0)

    def hook_kv():
        stamp(a, 3)
        a("s_setprio 3")
        kvrest("M_KV1")
        a("s_setprio 0")
        g1.log.extend([("K", 0)] * 20)
        stamp(a, 4)

    def hook_kvf():
        g1.wait_for([("K", 0)])
        a(f"ds_write_b32 v{vKF}, v{vKF+1}")

    if "kvpre" in OPT:
        hook_kvf()
        stamp(a, 3)
        g1.main({16: lambda: stamp(a, 4)})
    else:
        g1.main({KVS: hook_kv, KVS + 3: hook_kvf})
    stamp(a, 5)
    srd(a, 28, pB1, 2752)
    srd(a, 32, pWS, SZ_U, WS_U)
    a("s_lshl_b32 s61, s56, 7")
    a("s_add_u32 s61, s61, s60")
    a("v_lshrrev_b32 v10, 5, v1")
    a("v_lshlrev_b32 v10, 3, v10")
    for g in range(4):
        a(f"buffer_load_dwordx2 {vr(Df+2*g,2)}, v10, {sr(28)}, s61 offen offset:{16*g}")
    mreduce(a, "M1", acc, 49, 0, 10, 11, tmp, Df + 16, 62)
    a("s_mov_b32 s61, 0xffff0000")
    a("s_waitcnt vmcnt(0)")
    for i in range(8):
        a(f"v_lshlrev_b32 v{acc+16+2*i}, 16, v{Df+i}")
        a(f"v_and_b32 v{acc+16+2*i+1}, s61, v{Df+i}")
    for i in range(0, 16, 2):
        a(f"v_pk_add_f32 {vr(acc+i,2)}, {vr(acc+i,2)}, {vr(acc+16+i,2)}")
    gelu(a, acc, acc + 16, acc + 32, 16, 61)
    for i in range(8):
        a(f"v_cvt_pk_bf16_f32 v{Tf+i}, v{acc+2*i}, v{acc+2*i+1}")
    a("s_lshl_b32 s61, s56, 16")
    a("s_lshl_b32 s62, s51, 15")
    a("s_add_u32 s61, s61, s62")
    a("s_add_u32 s61, s61, s59")
    a("s_add_u32 s62, s61, 16384")
    a(f"buffer_store_dwordx4 {vr(Tf,4)}, v{vD0}, {sr(32)}, s61 offen sc1")
    a(f"buffer_store_dwordx4 {vr(Tf+4,4)}, v{vD0}, {sr(32)}, s62 offen sc1")
    a("s_lshl_b32 s61, s56, 2")
    a("s_add_u32 s61, s61, s48")
    a("s_lshl_b32 s61, s61, 3")
    a("s_add_u32 s61, s61, s59")
    a("s_lshl_b32 s61, s61, 4")
    a(f"s_add_u32 s61, s61, {F_U}")
    publish(a, 36, 61, vTag, 10)
    a("s_branch M_2")

    a("M_SVC:")
    stamp(a, 1)
    a("s_and_b32 s57, s53, 7")
    a("s_lshl_b32 s58, s48, 5")
    a("s_add_u32 s57, s57, s58")
    a("s_sub_u32 s58, s56, s55")
    a("s_lshl_b32 s58, s58, 7")
    a(f"s_mul_i32 s59, s57, {16*2752}")
    a("s_add_u32 s58, s58, s59")
    a("s_lshl_b32 s59, s57, 14")
    a("s_and_b32 s60, s52, 1")
    a("s_lshl_b32 s60, s60, 12")
    a("s_add_u32 s59, s59, s60")
    a("v_lshrrev_b32 v4, 3, v1")
    a("v_mul_u32_u24 v4, 2752, v4")
    a("v_and_b32 v5, 7, v1")
    a("v_min_u32 v5, 6, v5")
    a("v_lshl_add_u32 v4, v5, 7, v4")
    a(f"v_add_u32 v5, {8*2752}, v4")
    a("v_lshrrev_b32 v6, 5, v1")
    a("v_lshlrev_b32 v6, 13, v6")
    a("v_and_b32 v7, 31, v1")
    a("v_lshl_add_u32 v6, v7, 7, v6")

    def tw(g):
        a(f"buffer_load_dword v{Tf+3*g}, v4, {sr(28)}, s58 offen{NTM}")
        a(f"buffer_load_dword v{Tf+3*g+1}, v5, {sr(28)}, s58 offen{NTM}")
        a(f"s_add_u32 s58, s58, {128*2752}")

    def th(g):
        a(f"buffer_load_dword v{Tf+3*g+2}, v6, {sr(32)}, s59 offen sc1")
        a(f"s_add_u32 s59, s59, {8*16384}")

    NE, NW = opt("ne", 0), opt("nw", 1)
    for g in range(NE):
        tw(g)
    a("s_barrier")
    a("s_barrier")
    stamp(a, 2)
    for g in range(NE, NW):
        tw(g)
    NH = opt("nh", 0)
    if NH:
        htpoll("M_HT3")
        for g in range(NH):
            th(g)
    a("s_waitcnt vmcnt(0)")
    a(f"ds_write_b32 v{vKF}, v{vKF+1} offset:{L_PUB-L_KVF}")
    stamp(a, 3)
    a("M_IDLE:")
    kvrest("M_KV2")
    a("s_waitcnt vmcnt(0)")
    a(f"ds_write_b32 v{vKF}, v{vKF+1}")
    stamp(a, 4)
    a("s_cmp_lt_u32 s53, 24")
    a("s_cbranch_scc1 M_IDLE2")
    if not NH:
        htpoll("M_HT2")
    for g in range(4):
        if g + NH < 4:
            th(g + NH)
        if g + NW < 4:
            tw(g + NW)
    stamp(a, 5)
    srd(a, 28, pW2, 1376 * 4096)
    a("s_and_b32 s57, s53, 7")
    a("s_lshl_b32 s57, s57, 2")
    a("s_add_u32 s57, s57, s48")
    a(f"s_mul_i32 s58, s57, {43*4096}")
    a("s_lshl_b32 s59, s52, 9")
    a("s_add_u32 s58, s58, s59")
    a("v_lshrrev_b32 v10, 2, v1")
    a("v_lshlrev_b32 v10, 12, v10")
    a("v_and_b32 v11, 3, v1")
    a("v_lshl_add_u32 v10, v11, 7, v10")
    for j in range(3):
        a(f"buffer_load_dword v{Tf+12+j}, v10, {sr(28)}, s58 offen{NTM}")
        a("s_add_u32 s58, s58, 65536")
    srd(a, 28, pWO, 512 * 1024)
    a("s_lshl_b32 s58, s57, 14")
    a("v_lshlrev_b32 v10, 7, v1")
    a(f"buffer_load_dword v{Tf+15}, v10, {sr(28)}, s58 offen")
    a("s_add_u32 s58, s58, 8192")
    a(f"buffer_load_dword v{Tf+11}, v10, {sr(28)}, s58 offen")
    a("s_waitcnt vmcnt(0)")
    a("M_IDLE2:")
    srd(a, 32, pWS, SZ_U, WS_U)
    a("M_2:")
    stamp(a, 6)
    srd(a, 28, pW2, 1376 * 4096)
    a("s_and_b32 s54, s53, 7")
    a("s_lshr_b32 s55, s53, 3")
    a("s_lshl_b32 s56, s52, 2")
    a("s_add_u32 s56, s56, s55")
    a(f"s_mul_i32 s57, s48, {22*16*4096}")
    a("s_lshl_b32 s58, s56, 7")
    a("s_add_u32 s57, s57, s58")
    a(f"s_mul_i32 s58, s48, {22*16384}")
    a("s_lshl_b32 s59, s54, 10")
    a("s_add_u32 s58, s58, s59")
    a("s_lshl_b32 s60, s50, 6")
    a("s_lshl_b32 s61, s51, 9")
    gemm_src(a, 4096, vT0, vT1, 10, 11)
    a(f"v_xor_b32 v{vD0}, s61, v3")
    a(f"v_xor_b32 v{vD1}, 512, v{vD0}")
    g2 = Gemm(a, opt("m2n", 22), PD, 28, 32, 57, 58, 49, 4096, 16384, False, vT0, vT1, vD0, vD1, vR0, vR1, 1024, Tf, Df, acc, " sc1", 63, opt("g2_", 4))
    a("s_add_u32 s63, s55, s54")
    g2.pro_T()
    gemm_rd(a, 4, vR0, vR1, 49, 60, 10, 11)
    a("s_lshl_b32 s61, s2, 4")
    a("s_add_u32 s61, s61, s48")
    a("s_cmp_lg_u32 s61, 0")
    a("s_cbranch_scc1 M_NOE")
    a("v_lshrrev_b32 v10, 4, v1")
    a("v_lshlrev_b32 v10, 13, v10")
    a("v_and_b32 v11, 15, v1")
    a("v_lshl_add_u32 v10, v11, 8, v10")
    for t in range(3):
        a(f"s_mov_b32 s61, {F_QKV + 32768*t}")
        poll(a, f"M_E{t}", 1, 10, 36, "s61", tmp, vTag, 62, 8)
    a("v_lshlrev_b32 v10, 7, v1")
    poll(a, "M_E3", 1, 10, 36, "0", tmp, vTag, 62, 8)
    a("v_lshlrev_b32 v10, 20, v1")
    a(f"s_mov_b32 s61, {F_E}")
    a(f"buffer_store_dwordx2 {vr(vTag,2)}, v10, {sr(36)}, s61 offen sc1")
    a("M_NOE:")
    a("s_mul_i32 s61, s48, 11")
    a("s_lshr_b32 s61, s61, 1")
    a("s_lshl_b32 s61, s61, 5")
    a("s_add_u32 s61, s61, s59")
    a("s_lshl_b32 s61, s61, 4")
    a(f"s_add_u32 s61, s61, {F_U}")
    a("v_min_u32 v10, 23, v1")
    a("v_lshlrev_b32 v10, 7, v10")
    poll(a, "M_U", 1, 10, 36, "s61", tmp, vTag, 62, 8)
    stamp(a, 7)
    g2.pro_D()
    g2.main({opt("m2n", 22) - 3: lambda: a(f"ds_write_b32 v{vKF}, v{vKF+1} offset:{L_M2 - L_KVF}")})
    stamp(a, 8)
    srd(a, 28, pB2, 4096)
    srd(a, 32, pWS, 8192, WS_G)
    a("s_lshl_b32 s61, s56, 7")
    a("s_add_u32 s61, s61, s60")
    a("s_lshl_b32 s62, s61, 1")
    a("v_and_b32 v10, 31, v1")
    a("v_lshlrev_b32 v11, 2, v10")
    a("v_lshlrev_b32 v10, 1, v10")
    a(f"buffer_load_ushort v{Df}, v10, {sr(28)}, s61 offen")
    a(f"buffer_load_dword v{Df+1}, v11, {sr(32)}, s62 offen sc1")
    mreduce(a, "M2", acc, 49, 16, 10, 11, tmp, Df + 16, 62)
    a("s_waitcnt vmcnt(0)")
    G, Y = Df + 1, acc
    a(f"v_lshlrev_b32 v{Df}, 16, v{Df}")
    a(f"v_sub_f32 v{Df+2}, 1.0, v{G}")
    a(f"v_mul_f32 v{Df}, v{Df}, v{Df+2}")
    for i in range(16):
        a(f"v_fma_f32 v{Y+i}, v{Y+i}, v{Df+2}, v{Df}")
    stamp(a, 9)

    vR, vO = 4, 5
    Wf, Of, A3 = 96, 128, 80
    a("s_lshl_b32 s60, s51, 6")
    gemm_rd(a, 4, vR, None, None, 60, 10, 11)
    a("s_lshl_b32 s60, s50, 10")
    a("s_add_u32 s60, s60, 65536")
    a(f"v_add_u32 v{vO}, s60, v2")
    srd(a, 28, pOUT, 2 * MB)
    a("v_and_b32 v9, 31, v1")
    a("v_lshlrev_b32 v9, 10, v9")
    a("v_lshrrev_b32 v10, 5, v1")
    a("v_lshl_add_u32 v9, v10, 4, v9")
    a("s_lshl_b32 s57, s56, 16")
    a("s_lshl_b32 s58, s50, 15")
    a("s_add_u32 s57, s57, s58")
    a("s_lshl_b32 s58, s54, 7")
    a("s_add_u32 s57, s57, s58")
    a("s_lshl_b32 s58, s51, 6")
    a("s_add_u32 s57, s57, s58")

    def rd3(t):
        off = t * 2048
        r, o = vR, vO
        b = t % 8
        a(f"ds_read_b64_tr_b16 {vr(Wf+4*b,2)}, v{r} offset:{off}")
        a(f"ds_read_b64_tr_b16 {vr(Wf+4*b+2,2)}, v{r} offset:{off+1024}")
        a(f"ds_read_b128 {vr(Of+4*b,4)}, v{o} offset:{off}")

    for c in range(4):
        a("s_barrier")
        if c in (0, 3):
            stamp(a, 10 + c // 3)
        for j in range(4):
            rd3(8 * c + j)
        for j in range(8):
            t = 8 * c + j
            if j + 4 < 8:
                rd3(t + 4)
            a(f"s_waitcnt lgkmcnt({3*min(4, 7-j)})")
            mfma(a, A3, Wf + 4 * j, Of + 4 * j, "0" if t == 0 else None)
    stamp(a, 12)
    for i in range(16):
        a(f"v_fmac_f32 v{Y+i}, v{A3+i}, v{G}")
    for i in range(8):
        a(f"v_cvt_pk_bf16_f32 v{Tf+i}, v{Y+2*i}, v{Y+2*i+1}")
    for p in range(2):
        a(f"v_permlane32_swap_b32 v{Tf+4*p}, v{Tf+4*p+2}")
        a(f"v_permlane32_swap_b32 v{Tf+4*p+1}, v{Tf+4*p+3}")
        a(f"buffer_store_dwordx4 {vr(Tf+4*p,4)}, v9, {sr(28)}, s57 offen offset:{32*p}{' sc1' if 'osc1' in OPT else ''}{' nt' if 'ont' in OPT else ''}")
    endprof(a)
    a("s_endpgm")
    return dict(name=nm, vgpr=168, grid=256, block=768, lds=163840)


DOC = """; One launch, 256 workgroups of 12 waves, one per CU (all resident). Generated by the author's own script.
;           waves 8-11: both token-mixing MLP layers (wave-private split-K GEMMs) beside the attention.
"""


def build(path, verbose=False, aslist=False):
    ref = open("cdna_kernels/" + NAME + ".s.ref").read().split("\n")
    hdr = [l for l in ref if l.startswith(";") and "@launch" not in l and "Override launch" not in l and "grid=ceil" not in l]
    a = Asm()
    i = kernel(a)
    a.fix(verbose)
    s = "\n".join(hdr) + "\n"
    if aslist:
        s += f"; @launch kernel={i['name']} grid=({i['grid']},1,1) block=({i['block']},1,1) lds={i['lds']}\n"
    else:
        s += f"; @launch grid=({i['grid']},1,1) block=({i['block']},1,1) lds={i['lds']}\n"
    s += '.amdgcn_target "amdgcn-amd-amdhsa--gfx950"\n'
    s += DOC
    s += '.text\n'
    s += a.text()
    s += '.section .rodata,"a"\n'
    s += f""".p2align 6
.amdhsa_kernel {i['name']}
  .amdhsa_next_free_vgpr {i['vgpr']}
  .amdhsa_next_free_sgpr {102 if PROF or opt('cal', -1) >= 0 else 70}
  .amdhsa_accum_offset {i['vgpr']}
  .amdhsa_group_segment_fixed_size 0
  .amdhsa_kernarg_size 96
  .amdhsa_user_sgpr_count 2
  .amdhsa_user_sgpr_kernarg_segment_ptr 1
  .amdhsa_system_sgpr_workgroup_id_x 1
.end_amdhsa_kernel
"""
    open(path, "w").write(s)


if __name__ == "__main__":
    out = sys.argv[1] if len(sys.argv) > 1 and not sys.argv[1][0] in "-+" else "cdna_kernels/" + NAME + ".s"
    PROF = "-p" in sys.argv
    OPT = set(x[1:] for x in sys.argv if x.startswith("+"))
    build(out, verbose="-v" in sys.argv, aslist="-l" in sys.argv)
```

```python
import sys, math, struct
from asmlib import Asm

NAME = "gated_mix__softmax_full_mha__mixer_token_mlp__prompt"
MB = 1 << 20
WS_Q, WS_KV, WS_HT, WS_U, WS_O, WS_G, WS_F = 0, 2 * MB, 6 * MB, 8 * MB, 10 * MB, 14 * MB, 15 * MB
SZ_U = 172 * 8192
F_HT, F_E, F_QKV, F_U, F_O = 0, 8192, 131072, 262144, 524288
SZ_F = 786432
PROF = False
OPT = set()
WS_P = 16 * MB
LOG2E = math.log2(math.e)
pX, pWQKV, pWO, pW1, pB1, pW2, pB2, pGW, pOUT, pWS = 4, 6, 8, 12, 14, 16, 18, 20, 22, 26
MREG = 131072
LF = MREG + 6144 + 64
L_KVF, L_PUB, L_C0F, L_DONE, L_PAST, L_C1F, L_ISS, L_TAG = LF, LF + 16, LF + 32, LF + 64, LF + 96, LF + 128, LF + 144, LF + 192
L_M2 = LF + 160
PR1, PR0 = 4, 2
pDBG = 24


def f32(x):
    return "0x%08x" % struct.unpack("<I", struct.pack("<f", x))[0]


def srd(a, d, base, size, add=0):
    if add:
        a(f"s_add_u32 s{d}, s{base}, {hex(add)}")
        a(f"s_addc_u32 s{d+1}, s{base+1}, 0")
    else:
        a(f"s_mov_b32 s{d}, s{base}")
        a(f"s_mov_b32 s{d+1}, s{base+1}")
    a(f"s_mov_b32 s{d+2}, {hex(size)}")
    a(f"s_mov_b32 s{d+3}, 0x20000")


def vr(b, n):
    return f"v[{b}:{b+n-1}]"


def sr(b, n=4):
    return f"s[{b}:{b+n-1}]"


def mfma(a, D, A, B, C=None):
    c = vr(D, 16) if C is None else (C if isinstance(C, str) else vr(C, 16))
    a(f"v_mfma_f32_32x32x16_bf16 {vr(D,16)}, {vr(A,4)}, {vr(B,4)}, {c}")


def MT():
    return "s_memrealtime" if "rt" in OPT else "s_memtime"


def stamp(a, i):
    if opt("cal", -1) == i:
        a("s_memrealtime s[70:71]")
    if opt("ca_", -1) == i:
        a("s_memtime s[76:77]")
    if opt("cb_", -1) == i:
        a("s_memtime s[78:79]")
    if PROF:
        a(f"{MT()} s[{72+2*i}:{73+2*i}]")


_cal = [0]


def endprof(a, n=12):
    if opt("cal", -1) >= 0:
        _cal[0] += 1
        L = f"CAL{_cal[0]}"
        if opt("cal", -1) == 13:
            a("s_memrealtime s[70:71]")
        a("s_cmp_lg_u32 s2, 3")
        a(f"s_cbranch_scc1 {L}_X")
        a(f"s_cmp_lg_u32 s3, {opt('cw', 0)}")
        a(f"s_cbranch_scc1 {L}_X")
        a("s_mov_b32 s74, 400000")
        if opt("ca_", -1) >= 0:
            a("s_waitcnt lgkmcnt(0)")
            a("s_sub_u32 s78, s78, s76")
            a("s_lshr_b32 s78, s78, 3")
            a("s_add_u32 s70, s70, s78")
            a("s_sub_u32 s70, s70, 5000")
        a(f"{L}:")
        a("s_memrealtime s[72:73]")
        a("s_waitcnt lgkmcnt(0)")
        a("s_sub_u32 s74, s74, 1")
        a(f"s_cbranch_scc1 {L}_X")
        a("s_sub_u32 s72, s72, s70")
        a("s_cmp_lt_u32 s72, %d" % (8500 if opt("ca_", -1) >= 0 else 3500))
        a(f"s_cbranch_scc1 {L}")
        a(f"{L}_X:")
    if not PROF:
        return
    a("s_waitcnt vmcnt(0)")
    a(f"{MT()} s[{72+2*(n+1)}:{73+2*(n+1)}]")
    a("s_memrealtime s[100:101]")
    a("s_mov_b64 exec, -1")
    srd(a, 28, pWS, MB, WS_P)
    a("s_lshl_b32 s52, s2, 4")
    a("s_add_u32 s52, s52, s3")
    a("s_lshl_b32 s52, s52, 7")
    a("s_waitcnt lgkmcnt(0)")
    a("v_mov_b32 v2, 0")
    a("v_mov_b32 v3, s70")
    a("buffer_store_dword v3, v2, s[28:31], s52 offen")
    a("v_mov_b32 v3, s100")
    a("buffer_store_dword v3, v2, s[28:31], s52 offen offset:4")
    for i in range(1, n + 2):
        a(f"s_sub_u32 s53, s{72+2*i}, s72")
        a("v_mov_b32 v3, s53")
        a(f"buffer_store_dword v3, v2, s[28:31], s52 offen offset:{4+4*i}")


def gemm_src(a, strideT, vT0, vT1, t0, t1):
    a(f"v_lshrrev_b32 v{t0}, 3, v1")
    a(f"v_mul_u32_u24 v{t0}, {strideT}, v{t0}")
    a(f"v_bfe_u32 v{t1}, v1, 4, 1")
    a(f"v_lshlrev_b32 v{t1}, 2, v{t1}")
    a(f"v_xor_b32 v{t1}, v{t1}, v1")
    a(f"v_and_b32 v{t1}, 7, v{t1}")
    a(f"v_lshl_add_u32 v{vT0}, v{t1}, 4, v{t0}")
    a(f"v_add_u32 v{vT1}, {8*strideT}, v{vT0}")


def gemm_rd(a, hmul, vR0, vR1, sL, sSwap, t0, t1):
    a(f"v_lshrrev_b32 v{t0}, 5, v1")
    a(f"v_mul_u32_u24 v{t0}, {hmul}, v{t0}")
    a(f"v_bfe_u32 v{t1}, v1, 2, 2")
    a(f"v_add_u32 v{t0}, v{t0}, v{t1}")
    a(f"v_lshlrev_b32 v{t0}, 7, v{t0}")
    a(f"v_bfe_u32 v{t1}, v1, 3, 1")
    a(f"v_lshl_add_u32 v{t0}, v{t1}, 6, v{t0}")
    a(f"v_bfe_u32 v{t1}, v1, 4, 1")
    a(f"v_lshl_add_u32 v{t0}, v{t1}, 5, v{t0}")
    a(f"v_and_b32 v{t1}, 3, v1")
    a(f"v_lshl_add_u32 v{t0}, v{t1}, 3, v{t0}")
    if sL is None:
        a(f"v_xor_b32 v{vR0}, s{sSwap}, v{t0}")
        return
    a(f"v_xor_b32 v{t0}, s{sSwap}, v{t0}")
    a(f"v_add_u32 v{vR0}, s{sL}, v{t0}")
    a(f"v_xor_b32 v{t0}, 64, v{t0}")
    a(f"v_add_u32 v{vR1}, s{sL}, v{t0}")


def lds_spin(a, lab, vaddr, off, want, vt, cnt, sleep=1):
    a(f"s_mov_b32 s{cnt}, 0x100000")
    a(f"{lab}:")
    a(f"ds_read_b32 v{vt}, v{vaddr} offset:{off}")
    a("s_waitcnt lgkmcnt(0)")
    a(f"v_cmp_ne_u32 vcc, {want}, v{vt}")
    a(f"s_sub_u32 s{cnt}, s{cnt}, 1")
    a(f"s_cbranch_scc1 {lab}_X")
    a(f"s_cbranch_vccz {lab}_X")
    a(f"s_sleep {sleep}")
    a(f"s_branch {lab}")
    a(f"{lab}_X:")


def poll(a, lab, n, vaddr, sF, soff, vt, vTag, cnt, sleep, extra=None, mask=None, save=None):
    a(f"s_mov_b32 s{cnt}, 0x40000")
    a(f"{lab}:")
    if n == 1:
        a(f"buffer_load_dwordx2 {vr(vt,2)}, v{vaddr}, {sr(sF)}, {soff} offen sc1")
    else:
        a(f"buffer_load_dwordx4 {vr(vt,4)}, v{vaddr}, {sr(sF)}, {soff} offen sc1")
    if n == 4:
        a(f"buffer_load_dwordx4 {vr(vt+4,4)}, v{vaddr}, {sr(sF)}, {soff} offen offset:16 sc1")
    a("s_waitcnt vmcnt(0)")
    if extra:
        a(extra)
    for i in range(2 * n):
        a(f"v_xor_b32 v{vt+i}, v{vt+i}, v{vTag + i % 2}")
    k = 2 * n
    i = 1
    while i < k:
        if i + 1 < k:
            a(f"v_or3_b32 v{vt}, v{vt}, v{vt+i}, v{vt+i+1}")
            i += 2
        else:
            a(f"v_or_b32 v{vt}, v{vt}, v{vt+i}")
            i += 1
    a(f"v_cmp_ne_u32 vcc, 0, v{vt}")
    a(f"s_sub_u32 s{cnt}, s{cnt}, 1")
    a(f"s_cbranch_scc1 {lab}_X")
    if mask is None:
        a(f"s_cbranch_vccz {lab}_X")
    else:
        a(f"s_and_b32 s{save}, vcc_lo, {mask}")
        a(f"s_cbranch_scc0 {lab}_X")
    a(f"s_sleep {sleep}")
    a(f"s_branch {lab}")
    a(f"{lab}_X:")
    if mask is not None:
        a(f"s_mov_b32 s{save}, vcc_lo")


def spoll(a, lab, words, dst, sF, sTag, cnt, sleep):
    a(f"s_mov_b32 s{cnt}, 0x40000")
    a(f"{lab}:")
    for i, (so, imm) in enumerate(words):
        a(f"s_buffer_load_dwordx2 s[{dst+2*i}:{dst+2*i+1}], {sr(sF)}, s{so} offset:{imm} glc")
    a("s_waitcnt lgkmcnt(0)")
    for i in range(len(words)):
        a(f"s_xor_b64 s[{dst+2*i}:{dst+2*i+1}], s[{dst+2*i}:{dst+2*i+1}], s[{sTag}:{sTag+1}]")
        if i:
            a(f"s_or_b64 s[{dst}:{dst+1}], s[{dst}:{dst+1}], s[{dst+2*i}:{dst+2*i+1}]")
    a(f"s_cbranch_scc0 {lab}_X")
    a(f"s_sub_u32 s{cnt}, s{cnt}, 1")
    a(f"s_cbranch_scc1 {lab}_X")
    a(f"s_sleep {sleep}")
    a(f"s_branch {lab}")
    a(f"{lab}_X:")


def publish(a, sF, soff, vTag, vt):
    a(f"v_lshlrev_b32 v{vt}, 20, v1")
    a("s_waitcnt vmcnt(0)")
    a(f"buffer_store_dwordx2 {vr(vTag,2)}, v{vt}, {sr(sF)}, s{soff} offen sc1")


def get_tag(a, vTag, vt):
    a(f"v_mov_b32 v{vt}, {L_TAG}")
    a(f"ds_read_b64 {vr(vTag,2)}, v{vt}")


def opt(name, default):
    return next((int(o[len(name):]) for o in OPT if o.startswith(name)), default)


def lds_wait(a, lab, base, n, vA, vt, cnt, sleep=1):
    a(f"v_and_b32 v{vA}, {n-1}, v1")
    a(f"v_lshlrev_b32 v{vA}, 2, v{vA}")
    a(f"v_add_u32 v{vA}, {base}, v{vA}")
    lds_spin(a, lab, vA, 0, 1, vt, cnt, sleep)


class Gemm:
    def __init__(s, a, nsteps, P, srdT, srdD, sT, sD, sL, strideT, stepD, t_is_A, vT0, vT1, vD0, vD1, vR0, vR1, qoff,
                 Tf, Df, acc, dflags, sW, G):
        s.__dict__.update(locals())
        s.log = []

    def idx(s, i, dst, base, stride):
        a = s.a
        g0 = i // s.G * s.G
        gs = min(s.G, s.nsteps - g0)
        assert gs & (gs - 1) == 0
        a(f"s_add_u32 s{dst}, s{s.sW}, {i - g0}")
        a(f"s_and_b32 s{dst}, s{dst}, {gs - 1}")
        a(f"s_add_u32 s{dst}, s{dst}, {g0}")
        a(f"s_mul_i32 s{dst}, s{dst}, {stride}")
        a(f"s_add_u32 s{dst}, s{dst}, s{base}")

    def LD1(s, i, half):
        if i >= s.nsteps:
            return
        if "nold" in OPT and i > 3:
            s.a("s_sleep 1")
            return
        d = s.Df + 8 * (i % (s.P + 1)) + 4 * half
        if not half:
            s.idx(i, s.sW + 2, s.sD, s.stepD)
        s.a(f"buffer_load_dwordx4 {vr(d,4)}, v{(s.vD0, s.vD1)[half]}, {sr(s.srdD)}, s{s.sW+2} offen{s.dflags}")
        s.log.append(("D", i))

    def DMA1(s, i, half):
        if i >= s.nsteps:
            return
        if "nold" in OPT and i > 3:
            s.a("s_sleep 1")
            return
        a = s.a
        sl = (i % s.P) * 2048 + 1024 * half
        a(f"s_add_u32 m0, s{s.sL}, {sl}")
        if not half:
            s.idx(i, s.sW + 1, s.sT, 16 * s.strideT)
        else:
            a("s_nop 0")
        a(f"buffer_load_dwordx4 v{(s.vT0, s.vT1)[half]}, {sr(s.srdT)}, s{s.sW+1} offen{' nt' if 'ntt' in OPT else ''} lds")
        s.log.append(("T", i))

    def rd(s, i):
        sl = (i % s.P) * 2048
        t = s.Tf + 8 * (i % 2)
        for b, vR in ((0, s.vR0), (1, s.vR1)):
            for q in range(2):
                s.a(f"ds_read_b64_tr_b16 {vr(t+4*b+2*q,2)}, v{vR} offset:{sl+q*s.qoff}")

    def wait_for(s, items):
        if "nold" in OPT:
            s.a("s_waitcnt vmcnt(0)")
            return
        last = max(idx for idx, it in enumerate(s.log) if it in items)
        s.a(f"s_waitcnt vmcnt({min(63, len(s.log) - 1 - last)})")

    def pro_T(s):
        for j in range(s.P):
            s.DMA1(j, 0)
            s.DMA1(j, 1)

    def pro_D(s):
        for j in range(s.P):
            s.LD1(j, 0)
            s.LD1(j, 1)

    def main(s, hooks={}):
        a = s.a
        s.wait_for([("T", 0)])
        s.rd(0)
        a("s_waitcnt lgkmcnt(0)")
        s.DMA1(s.P, 0)
        s.DMA1(s.P, 1)
        if "mp3" not in OPT:
            a("s_setprio 0")
        n = s.nsteps
        for i in range(n):
            if i in hooks:
                hooks[i]()
            need = [("D", i)] + ([("T", i + 1)] if i + 1 < n else [])
            s.wait_for(need)
            t, d = s.Tf + 8 * (i % 2), s.Df + 8 * (i % (s.P + 1))
            for k in range(4):
                x, y = k // 2, k % 2
                C = "0" if i == 0 else None
                if "nomm" in OPT and i > 0:
                    pass
                elif s.t_is_A:
                    mfma(a, s.acc + 16 * k, t + 4 * x, d + 4 * y, C)
                else:
                    mfma(a, s.acc + 16 * k, d + 4 * x, t + 4 * y, C)
                if k == 0:
                    if i + 1 < n:
                        s.rd(i + 1)
                    s.LD1(i + s.P, 0)
                elif k == 1:
                    s.LD1(i + s.P, 1)
                elif k == 2:
                    if i + 1 < n:
                        a("s_waitcnt lgkmcnt(0)")
                    s.DMA1(i + 1 + s.P, 0)
                else:
                    s.DMA1(i + 1 + s.P, 1)
        a("s_setprio 3")


def gelu(a, X, T, U, n, s0):
    k = math.sqrt(2 / math.pi)
    a(f"v_mov_b32 v{U}, {f32(-2*k*LOG2E)}")
    a(f"v_mov_b32 v{U+1}, {f32(-2*k*LOG2E)}")
    a(f"v_mov_b32 v{U+2}, {f32(-2*k*LOG2E*0.044715)}")
    a(f"v_mov_b32 v{U+3}, {f32(-2*k*LOG2E*0.044715)}")
    a(f"v_mov_b32 v{U+4}, 1.0")
    a(f"v_mov_b32 v{U+5}, 1.0")
    for i in range(0, n, 2):
        a(f"v_pk_mul_f32 {vr(T+i,2)}, {vr(X+i,2)}, {vr(X+i,2)}")
    for i in range(0, n, 2):
        a(f"v_pk_fma_f32 {vr(T+i,2)}, {vr(T+i,2)}, {vr(U+2,2)}, {vr(U,2)}")
    for i in range(0, n, 2):
        a(f"v_pk_mul_f32 {vr(T+i,2)}, {vr(T+i,2)}, {vr(X+i,2)}")
    for i in range(n):
        a(f"v_exp_f32 v{T+i}, v{T+i}")
    for i in range(0, n, 2):
        a(f"v_pk_add_f32 {vr(T+i,2)}, {vr(T+i,2)}, {vr(U+4,2)}")
    for i in range(n):
        a(f"v_rcp_f32 v{T+i}, v{T+i}")
    for i in range(0, n, 2):
        a(f"v_pk_mul_f32 {vr(X+i,2)}, {vr(X+i,2)}, {vr(T+i,2)}")


def mreduce(a, tag, acc, sL, fl, vA, vB, vT, R, cnt):
    a(f"v_lshlrev_b32 v{vA}, 4, v1")
    a(f"v_add_u32 v{vA}, s{sL}, v{vA}")
    a(f"v_mov_b32 v{vB}, s{sL}")
    a(f"v_mov_b32 v{vT+1}, 1")
    a("s_nop 7")
    wr, rdb = {1: 0, 2: 1, 3: 3}, {1: 1, 2: 3, 3: 0}

    def add():
        for i in range(0, 16, 2):
            a(f"v_pk_add_f32 {vr(acc+i,2)}, {vr(acc+i,2)}, {vr(R+i,2)}")

    for r in (1, 2, 3):
        if wr[r]:
            a(f"v_xor_b32 v{vT+2}, {8192*wr[r]}, v{vA}")
        for i in range(4):
            a(f"ds_write_b128 v{vT+2 if wr[r] else vA}, {vr(acc+16*r+4*i,4)} offset:{1024*i}")
        a(f"v_xor_b32 v{vT+3}, {8192*r}, v{vB}")
        if r > 1:
            add()
        a("s_waitcnt lgkmcnt(0)")
        a(f"ds_write_b32 v{vB}, v{vT+1} offset:{6144+fl+4*(r-1)}")
        lds_spin(a, f"{tag}_R{r}", vT + 3, 6144 + fl + 4 * (r - 1), 1, vT, cnt)
        if rdb[r]:
            a(f"v_xor_b32 v{vT+2}, {8192*rdb[r]}, v{vA}")
        for i in range(4):
            a(f"ds_read_b128 {vr(R+4*i,4)}, v{vT+2 if rdb[r] else vA} offset:{1024*i}")
        a("s_waitcnt lgkmcnt(0)")
    add()


def kernel(a):
    global PROF, PR1, PR0
    PR1, PR0 = opt("pa", 4), opt("pb", 2)
    nm = NAME + "_kernel"
    a.raw(f".globl {nm}")
    a.raw(".p2align 8")
    a.raw(f".type {nm},@function")
    a(f"{nm}:")
    if PROF:
        a("s_memrealtime s[70:71]")
        a(f"{MT()} s[72:73]")
    stamp(a, 0) if not PROF else None
    SLOT, NS = 32768, 4
    NTX = " nt" if "ntx" in OPT else ""
    NTW = " nt" if "ntw" in OPT else ""
    NTM = " nt" if "ntm" in OPT else ""
    vTag = 166
    a("s_cmp_ge_u32 s2, 256")
    a("s_cbranch_scc1 END")
    a("s_load_dwordx16 s[4:19], s[0:1], 0")
    a("s_load_dwordx8 s[20:27], s[0:1], 64")
    a("v_lshrrev_b32 v2, 6, v0")
    a("v_and_b32 v1, 63, v0")
    a("v_readfirstlane_b32 s3, v2")
    a("s_and_b32 s52, s2, 7")
    a("s_lshr_b32 s53, s2, 3")
    a("s_mul_i32 s55, s53, 43")
    a("s_lshr_b32 s55, s55, 8")
    a("s_mul_i32 s56, s55, 6")
    a("s_sub_u32 s56, s53, s56")
    a("s_lshl_b32 s58, s55, 1")
    a("s_add_u32 s58, s58, s56")
    a("s_lshr_b32 s54, s52, 1")
    a("s_lshl_b32 s54, s54, 2")
    a("s_add_u32 s54, s54, s55")
    a("s_and_b32 s55, s52, 1")
    a("s_mul_i32 s55, s55, 6")
    a("s_add_u32 s55, s55, s56")
    a("s_cmp_ge_u32 s3, 8")
    a("s_cbranch_scc1 P1_M")
    a("s_cmp_ge_u32 s53, 24")
    a("s_cbranch_scc1 SVC")
    a("s_cmp_ge_u32 s3, 4")
    a("s_cbranch_scc1 P1_LOAD")

    vXA, vWA = 10, 18
    Fb = 112
    acc = 48
    a("s_and_b32 s56, s3, 1")
    a("s_lshr_b32 s57, s3, 1")
    a("s_lshl_b32 s59, s56, 13")
    a("v_and_b32 v2, 31, v1")
    a("v_lshrrev_b32 v3, 5, v1")
    a("v_bfe_u32 v9, v1, 1, 3")
    a("v_lshlrev_b32 v2, 7, v2")
    a("v_add_u32 v2, s59, v2")
    for kk in range(4):
        a(f"v_add_u32 v30, {2*kk}, v3")
        a("v_xor_b32 v30, v30, v9")
        a(f"v_lshl_add_u32 v{vXA+kk}, v30, 4, v2")
        a(f"v_add_u32 v{vXA+4+kk}, {2*SLOT}, v{vXA+kk}")
    a("s_lshl_b32 s59, s57, 13")
    a("s_add_u32 s59, s59, 16384")
    a("s_mov_b32 s60, 0")
    gemm_rd(a, 8, vWA, vWA + 1, 59, 60, 2, 9)
    a(f"v_add_u32 v{vWA+2}, {2*SLOT}, v{vWA}")
    a(f"v_add_u32 v{vWA+3}, {2*SLOT}, v{vWA+1}")
    a("s_and_b32 s59, s55, 3")
    a("s_lshl_b32 s59, s59, 1")
    a("s_add_u32 s59, s59, s57")
    a("s_lshl_b32 s60, s54, 1")
    a("s_add_u32 s60, s60, s56")
    a("s_lshr_b32 s61, s55, 2")
    a("s_lshl_b32 s62, s61, 8")
    a("s_lshl_b32 s63, s59, 5")
    a("s_add_u32 s62, s62, s63")
    a("s_add_u32 s62, s62, s60")
    a("s_lshl_b32 s62, s62, 7")
    a(f"s_add_u32 s62, s62, {F_QKV}")
    a("s_lshl_b32 s63, s59, 18")
    a("s_lshl_b32 s64, s60, 11")
    a("s_add_u32 s63, s63, s64")
    a("s_lshl_b32 s64, s63, 1")
    a(f"s_add_u32 s64, s64, {WS_KV - WS_Q}")
    a("s_cmp_eq_u32 s61, 0")
    a("s_cselect_b32 s63, s63, s64")
    a("s_cselect_b32 s65, 1, 2")
    a(f"s_cselect_b32 s66, {f32(0.25*LOG2E)}, 1.0")
    a("s_mov_b32 s67, s66")
    a("s_lshl_b32 s64, s65, 16")
    a("s_lshl_b32 s65, s65, 10")
    a("v_lshlrev_b32 v2, 4, v1")
    a("v_bfe_u32 v9, v1, 4, 1")
    a("v_lshlrev_b32 v9, 17, v9")
    a("v_lshl_add_u32 v9, v3, 8, v9")
    a("v_and_b32 v30, 15, v1")
    a("v_lshl_add_u32 v9, v30, 4, v9")
    a("s_lshl_b32 s59, s3, 2")
    a(f"s_add_u32 s59, s59, {L_PUB}")
    a("v_mov_b32 v31, s59")
    a("v_mov_b32 v30, 1")
    a("s_waitcnt lgkmcnt(0)")
    srd(a, 28, pWS, 6 * MB, WS_Q)
    srd(a, 36, pWS, SZ_F, WS_F)
    a("s_cmp_eq_u32 s61, 2")
    a("s_cbranch_scc1 P1_V")

    def reads(t):
        c, kk = t // 4, t % 4
        s = c % NS
        st, so = s // 2, (s % 2) * SLOT
        f = Fb + 16 * (t % 3)
        r = []
        for b in range(2):
            r.append(f"ds_read_b128 {vr(f+4*b,4)}, v{vXA+4*st+kk} offset:{so+b*4096}")
            for q in range(2):
                r.append(f"ds_read_b64_tr_b16 {vr(f+8+4*b+2*q,2)}, v{vWA+2*st+b} offset:{so+kk*2048+q*512}")
        return r

    def p1main(vtype):
        a("s_barrier")
        stamp(a, 1)
        for t in range(2):
            for x in reads(t):
                a(x)
        for t in range(32):
            if t % 4 == 2 and t + 2 < 32:
                a("s_barrier")
            a(f"s_waitcnt lgkmcnt({6 if t + 1 < 32 else 0})")
            rr = reads(t + 2) if t + 2 < 32 else []
            f = Fb + 16 * (t % 3)
            for j in range(4):
                cb, tb = j // 2, j % 2
                X, W = f + 4 * tb, f + 8 + 4 * cb
                if vtype:
                    mfma(a, acc + 16 * j, X, W, "0" if t == 0 else None)
                else:
                    mfma(a, acc + 16 * j, W, X, "0" if t == 0 else None)
                for x in rr[(0, 2, 4, 6)[j]:(2, 4, 6, 6)[j]]:
                    a(x)
        stamp(a, 2)
        get_tag(a, vTag, 32)
        for j in range(4):
            cb, tb = j // 2, j % 2
            if j == 0:
                a("s_mov_b32 s59, s63")
            elif j == 1:
                a("s_add_u32 s59, s63, s65")
            elif j == 2:
                a("s_lshl_b32 s60, s64, 1")
                a("s_add_u32 s63, s63, s60")
                a("s_mov_b32 s59, s63")
            else:
                a("s_add_u32 s59, s63, s65")
            a("s_add_u32 s60, s59, s64")
            for hf in range(2):
                A0, r = acc + 16 * j + 8 * hf, Fb + 8 * j + 4 * hf
                if not vtype:
                    for i in range(0, 8, 2):
                        a(f"v_pk_mul_f32 {vr(A0+i,2)}, {vr(A0+i,2)}, s[66:67]")
                for i in range(4):
                    a(f"v_cvt_pk_bf16_f32 v{r+i}, v{A0+2*i}, v{A0+2*i+1}")
                if vtype:
                    a(f"buffer_store_dwordx4 {vr(r,4)}, v9, {sr(28)}, s59 offen offset:{1024+512*hf} sc1")
                else:
                    a(f"buffer_store_dwordx4 {vr(r,4)}, v2, {sr(28)}, s{59+hf} offen sc1")

    p1main(False)
    a("s_branch P1_PUB")
    a("P1_V:")
    p1main(True)
    a("P1_PUB:")
    a(f"ds_write_b32 v31, v30 offset:{L_ISS-L_PUB}")
    a("s_waitcnt lgkmcnt(0)")
    publish(a, 36, 62, vTag, 32)
    a("ds_write_b32 v31, v30")
    stamp(a, 3)
    a("s_branch ATT")

    a("SVC:")
    NR = 4
    raw, gwr, X, GW, SUM, DOT = 4, 20, 24, 56, 64, 68
    a("s_lshl_b32 s56, s52, 3")
    a("s_and_b32 s57, s53, 7")
    a("s_add_u32 s56, s56, s57")
    a("s_lshl_b32 s56, s56, 3")
    a("s_add_u32 s56, s56, s3")
    a("s_lshl_b32 s57, s56, 12")
    a("v_lshlrev_b32 v2, 4, v1")
    a("s_waitcnt lgkmcnt(0)")
    srd(a, 28, pX, 2 * MB)
    srd(a, 32, pGW, 1024)
    for r in range(NR):
        a(f"buffer_load_dwordx4 {vr(raw+4*r,4)}, v2, {sr(28)}, s57 offen offset:{r*1024}")
    a(f"buffer_load_dwordx4 {vr(gwr,4)}, v2, {sr(32)}, 0 offen")
    srd(a, 28, pWS, 2 * MB, WS_HT)
    srd(a, 32, pWS, 8192, WS_G)
    srd(a, 36, pWS, SZ_F, WS_F)
    a("s_mov_b32 s59, 0xffff0000")
    a("s_lshr_b32 s60, s3, 1")
    a("s_lshl_b32 s60, s60, 13")
    a("s_add_u32 s60, s60, 65536")
    a("s_and_b32 s61, s3, 1")
    a("s_lshl_b32 s62, s61, 3")
    a("s_add_u32 s62, s62, s60")
    a("s_lshl_b32 s61, s61, 12")
    a("s_add_u32 s61, s61, s60")
    a("v_lshlrev_b32 v72, 7, v1")
    a("v_and_b32 v73, 7, v1")
    a("v_lshl_add_u32 v72, v73, 4, v72")
    a("v_add_u32 v72, s62, v72")
    a("v_lshrrev_b32 v74, 3, v1")
    a("v_xor_b32 v73, v73, v74")
    a("v_lshlrev_b32 v74, 7, v74")
    a("v_lshl_add_u32 v73, v73, 4, v74")
    a("v_add_u32 v73, s61, v73")
    a("s_waitcnt vmcnt(0)")
    stamp(a, 1)
    for i in range(4):
        a(f"v_lshlrev_b32 v{GW+2*i}, 16, v{gwr+i}")
        a(f"v_and_b32 v{GW+2*i+1}, s59, v{gwr+i}")
    for r in range(NR):
        for i in range(4):
            a(f"v_lshlrev_b32 v{X+8*r+2*i}, 16, v{raw+4*r+i}")
            a(f"v_and_b32 v{X+8*r+2*i+1}, s59, v{raw+4*r+i}")
    T = raw
    for r in range(NR):
        a(f"v_pk_add_f32 {vr(T+4*r,2)}, {vr(X+8*r,2)}, {vr(X+8*r+2,2)}")
        a(f"v_pk_mul_f32 {vr(T+4*r+2,2)}, {vr(X+8*r,2)}, {vr(GW,2)}")
    for e in (2, 4, 6):
        for r in range(NR):
            if e >= 4:
                a(f"v_pk_add_f32 {vr(T+4*r,2)}, {vr(T+4*r,2)}, {vr(X+8*r+e,2)}")
            a(f"v_pk_fma_f32 {vr(T+4*r+2,2)}, {vr(X+8*r+e,2)}, {vr(GW+e,2)}, {vr(T+4*r+2,2)}")
    for r in range(NR):
        a(f"v_add_f32 v{SUM+r}, v{T+4*r}, v{T+4*r+1}")
        a(f"v_add_f32 v{DOT+r}, v{T+4*r+2}, v{T+4*r+3}")

    def reduce(regs):
        for mod in ("row_shr:1 row_mask:0xf", "row_shr:2 row_mask:0xf", "row_shr:4 row_mask:0xf", "row_shr:8 row_mask:0xf",
                    "row_bcast:15 row_mask:0xa", "row_bcast:31 row_mask:0xc"):
            for r in regs:
                a(f"v_add_f32_dpp v{r}, v{r}, v{r} {mod} bank_mask:0xf")

    reduce(list(range(SUM, SUM + NR)))
    for r in range(NR):
        a(f"v_mul_f32 v{SUM+r}, {f32(1/512)}, v{SUM+r}")
    for r in range(NR):
        a(f"v_readlane_b32 s{40+r}, v{SUM+r}, 63")
    for e in range(8):
        for r in range(NR):
            a(f"v_subrev_f32 v{X+8*r+e}, s{40+r}, v{X+8*r+e}")
    for r in range(NR):
        a(f"v_pk_mul_f32 {vr(T+4*r,2)}, {vr(X+8*r,2)}, {vr(X+8*r,2)}")
    for e in (2, 4, 6):
        for r in range(NR):
            a(f"v_pk_fma_f32 {vr(T+4*r,2)}, {vr(X+8*r+e,2)}, {vr(X+8*r+e,2)}, {vr(T+4*r,2)}")
    for r in range(NR):
        a(f"v_add_f32 v{SUM+r}, v{T+4*r}, v{T+4*r+1}")
    reduce(list(range(SUM, SUM + NR)))
    a(f"v_mov_b32 v3, {f32(1e-5)}")
    a(f"s_mov_b32 s60, {f32(1/512)}")
    for r in range(NR):
        a(f"v_fma_f32 v{SUM+r}, v{SUM+r}, s60, v3")
    for r in range(NR):
        a(f"v_rsq_f32 v{SUM+r}, v{SUM+r}")
    a("s_nop 0")
    for r in range(NR):
        a(f"v_readlane_b32 s{40+r}, v{SUM+r}, 63")
    for e in range(8):
        for r in range(NR):
            a(f"v_mul_f32 v{X+8*r+e}, s{40+r}, v{X+8*r+e}")
        for p in range(2):
            a(f"v_cvt_pk_bf16_f32 v{raw+2*e+p}, v{X+16*p+e}, v{X+16*p+8+e}")
        a(f"v_xor_b32 v{GW+e}, {16*e}, v72")
        a(f"ds_write_b64 v{GW+e}, {vr(raw+2*e,2)}")
    a("s_waitcnt lgkmcnt(0)")
    a("s_barrier")
    for j in range(4):
        a(f"ds_read_b128 {vr(X+4*j,4)}, v73 offset:{j*1024}")
    get_tag(a, vTag, 3)
    for j in range(4):
        a(f"s_waitcnt lgkmcnt({4-j})")
        a(f"buffer_store_dwordx4 {vr(X+4*j,4)}, v2, {sr(28)}, s57 offen offset:{j*1024} sc1")
    reduce(list(range(DOT, DOT + NR)))
    for r in range(NR):
        a(f"v_mul_f32 v{DOT+r}, {f32(-LOG2E)}, v{DOT+r}")
    for r in range(NR):
        a(f"v_exp_f32 v{DOT+r}, v{DOT+r}")
    for r in range(NR):
        a(f"v_add_f32 v{DOT+r}, 1.0, v{DOT+r}")
    for r in range(NR):
        a(f"v_rcp_f32 v{DOT+r}, v{DOT+r}")
    a("s_lshl_b32 s60, s56, 4")
    a("v_mov_b32 v3, 0")
    a("s_mov_b32 exec_lo, 0")
    a("s_mov_b32 exec_hi, 0x80000000")
    a(f"buffer_store_dwordx4 {vr(DOT,4)}, v3, {sr(32)}, s60 offen sc1")
    a("s_mov_b64 exec, -1")
    stamp(a, 2)
    a("s_waitcnt vmcnt(0) lgkmcnt(0)")
    a("s_barrier")
    a("s_cmp_lg_u32 s3, 0")
    a("s_cbranch_scc1 SVC_P")
    a("s_lshl_b32 s60, s56, 4")
    publish(a, 36, 60, vTag, 3)
    a("SVC_P:")
    a("s_barrier")
    stamp(a, 3)
    a("s_branch L_TAIL")

    a("P1_LOAD:")
    vX0, vT0, vT1 = 4, 8, 9
    a("s_sub_u32 s59, s3, 4")
    a("v_lshrrev_b32 v2, 3, v1")
    a("v_and_b32 v3, 7, v1")
    a("v_lshrrev_b32 v20, 4, v1")
    a("v_xor_b32 v3, v3, v20")
    a("v_lshlrev_b32 v2, 10, v2")
    a(f"v_lshl_add_u32 v{vX0}, v3, 4, v2")
    a(f"v_xor_b32 v3, 4, v3")
    a(f"v_lshl_add_u32 v{vX0+1}, v3, 4, v2")
    a(f"v_add_u32 v{vX0+1}, 8192, v{vX0+1}")
    a(f"v_add_u32 v{vX0+2}, 16384, v{vX0}")
    a(f"v_add_u32 v{vX0+3}, 16384, v{vX0+1}")
    gemm_src(a, 3072, vT0, vT1, 2, 3)
    a("s_lshl_b32 s60, s54, 17")
    a("s_lshl_b32 s61, s59, 15")
    a("s_add_u32 s60, s60, s61")
    a("s_mul_i32 s61, s59, 49152")
    a("s_lshl_b32 s62, s55, 8")
    a("s_add_u32 s61, s61, s62")
    a("s_lshl_b32 s62, s59, 12")
    a("s_lshl_b32 s65, s59, 11")
    a("s_waitcnt lgkmcnt(0)")
    srd(a, 28, pX, 2 * MB)
    srd(a, 32, pWQKV, 512 * 3072)

    def dma(c):
        sl = (c % NS) * SLOT
        for t in ["s_and_b32 s58, s58, 7", "s_lshl_b32 s63, s58, 7", "s_add_u32 s63, s63, s60",
                  "s_mul_i32 s64, s58, 196608", "s_add_u32 s64, s64, s61", "s_add_u32 s58, s58, 1"]:
            a(t)
        def dx():
            for n in range(4):
                a(f"s_add_u32 m0, s62, {sl + n*1024}")
                a("s_nop 0")
                a(f"buffer_load_dwordx4 v{vX0+n}, {sr(28)}, s63 offen{NTX} lds")

        def dw():
            for n, v in enumerate((vT0, vT1)):
                for hf in range(2):
                    a(f"s_add_u32 m0, s65, {sl + 16384 + hf*(8192-128) + n*1024}")
                    a("s_nop 0")
                    a(f"buffer_load_dwordx4 v{v}, {sr(32)}, s64 offen offset:{hf*128}{NTW} lds")
        if c == 1 and "wfirst" in OPT:
            dw(); dx()
        else:
            dx(); dw()

    if "p1st" in OPT:
        stamp(a, 3)
    dma(0)
    if "p1st" in OPT:
        stamp(a, 4)
    a(f"s_waitcnt vmcnt({opt('fw', 4)})")
    if "p1st" in OPT:
        stamp(a, 5)
    for c in range(8):
        if c + 1 < 8:
            dma(c + 1)
            a("s_waitcnt vmcnt(8)")
        else:
            a("s_waitcnt vmcnt(0)")
        if "p1st" in OPT and c >= 1:
            stamp(a, 5 + c)
        a("s_barrier")
        if c == 0:
            stamp(a, 1)
    stamp(a, 2)
    if "p1st" in OPT:
        PROF = False
    a("L_TAIL:")
    get_tag(a, vTag, 2)
    srd(a, 28, pWS, 6 * MB, WS_Q)
    srd(a, 36, pWS, SZ_F, WS_F)
    lds_wait(a, "L_ISSW", L_PUB, 4, 3, 4, 62, 2)

    a("ATT:")
    Q, C, S, P, O, Kb, Vb = 4, 8, 24, 56, 64, 80, 88
    vL16, vLV, vK, vV, vOne, vF = 2, 3, 104, 105, 106, 107
    a("s_lshl_b32 s54, s52, 2")
    a("s_and_b32 s55, s53, 3")
    a("s_add_u32 s54, s54, s55")
    a("s_lshr_b32 s55, s53, 2")
    a("s_lshl_b32 s56, s55, 3")
    a("s_add_u32 s56, s56, s3")
    a("s_lshl_b32 s57, s54, 16")
    a("s_lshl_b32 s58, s56, 10")
    a("s_add_u32 s57, s57, s58")
    a("s_lshl_b32 s58, s3, 11")
    a("s_lshl_b32 s59, s54, 17")
    a("s_add_u32 s59, s59, s58")
    a(f"s_add_u32 s59, s59, {WS_KV - WS_Q}")
    a("s_lshl_b32 s60, s52, 5")
    a("s_lshr_b32 s61, s3, 1")
    a("s_add_u32 s60, s60, s61")
    a("s_lshl_b32 s60, s60, 7")
    a(f"s_add_u32 s60, s60, {F_QKV}")
    a("s_lshl_b32 s61, s55, 9")
    a("v_and_b32 v110, 1, v1")
    a("v_add_u32 v110, 1, v110")
    a("v_lshlrev_b32 v110, 15, v110")
    a("v_bfe_u32 v109, v1, 1, 2")
    a("v_lshl_add_u32 v112, v109, 9, v110")
    a("s_and_b32 s63, s3, 3")
    a("s_lshr_b32 s62, s3, 1")
    a("s_sub_u32 s63, s63, s62")
    a("s_lshl_b32 s63, s63, 7")
    a("v_add_u32 v110, s63, v112")
    a("v_cmp_ne_u32 vcc, 0, v109")
    a("s_nop 0")
    a("v_cndmask_b32 v112, v112, v110, vcc")
    a("v_mov_b32 v110, s61")
    a("v_cmp_eq_u32 vcc, 3, v109")
    a("s_nop 0")
    a("v_cndmask_b32 v112, v112, v110, vcc")
    a("v_lshrrev_b32 v3, 5, v1")
    a(f"v_lshlrev_b32 v{vL16}, 4, v1")
    a("v_lshlrev_b32 v3, 8, v3")
    a("v_and_b32 v104, 15, v1")
    a("v_lshl_add_u32 v3, v104, 4, v3")
    a(f"v_add_u32 v{vLV}, 1024, v3")
    a(f"v_mov_b32 v{vK}, v{vL16}")
    a(f"v_mov_b32 v{vV}, v{vLV}")
    a("s_mov_b32 s40, 0x0000ffff")
    a("s_mov_b32 s41, 0x0000ffff")
    a(f"v_and_b32 v{vOne}, 27, v1")
    a(f"v_cmp_eq_u32 vcc, 16, v{vOne}")
    a(f"v_mov_b32 v{vOne}, 0x3f803f80")
    a(f"v_cndmask_b32 v{vOne}, 0, v{vOne}, vcc")
    for i in range(16):
        a(f"v_mov_b32 v{Vb+i}, v{vOne}")
    for i in range(16):
        a(f"v_mov_b32 v{O+i}, 0")
    for i in range(4):
        a(f"v_mov_b32 v{P+4+i}, 0")
    a("s_lshl_b32 s63, s3, 2")
    a(f"s_add_u32 s63, s63, {L_C0F}")
    a("v_mov_b32 v108, s63")
    a("v_mov_b32 v109, 1")
    a(f"v_and_b32 v{vF}, 7, v1")
    a(f"v_lshlrev_b32 v{vF}, 2, v{vF}")
    a(f"v_add_u32 v{vF}, {L_C0F}, v{vF}")
    a("v_and_b32 v111, 3, v1")
    a("v_lshlrev_b32 v111, 2, v111")
    a(f"v_add_u32 v111, {L_KVF}, v111")
    KW, VW = 32768, 65536
    if "p3w" in OPT:
        a("s_mov_b32 exec_lo, 0x43")
        a("s_mov_b32 exec_hi, 0")
        poll(a, "A_POLL", 1, 112, 36, "s60", S, vTag, 62, opt("as", 2))
        a("s_mov_b64 exec, -1")
        a("s_mov_b32 s61, 1")
    elif "p7w" not in OPT:
        a("s_cmp_lt_u32 s3, 4")
        a("s_cselect_b32 s63, 0, 60")
        a("s_or_b32 exec_lo, s63, 0x43")
        a("s_mov_b32 exec_hi, 0")
        poll(a, "A_POLL", 1, 112, 36, "s60", S, vTag, 62, opt("as", 2), mask=0xc3, save=61)
        a("s_mov_b64 exec, -1")
    else:
        poll(a, "A_POLL", 1, 112, 36, "s60", S, vTag, 62, opt("as", 2), mask=0xc3, save=61)
    stamp(a, 4)
    a("s_mov_b32 m0, s58")
    a("s_setprio 2")
    a(f"buffer_load_dwordx4 v{vL16}, {sr(28)}, s59 offen sc1 lds")
    a(f"buffer_load_dwordx4 {vr(Q,4)}, v{vL16}, {sr(28)}, s57 offen sc1")
    a(f"buffer_load_dwordx4 v{vL16}, {sr(28)}, s59 offen offset:1024 sc1 lds")
    a("s_waitcnt vmcnt(0)")
    a("ds_write_b32 v108, v109")
    lds_spin(a, "A_C0", vF, 0, 1, 110, 62)
    a("s_cmp_lt_u32 s3, 4")
    a("s_cbranch_scc1 A_C12")
    a("s_cmp_eq_u32 s61, 0")
    a("s_cbranch_scc1 A_POLL2_X")
    poll(a, "A_POLL2", 1, 112, 36, "s60", S, vTag, 62, 2)
    a("s_sub_u32 s59, s59, s58")
    a("s_and_b32 s58, s3, 3")
    a("s_lshl_b32 s58, s58, 12")
    a("s_add_u32 s59, s59, s58")
    for c in (1, 2):
        a(f"s_add_u32 m0, s58, {16384*c}")
        a("s_add_u32 s59, s59, 16384")
        for n in range(4):
            a(f"buffer_load_dwordx4 v{vL16}, {sr(28)}, s59 offen offset:{1024*n} sc1 lds")
    a("s_waitcnt vmcnt(0)")
    a(f"ds_write_b32 v108, v109 offset:{L_C1F-L_C0F-16}")
    a("A_C12:")
    stamp(a, 5)

    def rdK(buf, off):
        a(f"ds_read_b128 {vr(Kb+4*buf,4)}, v{vK} offset:{off}")

    def rdV(buf, off):
        a("s_mov_b64 exec, s[40:41]")
        a(f"ds_read_b128 {vr(Vb+8*buf,4)}, v{vV} offset:{off}")
        a(f"ds_read_b128 {vr(Vb+8*buf+4,4)}, v{vV} offset:{off+512}")
        a("s_mov_b64 exec, -1")

    def setC(src):
        a(f"v_mov_b32 v{src+1}, v{src}")
        a(f"v_permlane32_swap_b32 v{src}, v{src+1}")
        a(f"v_max_f32 v{src}, v{src}, v{src+1}")
        a(f"v_sub_f32 v{C}, 0, v{src}")
        for i in range(1, 16):
            a(f"v_mov_b32 v{C+i}, v{C}")

    srd(a, 32, pWS, 2 * MB, WS_O)
    rdK(0, 0)
    rdK(1, 2048)
    rdV(0, 0)
    a("s_waitcnt lgkmcnt(3)")
    mfma(a, S, Kb, Q, "0")
    a(f"v_max3_f32 v{S}, v{S}, v{S+1}, v{S+2}")
    for i in range(3, 15, 2):
        a(f"v_max3_f32 v{S}, v{S}, v{S+i}, v{S+i+1}")
    a(f"v_max_f32 v{S}, v{S}, v{S+15}")
    setC(S)
    mfma(a, S, Kb, Q, C)
    a("s_mov_b32 s43, 16384")
    a("s_mov_b32 s44, 8")
    a(f"s_mov_b32 s45, {(1<<8)|(1<<6)|(1<<PR1)|(1<<PR0)}")

    def tile(i):
        b = i % 2
        Sc, Sn = S + 16 * b, S + 16 * (1 - b)
        e = lambda k: a(f"v_exp_f32 v{Sc+k}, v{Sc+k}")
        c = lambda k: a(f"v_cvt_pk_bf16_f32 v{P+k}, v{Sc+2*k}, v{Sc+2*k+1}")
        e(0); e(1)
        mfma(a, O, Vb + 8 * (1 - b) + 4, P + 4)
        for k in range(2, 8):
            e(k)
        a("s_waitcnt lgkmcnt(2)")
        mfma(a, Sn, Kb + 4 * (1 - b), Q, C)
        if i == 6:
            a("s_bitcmp1_b32 s45, s44")
            a(f"v_add_u32 v{vK}, s43, v{vL16}")
            a("s_cbranch_scc1 A_EVENT")
            a("A_BACK:")
        rdK(b, ((i + 2) % 8) * 2048)
        for k in range(4):
            c(k)
        for k in range(8, 12):
            e(k)
        a("s_waitcnt lgkmcnt(1)")
        mfma(a, O, Vb + 8 * b, P)
        if i == 7:
            a(f"v_add_u32 v{vV}, s43, v{vLV}")
            a("s_add_u32 s43, s43, 16384")
            a("s_and_b32 s43, s43, 0x1ffff")
        rdV(1 - b, ((i + 1) % 8) * 2048)
        for k in range(12, 16):
            e(k)
        if i == 7:
            a("s_sub_u32 s44, s44, 1")
            a("s_cmp_lg_u32 s44, 0")
        for k in range(4, 8):
            c(k)

    a("s_nop 7")
    a.raw(".p2align 6")
    a("A_LOOP:")
    for i in range(8):
        tile(i)
    a("s_cbranch_scc1 A_LOOP")
    stamp(a, 7)
    a("s_nop 1")
    mfma(a, O, Vb + 8 + 4, P + 4)
    a("s_waitcnt lgkmcnt(0)")
    a(f"v_mov_b32 v{S+2}, {f32(2.0**30)}")
    a(f"v_mov_b32 v{S+3}, {f32(2.0**120)}")
    a("s_lshr_b32 s59, s56, 1")
    a("s_lshl_b32 s59, s59, 2")
    a("s_and_b32 s60, s53, 3")
    a("s_add_u32 s59, s59, s60")
    a("s_lshl_b32 s59, s59, 3")
    a("s_add_u32 s59, s59, s52")
    a("s_lshl_b32 s59, s59, 1")
    a("s_and_b32 s60, s3, 1")
    a("s_add_u32 s59, s59, s60")
    a("s_lshl_b32 s59, s59, 7")
    a(f"s_add_u32 s59, s59, {F_O}")
    a(f"v_rcp_f32 v{S}, v{O+8}")
    a(f"v_max3_f32 v{S+1}, |v{O}|, |v{O+1}|, |v{O+2}|")
    a(f"v_max3_f32 v{S+1}, v{S+1}, |v{O+3}|, |v{O+4}|")
    a(f"v_max3_f32 v{S+1}, v{S+1}, |v{O+5}|, |v{O+6}|")
    a(f"v_max_f32 v{S+1}, v{S+1}, |v{O+7}|")
    a(f"v_cmp_nle_f32 vcc, v{O+8}, v{S+2}")
    a(f"v_cmp_nle_f32 s[46:47], v{S+1}, v{S+3}")
    a("s_or_b64 vcc, vcc, s[46:47]")
    a(f"ds_write_b32 v108, v109 offset:{L_DONE-L_C0F}")
    a("s_cbranch_vccnz A_SLOW")
    a("A_OUT:")
    for i in range(8):
        a(f"v_mul_f32 v{O+i}, v{O+i}, v{S}")
    for i in range(4):
        a(f"v_cvt_pk_bf16_f32 v{P+i}, v{O+2*i}, v{O+2*i+1}")
    a(f"buffer_store_dwordx4 {vr(P,4)}, v{vL16}, {sr(32)}, s57 offen sc1")
    publish(a, 36, 59, vTag, 110)
    stamp(a, 8)
    if "p1st" in OPT:
        PROF = True
    a("s_cmp_lt_u32 s3, 4")
    a("s_cbranch_scc1 P3_LOAD")
    endprof(a)
    a("END:")
    a("s_endpgm")
    a("A_EVENT:")
    a("s_cmp_eq_u32 s44, 8")
    a("s_cbranch_scc0 A_EV1")
    if "evst" in OPT:
        stamp(a, 1)
    lds_spin(a, "A_KVW1", 111, L_C1F - L_KVF, 1, 110, 62, 2)
    if "evst" in OPT:
        stamp(a, 3)
    a("s_branch A_BACK")
    a("A_EV1:")
    a("s_cmp_eq_u32 s44, 6")
    a("s_cbranch_scc0 A_EV2")
    if "evst" in OPT:
        stamp(a, 4)
    lds_spin(a, "A_KVW2", 111, 0, 1, 110, 62, 2)
    if "p1st" not in OPT:
        stamp(a, 6)
    a("s_branch A_BACK")
    a("A_EV2:")
    a("s_setprio 1")
    a(f"ds_write_b32 v108, v109 offset:{L_PAST-L_C0F}")
    a(f"s_cmp_eq_u32 s44, {PR1}")
    a("s_cbranch_scc1 A_BACK")
    a("s_setprio 0")
    a("s_branch A_BACK")
    a("A_SLOW:")
    a("s_lshl_b32 s63, s54, 17")
    a(f"s_add_u32 s63, s63, {WS_KV - WS_Q}")
    a("s_mov_b32 s61, s63")
    a(f"v_mov_b32 v{P}, 0xff800000")
    a("s_mov_b32 s44, 64")
    a("A_SLOWL:")
    a(f"buffer_load_dwordx4 {vr(Kb,4)}, v{vL16}, {sr(28)}, s61 offen sc1")
    a("s_add_u32 s61, s61, 2048")
    a("s_waitcnt vmcnt(0)")
    mfma(a, S, Kb, Q, "0")
    a("s_nop 15")
    for i in range(0, 16, 2):
        a(f"v_max3_f32 v{P}, v{P}, v{S+i}, v{S+i+1}")
    a("s_sub_u32 s44, s44, 1")
    a("s_cmp_lg_u32 s44, 0")
    a("s_cbranch_scc1 A_SLOWL")
    setC(P)
    for i in range(16):
        a(f"v_mov_b32 v{O+i}, 0")
    a("s_mov_b32 s44, 64")
    a("A_SLOW2:")
    a(f"buffer_load_dwordx4 {vr(Kb,4)}, v{vL16}, {sr(28)}, s63 offen sc1")
    a("s_mov_b64 exec, s[40:41]")
    a(f"buffer_load_dwordx4 {vr(Vb,4)}, v{vLV}, {sr(28)}, s63 offen sc1")
    a(f"buffer_load_dwordx4 {vr(Vb+4,4)}, v{vLV}, {sr(28)}, s63 offen offset:512 sc1")
    a("s_mov_b64 exec, -1")
    a("s_add_u32 s63, s63, 2048")
    a("s_waitcnt vmcnt(0)")
    mfma(a, S, Kb, Q, C)
    a("s_nop 15")
    for i in range(16):
        a(f"v_exp_f32 v{S+i}, v{S+i}")
    for i in range(8):
        a(f"v_cvt_pk_bf16_f32 v{P+i}, v{S+2*i}, v{S+2*i+1}")
    mfma(a, O, Vb, P)
    mfma(a, O, Vb + 4, P + 4)
    a("s_sub_u32 s44, s44, 1")
    a("s_cmp_lg_u32 s44, 0")
    a("s_nop 7")
    a("s_cbranch_scc1 A_SLOW2")
    a("s_nop 15")
    a(f"v_rcp_f32 v{S}, v{O+8}")
    a("s_nop 1")
    a("s_branch A_OUT")

    a("P3_LOAD:")
    vT0, vT1 = 4, 5
    gemm_src(a, 1024, vT0, vT1, 6, 7)
    a("s_lshl_b32 s54, s52, 2")
    a("s_lshr_b32 s55, s53, 3")
    a("s_add_u32 s54, s54, s55")
    a("s_and_b32 s56, s53, 7")
    a("s_lshl_b32 s57, s55, 1")
    a("s_add_u32 s57, s57, s56")
    a("s_lshl_b32 s58, s3, 14")
    a("s_lshl_b32 s59, s56, 7")
    a("s_add_u32 s58, s58, s59")
    a("s_lshl_b32 s59, s3, 16")
    a("s_lshl_b32 s60, s54, 11")
    a("s_add_u32 s59, s59, s60")
    a("s_lshl_b32 s60, s3, 11")
    srd(a, 28, pWO, 512 * 1024)
    a("s_lshl_b32 s61, s54, 2")
    a("s_add_u32 s61, s61, s3")
    a("s_lshl_b32 s61, s61, 11")
    a(f"s_add_u32 s61, s61, {F_O}")
    lds_spin(a, "P3_PAST", vF, L_PAST - L_C0F, 1, 110, 62, 2)
    for c in range(8):
        a(f"s_add_u32 s63, s57, {c}")
        a("s_and_b32 s63, s63, 7")
        a("s_lshl_b32 s63, s63, 16")
        a(f"s_add_u32 m0, s60, {c*8192}")
        a("s_add_u32 s63, s63, s58")
        a(f"buffer_load_dwordx4 v{vT0}, {sr(28)}, s63 offen lds")
        a(f"s_add_u32 m0, s60, {c*8192 + 1024}")
        a("s_nop 0")
        a(f"buffer_load_dwordx4 v{vT1}, {sr(28)}, s63 offen lds")
    lds_spin(a, "P3_DONE", vF, L_DONE - L_C0F, 1, 110, 62, 2)
    if "nom2g" not in OPT:
        lds_spin(a, "P3_M2", 111, L_M2 - L_KVF, 1, 110, 62, 2)
    stamp(a, 9)
    a("v_and_b32 v6, 15, v1")
    a("v_lshlrev_b32 v6, 7, v6")
    poll(a, "P3_POLL", 1, 6, 36, "s61", 8, vTag, 62, 2)
    stamp(a, 10)
    for c in range(8):
        a(f"s_add_u32 s63, s57, {c}")
        a("s_and_b32 s63, s63, 7")
        a("s_lshl_b32 s63, s63, 18")
        a(f"s_add_u32 m0, s60, {c*8192 + 65536}")
        a("s_add_u32 s63, s63, s59")
        a(f"buffer_load_dwordx4 v{vL16}, {sr(32)}, s63 offen sc1 lds")
        a(f"buffer_load_dwordx4 v{vL16}, {sr(32)}, s63 offen offset:1024 sc1 lds")
        OH = opt("oh", -1)
        if c == OH:
            a("s_waitcnt vmcnt(0)")
        if "o2" in OPT:
            if c == 1:
                a("s_waitcnt vmcnt(0)")
            if c in (3, 5, 7):
                if c > 3:
                    a("s_waitcnt vmcnt(4)")
                a("s_barrier")
        elif c >= 3 and c % 2 == 1:
            a("s_waitcnt vmcnt(4)")
            a("s_barrier")
    a("s_waitcnt vmcnt(0)")
    a("s_barrier")
    stamp(a, 11)
    endprof(a)
    a("s_endpgm")

    a("P1_M:")
    PD = 3
    vT0, vT1, vD0, vD1, vR0, vR1 = 4, 5, 6, 7, 8, 9
    Tf, Df, acc, tmp = 12, 28, 64, 128
    vKF = 136
    a("s_sub_u32 s48, s3, 8")
    a("s_lshl_b32 s49, s48, 13")
    a(f"s_add_u32 s49, s49, {MREG}")
    a("v_mov_b32 v10, s49")
    a("v_mov_b32 v4, 0")
    a("v_mov_b32 v5, 0")
    for i in range(4):
        a(f"v_mov_b32 v{12+i}, 0")
    a("ds_write_b128 v10, v[12:15] offset:6144")
    a("ds_write_b128 v10, v[12:15] offset:6160")
    a("v_min_u32 v3, 47, v1")
    a("v_lshlrev_b32 v3, 2, v3")
    a(f"v_add_u32 v3, {LF}, v3")
    a("ds_write_b32 v3, v12")
    a(f"v_mov_b32 v3, {F_E}")
    a("s_mov_b32 s60, 0x9e3779b1")
    a(f"v_mov_b32 v6, {L_TAG}")
    a("s_waitcnt lgkmcnt(0)")
    srd(a, 36, pWS, SZ_F, WS_F)
    a(f"buffer_load_dwordx2 {vr(vTag,2)}, v3, {sr(36)}, 0 offen sc1")
    if "tlb" in OPT or "tlbs" in OPT:
        a("s_cmp_lg_u32 s48, 0")
        a("s_cbranch_scc1 M_TLB")
        if "tlbs" in OPT:
            a("s_cmp_lt_u32 s53, 24")
            a("s_cbranch_scc1 M_TLB")
        srd(a, 32, pWS, 14 * MB)
        a("v_lshlrev_b32 v7, 21, v1")
        a("v_add_u32 v7, 0x1fff80, v7")
        a(f"buffer_load_dword v16, v7, {sr(32)}, 0 offen")
        a("v_lshlrev_b32 v7, 21, v1")
        for k, (p, sz) in enumerate(((pOUT, 2 * MB), (pWO, 512 * 1024), (pB1, 2752), (pB2, 4096), (pW1, 2048 * 2752), (pW2, 1376 * 4096))):
            srd(a, 32, p, sz)
            a(f"buffer_load_dword v{17+k}, v7, {sr(32)}, 0 offen")
        a("M_TLB:")
    if "nowt" not in OPT:
        a("s_cmp_lt_u32 s53, 24")
        a("s_cbranch_scc1 SVC_W2")
        a("s_and_b32 s56, s53, 7")
        a("s_lshl_b32 s56, s56, 2")
        a("s_add_u32 s56, s56, s48")
        a("s_mul_i32 s57, s56, 43")
        a("s_lshr_b32 s57, s57, 8")
        a("s_mul_i32 s58, s57, 6")
        a("s_sub_u32 s58, s56, s58")
        a("s_lshl_b32 s57, s57, 1")
        a("s_add_u32 s57, s57, s58")
        a("s_add_u32 s57, s57, 1")
        a("s_and_b32 s57, s57, 7")
        a("s_mul_i32 s57, s57, 196608")
        a("s_and_b32 s59, s52, 1")
        a("s_mul_i32 s59, s59, 6")
        a("s_add_u32 s58, s58, s59")
        a("s_lshl_b32 s58, s58, 8")
        a("s_add_u32 s57, s57, s58")
        srd(a, 32, pWQKV, 512 * 3072)
        a("v_mul_u32_u24 v7, 3072, v1")
        a("s_cmp_ge_u32 s56, 24")
        a("s_cbranch_scc1 SVC_W2")
        a(f"buffer_load_dword v8, v7, {sr(32)}, s57 offen{NTW}")
        a(f"buffer_load_dword v9, v7, {sr(32)}, s57 offen offset:128{NTW}")
        a("SVC_W2:")
    a("s_and_b32 s54, s52, 1")
    a("s_lshl_b32 s54, s54, 2")
    a("s_and_b32 s55, s53, 3")
    a("s_add_u32 s54, s54, s55")
    a("s_lshr_b32 s55, s53, 2")
    a("s_lshr_b32 s56, s52, 1")
    a("s_mul_i32 s56, s56, 11")
    a("s_add_u32 s68, s56, 12")
    a("s_lshr_b32 s68, s68, 1")
    a("s_add_u32 s56, s56, 1")
    a("s_lshr_b32 s56, s56, 1")
    a("s_add_u32 s56, s56, s55")
    a("s_and_b32 s50, s48, 1")
    a("s_lshr_b32 s51, s48, 1")
    a("v_lshlrev_b32 v2, 4, v1")
    a("v_lshrrev_b32 v10, 5, v1")
    a("v_and_b32 v11, 31, v1")
    a("v_lshlrev_b32 v11, 4, v11")
    a("v_lshl_add_u32 v3, v10, 13, v11")
    a("s_lshl_b32 s57, s48, 2")
    a(f"s_add_u32 s57, s57, {L_KVF}")
    a(f"v_mov_b32 v{vKF}, s57")
    a(f"v_mov_b32 v{vKF+1}, 1")
    srd(a, 28, pW1, 2048 * 2752)
    srd(a, 32, pWS, 2 * MB, WS_HT)
    srd(a, 40, pWS, 4 * MB, WS_KV)
    a("s_waitcnt vmcnt(0)")
    a(f"v_mul_lo_u32 v{vTag}, v{vTag}, s60")
    a(f"v_add_u32 v{vTag+1}, 0x7f4a7c15, v{vTag+1}")
    a(f"v_add_u32 v{vTag}, 1, v{vTag}")
    a(f"ds_write_b64 v6, {vr(vTag,2)}")
    a("s_waitcnt lgkmcnt(0)")
    a("s_barrier")
    a("s_setprio 3")
    a("s_cmp_ge_u32 s53, 24")
    a("s_cbranch_scc1 M_SVC")
    for c in range(7):
        a("s_barrier")
    stamp(a, 1)

    def htpoll(lab):
        a("s_lshl_b32 s61, s48, 11")
        a("v_and_b32 v10, 15, v1")
        a("v_lshlrev_b32 v10, 7, v10")
        poll(a, lab, 1, 10, 36, "s61", tmp, vTag, 62, 4)

    def kvrest(lab):
        lds_wait(a, lab + "D", L_C0F, 8, tmp + 4, tmp, 62, 2)
        a("s_lshl_b32 s44, s52, 5")
        a("s_add_u32 s44, s44, s48")
        a("s_lshl_b32 s44, s44, 7")
        a(f"s_add_u32 s44, s44, {F_QKV + 32768}")
        a(f"v_and_b32 v{tmp+4}, 7, v1")
        a(f"v_lshlrev_b32 v{tmp+4}, 9, v{tmp+4}")
        a(f"v_bfe_u32 v{tmp+5}, v1, 3, 1")
        a(f"v_lshl_add_u32 v{tmp+4}, v{tmp+5}, 15, v{tmp+4}")
        poll(a, lab + "C", 1, tmp + 4, 36, "s44", tmp, vTag, 62, 2)
        a("s_lshl_b32 s44, s52, 2")
        a("s_and_b32 s45, s53, 3")
        a("s_add_u32 s44, s44, s45")
        a("s_lshl_b32 s44, s44, 17")
        a("s_lshl_b32 s46, s48, 12")
        a("s_lshr_b32 s45, s53, 2")
        a("s_min_u32 s45, s45, 4")
        a("s_add_u32 s45, s45, 2")
        a("s_lshl_b32 s45, s45, 14")
        for j in range(5):
            a("s_add_u32 s45, s45, 16384")
            a("s_cmp_ge_u32 s45, 0x20000")
            a("s_cselect_b32 s45, 49152, s45")
            a("s_add_u32 s47, s45, s46")
            a("s_mov_b32 m0, s47")
            a("s_add_u32 s47, s47, s44")
            for n in range(4):
                a(f"buffer_load_dwordx4 v2, {sr(40)}, s47 offen offset:{n*1024} sc1 lds")

    a("s_cmp_ge_u32 s56, s68")
    a("s_cbranch_scc1 M_IDLE")
    a(f"s_mul_i32 s57, s48, {512*2752}")
    a("s_lshl_b32 s58, s56, 7")
    a("s_add_u32 s57, s57, s58")
    a("s_lshl_b32 s58, s48, 19")
    a("s_lshl_b32 s59, s54, 10")
    a("s_add_u32 s58, s58, s59")
    a("s_lshl_b32 s60, s51, 6")
    a("s_lshl_b32 s61, s50, 9")
    gemm_src(a, 2752, vT0, vT1, 10, 11)
    a(f"v_xor_b32 v{vD0}, s61, v3")
    a(f"v_xor_b32 v{vD1}, 512, v{vD0}")
    G1 = opt("g1_", 8)
    g1 = Gemm(a, 32, PD, 28, 32, 57, 58, 49, 2752, 16384, True, vT0, vT1, vD0, vD1, vR0, vR1, 512, Tf, Df, acc, " sc1", 63, G1)
    a("s_and_b32 s63, s53, 3")
    a(f"s_mul_i32 s63, s63, {max(1, G1//4)}")
    a(f"s_mul_i32 s62, s55, {max(1, G1//6)}")
    a("s_add_u32 s63, s63, s62")
    gemm_rd(a, 8, vR0, vR1, 49, 60, 10, 11)
    GATE = opt("gate", 3)
    if GATE:
        lds_wait(a, "M_GATE", (L_ISS, L_PUB, L_C0F)[GATE - 1], 4 if GATE < 3 else 8, 10, 11, 62, 2)
    if "kvpre" in OPT:
        htpoll("M_HT")
        kvrest("M_KV0")
        g1.log.extend([("K", 0)] * 20)
    else:
        htpoll("M_HT")
    stamp(a, 2)
    g1.pro_T()
    g1.pro_D()
    KVS = opt("kvs", 0)

    def hook_kv():
        stamp(a, 3)
        a("s_setprio 3")
        kvrest("M_KV1")
        a("s_setprio 0")
        g1.log.extend([("K", 0)] * 20)
        stamp(a, 4)

    def hook_kvf():
        g1.wait_for([("K", 0)])
        a(f"ds_write_b32 v{vKF}, v{vKF+1}")

    if "kvpre" in OPT:
        hook_kvf()
        stamp(a, 3)
        g1.main({16: lambda: stamp(a, 4)})
    else:
        g1.main({KVS: hook_kv, KVS + 3: hook_kvf})
    stamp(a, 5)
    srd(a, 28, pB1, 2752)
    srd(a, 32, pWS, SZ_U, WS_U)
    a("s_lshl_b32 s61, s56, 7")
    a("s_add_u32 s61, s61, s60")
    a("v_lshrrev_b32 v10, 5, v1")
    a("v_lshlrev_b32 v10, 3, v10")
    for g in range(4):
        a(f"buffer_load_dwordx2 {vr(Df+2*g,2)}, v10, {sr(28)}, s61 offen offset:{16*g}")
    mreduce(a, "M1", acc, 49, 0, 10, 11, tmp, Df + 16, 62)
    a("s_mov_b32 s61, 0xffff0000")
    a("s_waitcnt vmcnt(0)")
    for i in range(8):
        a(f"v_lshlrev_b32 v{acc+16+2*i}, 16, v{Df+i}")
        a(f"v_and_b32 v{acc+16+2*i+1}, s61, v{Df+i}")
    for i in range(0, 16, 2):
        a(f"v_pk_add_f32 {vr(acc+i,2)}, {vr(acc+i,2)}, {vr(acc+16+i,2)}")
    gelu(a, acc, acc + 16, acc + 32, 16, 61)
    for i in range(8):
        a(f"v_cvt_pk_bf16_f32 v{Tf+i}, v{acc+2*i}, v{acc+2*i+1}")
    a("s_lshl_b32 s61, s56, 16")
    a("s_lshl_b32 s62, s51, 15")
    a("s_add_u32 s61, s61, s62")
    a("s_add_u32 s61, s61, s59")
    a("s_add_u32 s62, s61, 16384")
    a(f"buffer_store_dwordx4 {vr(Tf,4)}, v{vD0}, {sr(32)}, s61 offen sc1")
    a(f"buffer_store_dwordx4 {vr(Tf+4,4)}, v{vD0}, {sr(32)}, s62 offen sc1")
    a("s_lshl_b32 s61, s56, 2")
    a("s_add_u32 s61, s61, s48")
    a("s_lshl_b32 s61, s61, 3")
    a("s_add_u32 s61, s61, s59")
    a("s_lshl_b32 s61, s61, 4")
    a(f"s_add_u32 s61, s61, {F_U}")
    publish(a, 36, 61, vTag, 10)
    a("s_branch M_2")

    a("M_SVC:")
    stamp(a, 1)
    a("s_and_b32 s57, s53, 7")
    a("s_lshl_b32 s58, s48, 5")
    a("s_add_u32 s57, s57, s58")
    a("s_sub_u32 s58, s56, s55")
    a("s_lshl_b32 s58, s58, 7")
    a(f"s_mul_i32 s59, s57, {16*2752}")
    a("s_add_u32 s58, s58, s59")
    a("s_lshl_b32 s59, s57, 14")
    a("s_and_b32 s60, s52, 1")
    a("s_lshl_b32 s60, s60, 12")
    a("s_add_u32 s59, s59, s60")
    a("v_lshrrev_b32 v4, 3, v1")
    a("v_mul_u32_u24 v4, 2752, v4")
    a("v_and_b32 v5, 7, v1")
    a("v_min_u32 v5, 6, v5")
    a("v_lshl_add_u32 v4, v5, 7, v4")
    a(f"v_add_u32 v5, {8*2752}, v4")
    a("v_lshrrev_b32 v6, 5, v1")
    a("v_lshlrev_b32 v6, 13, v6")
    a("v_and_b32 v7, 31, v1")
    a("v_lshl_add_u32 v6, v7, 7, v6")

    def tw(g):
        a(f"buffer_load_dword v{Tf+3*g}, v4, {sr(28)}, s58 offen{NTM}")
        a(f"buffer_load_dword v{Tf+3*g+1}, v5, {sr(28)}, s58 offen{NTM}")
        a(f"s_add_u32 s58, s58, {128*2752}")

    def th(g):
        a(f"buffer_load_dword v{Tf+3*g+2}, v6, {sr(32)}, s59 offen sc1")
        a(f"s_add_u32 s59, s59, {8*16384}")

    NE, NW = opt("ne", 0), opt("nw", 1)
    for g in range(NE):
        tw(g)
    a("s_barrier")
    a("s_barrier")
    stamp(a, 2)
    for g in range(NE, NW):
        tw(g)
    NH = opt("nh", 0)
    if NH:
        htpoll("M_HT3")
        for g in range(NH):
            th(g)
    a("s_waitcnt vmcnt(0)")
    a(f"ds_write_b32 v{vKF}, v{vKF+1} offset:{L_PUB-L_KVF}")
    stamp(a, 3)
    a("M_IDLE:")
    kvrest("M_KV2")
    a("s_waitcnt vmcnt(0)")
    a(f"ds_write_b32 v{vKF}, v{vKF+1}")
    stamp(a, 4)
    a("s_cmp_lt_u32 s53, 24")
    a("s_cbranch_scc1 M_IDLE2")
    if not NH:
        htpoll("M_HT2")
    for g in range(4):
        if g + NH < 4:
            th(g + NH)
        if g + NW < 4:
            tw(g + NW)
    stamp(a, 5)
    srd(a, 28, pW2, 1376 * 4096)
    a("s_and_b32 s57, s53, 7")
    a("s_lshl_b32 s57, s57, 2")
    a("s_add_u32 s57, s57, s48")
    a(f"s_mul_i32 s58, s57, {43*4096}")
    a("s_lshl_b32 s59, s52, 9")
    a("s_add_u32 s58, s58, s59")
    a("v_lshrrev_b32 v10, 2, v1")
    a("v_lshlrev_b32 v10, 12, v10")
    a("v_and_b32 v11, 3, v1")
    a("v_lshl_add_u32 v10, v11, 7, v10")
    for j in range(3):
        a(f"buffer_load_dword v{Tf+12+j}, v10, {sr(28)}, s58 offen{NTM}")
        a("s_add_u32 s58, s58, 65536")
    srd(a, 28, pWO, 512 * 1024)
    a("s_lshl_b32 s58, s57, 14")
    a("v_lshlrev_b32 v10, 7, v1")
    a(f"buffer_load_dword v{Tf+15}, v10, {sr(28)}, s58 offen")
    a("s_add_u32 s58, s58, 8192")
    a(f"buffer_load_dword v{Tf+11}, v10, {sr(28)}, s58 offen")
    a("s_waitcnt vmcnt(0)")
    a("M_IDLE2:")
    srd(a, 32, pWS, SZ_U, WS_U)
    a("M_2:")
    stamp(a, 6)
    srd(a, 28, pW2, 1376 * 4096)
    a("s_and_b32 s54, s53, 7")
    a("s_lshr_b32 s55, s53, 3")
    a("s_lshl_b32 s56, s52, 2")
    a("s_add_u32 s56, s56, s55")
    a(f"s_mul_i32 s57, s48, {22*16*4096}")
    a("s_lshl_b32 s58, s56, 7")
    a("s_add_u32 s57, s57, s58")
    a(f"s_mul_i32 s58, s48, {22*16384}")
    a("s_lshl_b32 s59, s54, 10")
    a("s_add_u32 s58, s58, s59")
    a("s_lshl_b32 s60, s50, 6")
    a("s_lshl_b32 s61, s51, 9")
    gemm_src(a, 4096, vT0, vT1, 10, 11)
    a(f"v_xor_b32 v{vD0}, s61, v3")
    a(f"v_xor_b32 v{vD1}, 512, v{vD0}")
    g2 = Gemm(a, opt("m2n", 22), PD, 28, 32, 57, 58, 49, 4096, 16384, False, vT0, vT1, vD0, vD1, vR0, vR1, 1024, Tf, Df, acc, " sc1", 63, opt("g2_", 4))
    a("s_add_u32 s63, s55, s54")
    g2.pro_T()
    gemm_rd(a, 4, vR0, vR1, 49, 60, 10, 11)
    a("s_lshl_b32 s61, s2, 4")
    a("s_add_u32 s61, s61, s48")
    a("s_cmp_lg_u32 s61, 0")
    a("s_cbranch_scc1 M_NOE")
    a("v_lshrrev_b32 v10, 4, v1")
    a("v_lshlrev_b32 v10, 13, v10")
    a("v_and_b32 v11, 15, v1")
    a("v_lshl_add_u32 v10, v11, 8, v10")
    for t in range(3):
        a(f"s_mov_b32 s61, {F_QKV + 32768*t}")
        poll(a, f"M_E{t}", 1, 10, 36, "s61", tmp, vTag, 62, 8)
    a("v_lshlrev_b32 v10, 7, v1")
    poll(a, "M_E3", 1, 10, 36, "0", tmp, vTag, 62, 8)
    a("v_lshlrev_b32 v10, 20, v1")
    a(f"s_mov_b32 s61, {F_E}")
    a(f"buffer_store_dwordx2 {vr(vTag,2)}, v10, {sr(36)}, s61 offen sc1")
    a("M_NOE:")
    a("s_mul_i32 s61, s48, 11")
    a("s_lshr_b32 s61, s61, 1")
    a("s_lshl_b32 s61, s61, 5")
    a("s_add_u32 s61, s61, s59")
    a("s_lshl_b32 s61, s61, 4")
    a(f"s_add_u32 s61, s61, {F_U}")
    a("v_min_u32 v10, 23, v1")
    a("v_lshlrev_b32 v10, 7, v10")
    poll(a, "M_U", 1, 10, 36, "s61", tmp, vTag, 62, 8)
    stamp(a, 7)
    g2.pro_D()
    g2.main({opt("m2n", 22) - 3: lambda: a(f"ds_write_b32 v{vKF}, v{vKF+1} offset:{L_M2 - L_KVF}")})
    stamp(a, 8)
    srd(a, 28, pB2, 4096)
    srd(a, 32, pWS, 8192, WS_G)
    a("s_lshl_b32 s61, s56, 7")
    a("s_add_u32 s61, s61, s60")
    a("s_lshl_b32 s62, s61, 1")
    a("v_and_b32 v10, 31, v1")
    a("v_lshlrev_b32 v11, 2, v10")
    a("v_lshlrev_b32 v10, 1, v10")
    a(f"buffer_load_ushort v{Df}, v10, {sr(28)}, s61 offen")
    a(f"buffer_load_dword v{Df+1}, v11, {sr(32)}, s62 offen sc1")
    mreduce(a, "M2", acc, 49, 16, 10, 11, tmp, Df + 16, 62)
    a("s_waitcnt vmcnt(0)")
    G, Y = Df + 1, acc
    a(f"v_lshlrev_b32 v{Df}, 16, v{Df}")
    a(f"v_sub_f32 v{Df+2}, 1.0, v{G}")
    a(f"v_mul_f32 v{Df}, v{Df}, v{Df+2}")
    for i in range(16):
        a(f"v_fma_f32 v{Y+i}, v{Y+i}, v{Df+2}, v{Df}")
    stamp(a, 9)

    vR, vO = 4, 5
    Wf, Of, A3 = 96, 128, 80
    a("s_lshl_b32 s60, s51, 6")
    gemm_rd(a, 4, vR, None, None, 60, 10, 11)
    a("s_lshl_b32 s60, s50, 10")
    a("s_add_u32 s60, s60, 65536")
    a(f"v_add_u32 v{vO}, s60, v2")
    srd(a, 28, pOUT, 2 * MB)
    a("v_and_b32 v9, 31, v1")
    a("v_lshlrev_b32 v9, 10, v9")
    a("v_lshrrev_b32 v10, 5, v1")
    a("v_lshl_add_u32 v9, v10, 4, v9")
    a("s_lshl_b32 s57, s56, 16")
    a("s_lshl_b32 s58, s50, 15")
    a("s_add_u32 s57, s57, s58")
    a("s_lshl_b32 s58, s54, 7")
    a("s_add_u32 s57, s57, s58")
    a("s_lshl_b32 s58, s51, 6")
    a("s_add_u32 s57, s57, s58")

    def rd3(t):
        off = t * 2048
        r, o = vR, vO
        b = t % 8
        a(f"ds_read_b64_tr_b16 {vr(Wf+4*b,2)}, v{r} offset:{off}")
        a(f"ds_read_b64_tr_b16 {vr(Wf+4*b+2,2)}, v{r} offset:{off+1024}")
        a(f"ds_read_b128 {vr(Of+4*b,4)}, v{o} offset:{off}")

    for c in range(4):
        a("s_barrier")
        if c in (0, 3):
            stamp(a, 10 + c // 3)
        for j in range(4):
            rd3(8 * c + j)
        for j in range(8):
            t = 8 * c + j
            if j + 4 < 8:
                rd3(t + 4)
            a(f"s_waitcnt lgkmcnt({3*min(4, 7-j)})")
            mfma(a, A3, Wf + 4 * j, Of + 4 * j, "0" if t == 0 else None)
    stamp(a, 12)
    for i in range(16):
        a(f"v_fmac_f32 v{Y+i}, v{A3+i}, v{G}")
    for i in range(8):
        a(f"v_cvt_pk_bf16_f32 v{Tf+i}, v{Y+2*i}, v{Y+2*i+1}")
    for p in range(2):
        a(f"v_permlane32_swap_b32 v{Tf+4*p}, v{Tf+4*p+2}")
        a(f"v_permlane32_swap_b32 v{Tf+4*p+1}, v{Tf+4*p+3}")
        a(f"buffer_store_dwordx4 {vr(Tf+4*p,4)}, v9, {sr(28)}, s57 offen offset:{32*p}{' sc1' if 'osc1' in OPT else ''}{' nt' if 'ont' in OPT else ''}")
    endprof(a)
    a("s_endpgm")
    return dict(name=nm, vgpr=168, grid=256, block=768, lds=163840)


DOC = """; One launch, 256 workgroups of 12 waves, one per CU (all resident). Generated by the author's own script.
;           waves 8-11: both token-mixing MLP layers (wave-private split-K GEMMs) beside the attention.
"""


def build(path, verbose=False, aslist=False):
    ref = open("cdna_kernels/" + NAME + ".s.ref").read().split("\n")
    hdr = [l for l in ref if l.startswith(";") and "@launch" not in l and "Override launch" not in l and "grid=ceil" not in l]
    a = Asm()
    i = kernel(a)
    a.fix(verbose)
    s = "\n".join(hdr) + "\n"
    if aslist:
        s += f"; @launch kernel={i['name']} grid=({i['grid']},1,1) block=({i['block']},1,1) lds={i['lds']}\n"
    else:
        s += f"; @launch grid=({i['grid']},1,1) block=({i['block']},1,1) lds={i['lds']}\n"
    s += '.amdgcn_target "amdgcn-amd-amdhsa--gfx950"\n'
    s += DOC
    s += '.text\n'
    s += a.text()
    s += '.section .rodata,"a"\n'
    s += f""".p2align 6
.amdhsa_kernel {i['name']}
  .amdhsa_next_free_vgpr {i['vgpr']}
  .amdhsa_next_free_sgpr {102 if PROF or opt('cal', -1) >= 0 else 70}
  .amdhsa_accum_offset {i['vgpr']}
  .amdhsa_group_segment_fixed_size 0
  .amdhsa_kernarg_size 96
  .amdhsa_user_sgpr_count 2
  .amdhsa_user_sgpr_kernarg_segment_ptr 1
  .amdhsa_system_sgpr_workgroup_id_x 1
.end_amdhsa_kernel
"""
    open(path, "w").write(s)


if __name__ == "__main__":
    out = sys.argv[1] if len(sys.argv) > 1 and not sys.argv[1][0] in "-+" else "cdna_kernels/" + NAME + ".s"
    PROF = "-p" in sys.argv
    OPT = set(x[1:] for x in sys.argv if x.startswith("+"))
    build(out, verbose="-v" in sys.argv, aslist="-l" in sys.argv)
```
